```python
import torch

def _softmax(x, axis=-1):
    return torch.softmax(x, dim=axis)
def _gelu(x):
    return torch.nn.functional.gelu(x, approximate="tanh")
def _silu(x):
    return torch.nn.functional.silu(x)
def _sigmoid(x):
    return torch.sigmoid(x)
def _layernorm(x, axis=-1, eps=1e-5):
    m = x.mean(dim=axis, keepdim=True)
    v = x.var(dim=axis, keepdim=True, unbiased=False)
    return (x - m) / torch.sqrt(v + eps)
def _scatter_add(tgt, idx, src, axis=0):
    return tgt.clone().index_add_(axis, idx, src)
def _segment_sum(src, seg, n):
    out = torch.zeros((n,) + src.shape[1:], dtype=src.dtype)
    return out.index_add_(0, seg, src)
def _pad(x, pw):
    flat = tuple(v for pair in reversed(pw) for v in pair)
    return torch.nn.functional.pad(x, flat)

kernel_name = 'sequential_preLN__softmax_full_mha__mixer_token_mlp__prompt'

def setup_inputs():

    _w = (lambda a: (lambda t: t.to(torch.bfloat16) if t.is_floating_point() else t)(torch.as_tensor(a)))
    def _A_setup():
        B, S, D = 1, 2048, 576
        return {
            "x": _w((lambda *s: torch.randn(*s, dtype=torch.bfloat16) * 0.05)(B, S, D)),
            "wqkv": _w((lambda *s: torch.randn(*s, dtype=torch.bfloat16) * 0.05)(D, 3 * D)),
            "wo": _w((lambda *s: torch.randn(*s, dtype=torch.bfloat16) * 0.05)(D, D)),
        }
    _A_in = _A_setup()

    def _B_setup():
        B, S, D, F = 1, 2048, 576, 4608
        return {
            "x": _w((lambda *s: torch.randn(*s, dtype=torch.bfloat16) * 0.05)(B, S, D)),
            "w1": _w((lambda *s: torch.randn(*s, dtype=torch.bfloat16) * 0.8)(S, F) * (S ** -0.5)),
            "b1": _w((lambda *s: torch.randn(*s, dtype=torch.bfloat16) * 12.8)(F) * 0.02),
            "w2": _w((lambda *s: torch.randn(*s, dtype=torch.bfloat16) * 0.4)(F, S) * (F ** -0.5)),
            "b2": _w((lambda *s: torch.randn(*s, dtype=torch.bfloat16) * 6.4)(S) * 0.02),
        }
    _B_in = _B_setup()

    return {
        "A_x": _A_in["x"],
        "A_wqkv": _A_in["wqkv"],
        "A_wo": _A_in["wo"],
        "B_x": _B_in["x"],
        "B_w1": _B_in["w1"],
        "B_b1": _B_in["b1"],
        "B_w2": _B_in["w2"],
        "B_b2": _B_in["b2"],
    }

def reference(A_x, A_wqkv, A_wo, B_x, B_w1, B_b1, B_w2, B_b2):
    def _A_ref(x, wqkv, wo):
        B, S, D = x.shape
        H = 32; Dh = D // H
        qkv = (lambda x, *d: x.permute(*d))((x @ wqkv).reshape(B, S, 3, H, Dh), 2, 0, 3, 1, 4)
        q, k, v = qkv[0], qkv[1], qkv[2]
        scale = Dh ** -0.5
        scores = torch.einsum("bhqd,bhkd->bhqk", q, k) * scale
        p = _softmax(scores, axis=-1)
        o = torch.einsum("bhqk,bhkd->bhqd", p, v)
        return (lambda x, *d: x.permute(*d))(o, 0, 2, 1, 3).reshape(B, S, D) @ wo

    def _B_ref(x, w1, b1, w2, b2):
        B, S, D = x.shape
        h = _layernorm(x, axis=-1)
        u = torch.einsum("bsd,sf->bdf", h, w1) + b1
        u = _gelu(u)
        y = torch.einsum("bdf,fs->bds", u, w2) + b2
        return (lambda x, *d: x.permute(*d))(y, 0, 2, 1)

    x = A_x
    h = x + _A_ref(_layernorm(x, axis=-1), A_wqkv, A_wo)
    h2 = h + _B_ref(_layernorm(h, axis=-1), B_w1, B_b1, B_w2, B_b2)
    return h2
```

```python
import sys, math, os
FL = os.environ.get('FLAGS', '').split(',')

S, D, F, H, DH = 2048, 576, 4608, 32, 18
WS_Q  = 0x0        ; SZ_Q  = 32*2048*48
WS_KV = 0x300000   ; HB = 159744 ; SZ_KV = 32*HB + 8192
WS_O  = 0x800000   ; SZ_SD = 2048*576*2
WS_H  = 0xA80000
WS_G  = 0xD00000
WS_U  = 0x1000000  ; SZ_U = 576*4608*2
WS_P  = 0x1800000  ; SZ_P = 4*2048*576*4
CHUNK = 39936
LOG2E = 1.4426950408889634
QSCALE = (18 ** -0.5) * LOG2E

import struct
def f32hex(x):
    return "0x%08x" % struct.unpack("<I", struct.pack("<f", x))[0]

class Asm:
    def __init__(s, name):
        s.name = name; s.t = []; s.nl = 0
    def __call__(s, line):
        if s.name == 'qkv_kernel':
            if 'k1nostore' in FL and line.startswith('buffer_store'): return
            if 'k1nomfma' in FL and line.startswith('v_mfma'): return
            if 'k1nodot' in FL and line.startswith('v_dot2c'): return
            if 'k1notr' in FL and line.startswith('ds_read_b64_tr'): return
            if 'k1noa' in FL and line.startswith('buffer_load_dwordx4 v['): return
            if 'k1nodma' in FL and line.startswith('buffer_load') and line.endswith('lds'): return
            if 'k1nobar' in FL and line.startswith('s_barrier'): return
        s.t.append("    " + line)
    def lab(s, l):
        s.t.append(l + ":")
    def newlabel(s, p="L"):
        s.nl += 1
        return f"{s.name}_{p}{s.nl}"
    def text(s):
        return "\n".join(s.t) + "\n"

def vr(b, n):  return f"v[{b}:{b+n-1}]"
def ar(b, n):  return f"a[{b}:{b+n-1}]"
def sr(b, n):  return f"s[{b}:{b+n-1}]"

def srd_from_arg(a, sreg, argoff, size, tmp):
    a(f"s_mov_b32 s{sreg}, s{tmp}")
    a(f"s_mov_b32 s{sreg+1}, s{tmp+1}")
    a(f"s_mov_b32 s{sreg+2}, {size}")
    a(f"s_mov_b32 s{sreg+3}, 0x00020000")

def srd_ws(a, sreg, wsreg, off, size):
    a(f"s_add_u32 s{sreg}, s{wsreg}, {off}")
    a(f"s_addc_u32 s{sreg+1}, s{wsreg+1}, 0")
    a(f"s_mov_b32 s{sreg+2}, {size}")
    a(f"s_mov_b32 s{sreg+3}, 0x00020000")

def header(a):
    a.t.append(f".globl {a.name}\n.p2align 8\n.type {a.name},@function\n{a.name}:")

def descriptor(name, vgpr, agpr, sgpr=96):
    acc = (vgpr + 3) // 4 * 4
    return f""".p2align 6
.amdhsa_kernel {name}
  .amdhsa_next_free_vgpr {acc + agpr if agpr else vgpr}
  .amdhsa_next_free_sgpr {sgpr}
  .amdhsa_accum_offset {acc}
  .amdhsa_group_segment_fixed_size 0
  .amdhsa_kernarg_size 88
  .amdhsa_user_sgpr_count 2
  .amdhsa_user_sgpr_kernarg_segment_ptr 1
  .amdhsa_system_sgpr_workgroup_id_x 1
.end_amdhsa_kernel
"""

def interleave(main, *fill):
    out = []
    n = len(main)
    pos = [0]*len(fill)
    for idx, m in enumerate(main):
        out.append(m)
        for fi, f in enumerate(fill):
            tgt = (idx+1)*len(f)//n
            while pos[fi] < tgt:
                out.append(f[pos[fi]]); pos[fi] += 1
    return out

def k1():
    a = Asm("qkv_kernel"); header(a)
    R = 4; STG = 18432
    AF = lambda i, kk: 24 + (kk*2 + i)*4
    ACC = lambda i, j: 168 + (i*9 + j)*4
    BF = lambda buf, j: (buf*9 + j)*4
    CW = lambda j: 72 + j*4
    a("s_cmp_ge_u32 s2, 192")
    a(f"s_cbranch_scc1 {a.name}_end")
    a("s_load_dwordx2 s[4:5], s[0:1], 0")
    a("s_load_dwordx2 s[6:7], s[0:1], 8")
    a("s_load_dwordx2 s[28:29], s[0:1], 80")
    a("s_mul_i32 s24, s2, 5462")
    a("s_lshr_b32 s24, s24, 16")
    a("s_mul_i32 s25, s24, 12")
    a("s_sub_u32 s25, s2, s25")
    a("v_and_b32 v1, 63, v0")
    a("v_lshrrev_b32 v2, 4, v1")
    a("v_and_b32 v3, 15, v1")
    a("v_lshrrev_b32 v4, 6, v0")
    a("s_nop 1")
    a("v_readfirstlane_b32 s26, v4")
    a("s_waitcnt lgkmcnt(0)")
    srd_from_arg(a, 8, 0, S*D*2, 4)
    srd_from_arg(a, 12, 8, D*3*D*2, 6)
    srd_ws(a, 16, 28, WS_Q, SZ_Q)
    srd_ws(a, 20, 28, WS_KV, SZ_KV)
    a("s_lshl_b32 s27, s24, 7")
    a("s_lshl_b32 s30, s26, 5")
    a("s_add_u32 s27, s27, s30")
    a("v_add_u32 v4, s27, v3")
    a("v_mul_u32_u24 v4, 1152, v4")
    a("v_lshl_add_u32 v4, v2, 4, v4")
    a("s_mov_b32 s31, 18432")
    for kk in range(18):
        for i in range(2):
            so = "0" if i == 0 else "s31"
            a(f"buffer_load_dwordx4 {vr(AF(i,kk),4)}, v4, s[8:11], {so} offen offset:{kk*64}")
    a("s_lshl_b32 s32, s26, 6")
    a("s_and_b32 s33, s26, 1")
    a("s_add_u32 s33, s33, 16")
    a("s_lshl_b32 s34, s33, 6")
    a("s_mul_i32 s35, s25, 288")
    for n in range(5):
        t = 240
        if n < 4:
            a(f"v_add_u32 v{t}, s32, v1")
            if n: a(f"v_add_u32 v{t}, {n*256}, v{t}")
        else:
            a(f"v_add_u32 v{t}, s34, v1")
        a(f"v_mul_u32_u24 v{t+1}, 3641, v{t}")
        a(f"v_lshrrev_b32 v{t+1}, 16, v{t+1}")
        a(f"v_mul_u32_u24 v{t+2}, 18, v{t+1}")
        a(f"v_sub_u32 v{t+2}, v{t}, v{t+2}")
        a(f"v_and_b32 v{t+3}, 0x33, v{t+1}")
        a(f"v_and_b32 v{t+4}, 4, v{t+1}")
        a(f"v_lshlrev_b32 v{t+4}, 1, v{t+4}")
        a(f"v_or_b32 v{t+3}, v{t+3}, v{t+4}")
        a(f"v_and_b32 v{t+4}, 8, v{t+1}")
        a(f"v_lshrrev_b32 v{t+4}, 1, v{t+4}")
        a(f"v_or_b32 v{t+3}, v{t+3}, v{t+4}")
        a(f"v_mul_u32_u24 v{t+3}, 3456, v{t+3}")
        a(f"v_lshl_add_u32 v{t+3}, v{t+2}, 4, v{t+3}")
        a(f"v_add_u32 v{5+n}, s35, v{t+3}")
    a("s_lshl_b32 s36, s26, 10")
    a("s_lshl_b32 s37, s33, 10")
    def dma(stage):
        slot = stage % R
        a(f"s_mov_b32 s38, {stage*64*3456}")
        for n in range(5):
            if n < 4: a(f"s_add_u32 m0, s36, {slot*STG + n*4096}")
            else:     a(f"s_add_u32 m0, s37, {slot*STG}")
            a("s_nop 0")
            a(f"buffer_load_dwordx4 v{5+n}, s[12:15], s38 offen lds")
    for st in range(R): dma(st)
    a("v_lshrrev_b32 v240, 1, v2")
    a("v_and_b32 v241, 1, v2")
    a("v_lshlrev_b32 v240, 4, v240")
    a("v_lshl_add_u32 v240, v241, 2, v240")
    a("v_lshrrev_b32 v241, 2, v3")
    a("v_add_u32 v240, v240, v241")
    a("v_mul_u32_u24 v240, 288, v240")
    a("v_and_b32 v241, 3, v3")
    a("v_lshl_add_u32 v10, v241, 3, v240")
    a(f"v_add_u32 v11, {2*STG}, v10")
    for r in range(12, 16): a(f"v_mov_b32 v{r}, 0")
    for r in range(16, 20): a(f"v_mov_b32 v{r}, 0x3f803f80")
    for r in range(168, 240): a(f"v_mov_b32 v{r}, 0")
    for r in range(72, 108): a(f"v_accvgpr_write_b32 a{r}, 0")
    def reads(t):
        st = t // 2; ks = t % 2; slot = st % R
        base = "v10" if slot < 2 else "v11"
        off0 = (slot % 2)*STG + ks*32*288
        L = []
        for j in range(9):
            for hh in range(2):
                b = BF(t % 2, j) + 2*hh
                L.append(f"ds_read_b64_tr_b16 {ar(b,2)}, {base} offset:{off0 + hh*8*288 + 32*j}")
        return L
    a("s_lshr_b32 s39, s25, 2")
    a("s_waitcnt vmcnt(15)")
    a("s_barrier")
    for x in reads(0): a(x)
    a("s_cmp_eq_u32 s39, 2")
    a(f"s_cbranch_scc1 {a.name}_vloop")
    for mode in ("qk", "v"):
        if mode == "v": a.lab(f"{a.name}_vloop")
        def mf(t):
            L = []
            for j in range(9):
                for i in range(2):
                    W = ar(BF(t % 2, j), 4); X = vr(AF(i, t), 4); C = vr(ACC(i, j), 4)
                    if mode == "qk": L.append(f"v_mfma_f32_16x16x32_bf16 {C}, {W}, {X}, {C}")
                    else:            L.append(f"v_mfma_f32_16x16x32_bf16 {C}, {X}, {W}, {C}")
            return L
        def dots(t):
            L = []
            for i in range(2):
                for r in range(4):
                    x = AF(i, t) + r
                    L.append(f"v_dot2c_f32_bf16 v{12+i}, v{x}, v16")
                    L.append(f"v_dot2c_f32_bf16 v{14+i}, v{x}, v{x}")
            return L
        def cwm(t):
            l = a.newlabel("cw")
            a(f"s_cmp_eq_u32 s26, {t % 4}")
            a(f"s_cbranch_scc0 {l}")
            for j in range(9):
                W = ar(BF(t % 2, j), 4); C = ar(CW(j), 4)
                if mode == "qk": a(f"v_mfma_f32_16x16x32_bf16 {C}, {W}, v[16:19], {C}")
                else:            a(f"v_mfma_f32_16x16x32_bf16 {C}, v[16:19], {W}, {C}")
            a.lab(l)
        for i in range(9):
            a("s_waitcnt lgkmcnt(0)")
            for x in interleave(mf(2*i), reads(2*i+1), dots(2*i)): a(x)
            cwm(2*i)
            a("s_waitcnt lgkmcnt(0)")
            if i < 8:
                n_out = (min(i+3, 8) - (i+1))*5
                a(f"s_waitcnt vmcnt({n_out})")
                a("s_barrier")
                if i + R <= 8: dma(i + R)
                for x in interleave(mf(2*i+1), reads(2*i+2), dots(2*i+1)): a(x)
            else:
                for x in interleave(mf(2*i+1), dots(2*i+1)): a(x)
            cwm(2*i+1)
        a("s_nop 7"); a("s_nop 7")
        a("s_barrier")
        a("s_mul_i32 s40, s26, 576")
        if mode == "qk":
            a("v_lshlrev_b32 v24, 4, v2")
            a("v_add_u32 v25, s40, v24")
            for j in range(9): a(f"ds_write_b128 v25, {ar(CW(j),4)} offset:{j*64}")
        else:
            a("v_lshlrev_b32 v24, 2, v3")
            a("v_add_u32 v25, s40, v24")
            for j in range(9): a(f"ds_write_b32 v25, a{CW(j)} offset:{j*64}")
        a("v_xor_b32 v26, 16, v1"); a("v_lshlrev_b32 v26, 2, v26")
        a("v_xor_b32 v27, 32, v1"); a("v_lshlrev_b32 v27, 2, v27")
        for addr in ("v26", "v27"):
            for r in range(4): a(f"ds_bpermute_b32 v{28+r}, {addr}, v{12+r}")
            a("s_waitcnt lgkmcnt(0)")
            for r in range(4): a(f"v_add_f32 v{12+r}, v{12+r}, v{28+r}")
        a(f"s_mov_b32 s41, {f32hex(1.0/576)}")
        a(f"s_mov_b32 s42, {f32hex(1e-5)}")
        for i in range(2):
            a(f"v_mul_f32 v{12+i}, s41, v{12+i}")
            a(f"v_mul_f32 v{14+i}, s41, v{14+i}")
            a(f"v_fma_f32 v{14+i}, -v{12+i}, v{12+i}, v{14+i}")
            a(f"v_max_f32 v{14+i}, 0, v{14+i}")
            a(f"v_add_f32 v{14+i}, s42, v{14+i}")
            a(f"v_rsq_f32 v{32+i}, v{14+i}")
        a("s_nop 0")
        if mode == "qk":
            a(f"s_mov_b32 s43, {f32hex(QSCALE)}")
            a("s_cmp_eq_u32 s39, 0")
            a("s_cselect_b32 s43, s43, 1.0")
            for i in range(2): a(f"v_mul_f32 v{32+i}, s43, v{32+i}")
        for i in range(2): a(f"v_mul_f32 v{34+i}, v{12+i}, v{32+i}")
        a("s_waitcnt lgkmcnt(0)")
        a("s_barrier")
        a("s_and_b32 s44, s25, 3")
        a("s_lshl_b32 s44, s44, 3")
        if mode == "qk":
            for j in range(9):
                for w in range(4):
                    a(f"ds_read_b128 {vr(80+w*4,4)}, v24 offset:{w*576 + j*64}")
                a("s_waitcnt lgkmcnt(0)")
                for r in range(4):
                    a(f"v_add_f32 v{80+r}, v{80+r}, v{84+r}")
                    a(f"v_add_f32 v{88+r}, v{88+r}, v{92+r}")
                    a(f"v_add_f32 v{40+4*j+r}, v{80+r}, v{88+r}")
            for i in range(2):
                a(f"v_add_u32 v96, s27, v3")
                if i: a("v_add_u32 v96, 16, v96")
                a(f"v_mul_u32_u24 v{100+i}, 48, v96")
                a("v_lshrrev_b32 v97, 9, v96")
                a(f"v_mul_u32_u24 v97, {CHUNK}, v97")
                a("v_and_b32 v98, 511, v96")
                a(f"v_lshl_add_u32 v{104+i}, v98, 3, v97")
                a(f"v_add_u32 v{104+i}, 16384, v{104+i}")
                a("v_lshrrev_b32 v99, 5, v98")
                a("v_lshl_add_u32 v97, v99, 10, v97")
                a("v_and_b32 v99, 31, v96")
                a(f"v_lshl_add_u32 v{102+i}, v99, 4, v97")
            lq = a.newlabel("isq"); le = a.newlabel("eend")
            a("s_cmp_eq_u32 s39, 0")
            a(f"s_cbranch_scc1 {lq}")
            for isq in (0, 1):
                if isq: a.lab(lq)
                a(f"s_mov_b32 s45, {98304 if isq else HB}")
                a("v_mov_b32 v119, 0x00003f80")
                for j in range(9):
                    for pr in range(2):
                        a(f"v_lshl_add_u32 v106, v2, 2, {16*j + 2*pr}" if (16*j+2*pr) <= 64 else f"v_lshlrev_b32 v106, 2, v2")
                        if (16*j+2*pr) > 64: a(f"v_add_u32 v106, {16*j+2*pr}, v106")
                        a("v_mul_u32_u24 v107, 3641, v106")
                        a("v_lshrrev_b32 v107, 16, v107")
                        a("v_mul_u32_u24 v108, 18, v107")
                        a("v_sub_u32 v108, v106, v108")
                        a("v_add_u32 v107, s44, v107")
                        a("v_mul_lo_u32 v107, v107, s45")
                        g16 = [g for g in range(4) if (16*j + 4*g + 2*pr) % 18 == 16]
                        if isq:
                            a("v_lshl_add_u32 v107, v108, 1, v107")
                        else:
                            a("v_lshrrev_b32 v109, 3, v108")
                            a("v_lshl_add_u32 v109, v109, 9, v107")
                            a("v_and_b32 v110, 7, v108")
                            a("v_lshl_add_u32 v109, v110, 1, v109")
                            if g16:
                                a(f"v_cmp_eq_u32 vcc, {g16[0]}, v2")
                        for i in range(2):
                            c = ACC(i, j) + 2*pr
                            for r in range(2):
                                a(f"v_mul_f32 v{112+r}, v{40+4*j+2*pr+r}, v{34+i}")
                                a(f"v_fma_f32 v{112+r}, v{c+r}, v{32+i}, -v{112+r}")
                            a("v_cvt_pk_bf16_f32 v118, v112, v113")
                            if isq:
                                a(f"v_add_u32 v114, v107, v{100+i}")
                                a("buffer_store_dword v118, v114, s[16:19], 0 offen")
                            else:
                                a(f"v_add_u32 v114, v109, v{102+i}")
                                if g16:
                                    a(f"v_add_u32 v115, v107, v{104+i}")
                                    a("v_cndmask_b32 v114, v114, v115, vcc")
                                a("buffer_store_dword v118, v114, s[20:23], 0 offen")
                                if g16:
                                    a("s_and_saveexec_b64 s[46:47], vcc")
                                    a("buffer_store_dword v119, v114, s[20:23], 0 offen offset:4")
                                    a("s_mov_b64 exec, s[46:47]")
                if not isq: a(f"s_branch {le}")
            a.lab(le)
            a(f"s_branch {a.name}_end")
        else:
            for j in range(9):
                for w in range(4):
                    a(f"ds_read_b32 v{80+w}, v24 offset:{w*576 + j*64}")
                a("s_waitcnt lgkmcnt(0)")
                a("v_add_f32 v80, v80, v81"); a("v_add_f32 v82, v82, v83")
                a(f"v_add_f32 v{40+j}, v80, v82")
            a("s_lshl_b32 s45, s26, 8")
            a("s_add_u32 s45, s45, 4096")
            a("v_lshl_add_u32 v96, v3, 2, s45")
            for i in range(2):
                a(f"ds_write_b32 v96, v{32+i} offset:{i*64}")
                a(f"ds_write_b32 v96, v{34+i} offset:{128 + i*64}")
            a("v_lshl_add_u32 v97, v2, 4, s45")
            a("s_waitcnt lgkmcnt(0)")
            for i in range(2):
                a(f"ds_read_b128 {vr(52+8*i,4)}, v97 offset:{i*64}")
                a(f"ds_read_b128 {vr(56+8*i,4)}, v97 offset:{128+i*64}")
            a("v_and_b32 v98, 1, v2")
            a("v_mul_u32_u24 v98, 304, v98")
            a("v_lshrrev_b32 v99, 1, v2")
            a("v_lshl_add_u32 v98, v99, 3, v98")
            for i in range(2):
                a(f"s_add_u32 s46, s27, {16*i}")
                a("s_lshr_b32 s47, s46, 9")
                a(f"s_mul_i32 s47, s47, {CHUNK}")
                a("s_and_b32 s46, s46, 511")
                a("s_lshr_b32 s46, s46, 4")
                a("s_mul_i32 s46, s46, 608")
                a("s_add_u32 s46, s46, s47")
                a(f"s_add_u32 s{48+i}, s46, 20480")
            a(f"s_mov_b32 s45, {HB}")
            a("v_mov_b32 v118, 0x3f803f80")
            a("v_mov_b32 v119, 0x3f803f80")
            a("s_waitcnt lgkmcnt(0)")
            for j in range(9):
                a(f"v_add_u32 v106, {16*j}, v3")
                a("v_mul_u32_u24 v107, 3641, v106")
                a("v_lshrrev_b32 v107, 16, v107")
                a("v_mul_u32_u24 v108, 18, v107")
                a("v_sub_u32 v108, v106, v108")
                a("v_add_u32 v107, s44, v107")
                a("v_mul_lo_u32 v107, v107, s45")
                a("v_lshl_add_u32 v107, v108, 4, v107")
                a("v_add_u32 v107, v107, v98")
                a("v_cmp_eq_u32 vcc, 17, v108")
                for i in range(2):
                    c = ACC(i, j)
                    for r in range(4):
                        a(f"v_mul_f32 v{112+r}, v{40+j}, v{56+8*i+r}")
                        a(f"v_fma_f32 v{112+r}, v{c+r}, v{52+8*i+r}, -v{112+r}")
                    a("v_cvt_pk_bf16_f32 v116, v112, v113")
                    a("v_cvt_pk_bf16_f32 v117, v114, v115")
                    a(f"buffer_store_dwordx2 v[116:117], v107, s[20:23], s{48+i} offen")
                    if any((16*j + l) % 18 == 17 for l in range(16)):
                        a("s_and_saveexec_b64 s[50:51], vcc")
                        a(f"buffer_store_dwordx2 v[118:119], v107, s[20:23], s{48+i} offen offset:16")
                        a("s_mov_b64 exec, s[50:51]")
    a.lab(f"{a.name}_end")
    a("s_endpgm")
    return a.text(), descriptor(a.name, 256, 108), f"; @launch kernel={a.name} grid=(192,1,1) block=(256,1,1) lds={R*STG}"

def k2():
    a = Asm("attn_kernel"); header(a)
    Q1, Q2 = 8, 12
    KF1 = lambda b: 16 + 8*b
    KF2 = lambda b: 20 + 8*b
    VF = lambda b, t: 32 + 8*b + 4*t
    SS = lambda b: 48 + 16*b
    PP = lambda b: 80 + 8*b
    E = 96; O = 112
    a("s_cmp_ge_u32 s2, 256")
    a(f"s_cbranch_scc1 {a.name}_end")
    a("s_load_dwordx2 s[28:29], s[0:1], 80")
    a("s_and_b32 s24, s2, 7")
    a("s_lshl_b32 s24, s24, 2")
    a("s_lshr_b32 s25, s2, 3")
    a("s_and_b32 s25, s25, 3")
    a("s_add_u32 s24, s24, s25")
    a("s_lshr_b32 s25, s2, 5")
    a("v_and_b32 v1, 63, v0")
    a("v_lshrrev_b32 v2, 5, v1")
    a("v_and_b32 v3, 31, v1")
    a("v_lshrrev_b32 v4, 6, v0")
    a("s_nop 1")
    a("v_readfirstlane_b32 s26, v4")
    a("s_waitcnt lgkmcnt(0)")
    srd_ws(a, 8, 28, WS_Q, SZ_Q)
    srd_ws(a, 12, 28, WS_KV, SZ_KV)
    srd_ws(a, 16, 28, WS_O, SZ_SD)
    if 'stamp' in FL:
        srd_ws(a, 20, 28, 0x3000000, 0x100000)
        a("s_memtime s[60:61]"); a("s_memrealtime s[62:63]")
    a("s_lshl_b32 s27, s25, 8")
    a("s_lshl_b32 s30, s26, 5")
    a("s_add_u32 s27, s27, s30")
    a("s_lshl_b32 s30, s24, 11")
    a("s_add_u32 s30, s30, s27")
    a("v_add_u32 v128, s30, v3")
    a("v_mul_u32_u24 v128, 48, v128")
    a("v_lshl_add_u32 v129, v2, 4, v128")
    a(f"buffer_load_dwordx4 {vr(Q1,4)}, v129, s[8:11], 0 offen")
    a(f"buffer_load_dword v{Q2}, v128, s[8:11], 0 offen offset:32")
    a(f"s_mul_i32 s30, s24, {HB}")
    a("s_lshl_b32 s31, s26, 10")
    a("s_add_u32 s30, s30, s31")
    a("v_lshl_add_u32 v4, v1, 4, s30")
    for n in range(20):
        a(f"s_add_u32 m0, s31, {n*8192}")
        a(f"s_mov_b32 s32, {n*8192}")
        a(f"buffer_load_dwordx4 v4, s[12:15], s32 offen lds")
    a("v_lshlrev_b32 v5, 4, v1")
    a("v_lshlrev_b32 v6, 3, v3")
    a("v_add_u32 v6, 16384, v6")
    a("v_min_u32 v7, 18, v3")
    a("v_lshlrev_b32 v7, 4, v7")
    a("v_mul_u32_u24 v130, 304, v2")
    a("v_add_u32 v7, v7, v130")
    a("v_add_u32 v7, 20480, v7")
    a("v_mov_b32 v131, v5"); a("v_mov_b32 v132, v6"); a("v_mov_b32 v133, v7")
    for r in list(range(KF2(0)+2, KF2(0)+4)) + list(range(KF2(1)+2, KF2(1)+4)) + list(range(32, 48)) + list(range(80, 96)) + list(range(O, O+16)) + [Q2+1, Q2+2, Q2+3]:
        a(f"v_mov_b32 v{r}, 0")
    a("v_cmp_gt_u32 s[34:35], 32, v1")
    a("s_waitcnt vmcnt(15)")
    a(f"v_cndmask_b32 v{Q2}, 0, v{Q2}, s[34:35]")
    a("s_barrier")
    if 'stamp' in FL: a("s_memtime s[64:65]")
    def kread(t, b):
        off = (t // 16)*CHUNK; tt = t % 16
        return [f"ds_read_b128 {vr(KF1(b),4)}, v5 offset:{off + tt*1024}",
                f"ds_read_b64 {vr(KF2(b),2)}, v6 offset:{off + tt*256}"]
    def vread(t, b):
        return [f"ds_read_b128 {vr(VF(b,0),4)}, v7 offset:{t*1216}",
                f"ds_read_b128 {vr(VF(b,1),4)}, v7 offset:{t*1216 + 608}"]
    def qk(b):
        return [f"v_mfma_f32_32x32x16_bf16 {vr(SS(b),16)}, {vr(KF1(b),4)}, {vr(Q1,4)}, 0",
                f"v_mfma_f32_32x32x16_bf16 {vr(SS(b),16)}, {vr(KF2(b),4)}, {vr(Q2,4)}, {vr(SS(b),16)}"]
    def pv(b):
        return [f"v_mfma_f32_32x32x16_bf16 {vr(O,16)}, {vr(VF(b,0),4)}, {vr(PP(b),4)}, {vr(O,16)}",
                f"v_mfma_f32_32x32x16_bf16 {vr(O,16)}, {vr(VF(b,1),4)}, {vr(PP(b)+4,4)}, {vr(O,16)}"]
    for x in kread(0, 0) + kread(1, 1): a(x)
    a("s_waitcnt lgkmcnt(0)")
    for x in qk(0): a(x)
    a("s_nop 7"); a("s_nop 7")
    a(f"v_max_f32 v134, v{SS(0)}, v{SS(0)+1}")
    for r in range(2, 16): a(f"v_max_f32 v134, v134, v{SS(0)+r}")
    a("v_mov_b32 v135, v134")
    a("s_nop 1")
    a("v_permlane32_swap_b32 v134, v135")
    a("s_nop 1")
    a("v_max_f32 v134, v134, v135")
    a("v_sub_f32 v134, 0, v134")
    a("v_cvt_pk_bf16_f32 v134, v134, 0")
    a("s_nop 0")
    a(f"v_cndmask_b32 v{Q2+1}, 0, v134, s[34:35]")
    a("s_nop 1")
    for x in qk(0): a(x)
    a("s_mov_b32 s33, 0")
    a("s_nop 7"); a("s_nop 3")
    a.lab(f"{a.name}_loop")
    for t in range(16):
        b = t % 2; nb = 1 - b
        if t == 14:
            l = a.newlabel("nb")
            a("s_cmp_eq_u32 s33, 0")
            a(f"s_cbranch_scc0 {l}")
            a("s_waitcnt vmcnt(0)")
            a("s_barrier")
            a.lab(l)
        a("s_waitcnt lgkmcnt(0)")
        e = [f"v_exp_f32 v{E+r}, v{SS(b)+r}" for r in range(16)]
        c = [f"v_cvt_pk_bf16_f32 v{PP(b)+r}, v{E+2*r}, v{E+2*r+1}" for r in range(8)]
        m1 = qk(nb); m2 = pv(nb)
        kr = kread(t+2, b); vrd = vread(t, b)
        seq = [m1[0], kr[0], kr[1]] + e[0:4] + [vrd[0], m1[1], vrd[1]] + e[4:8] + [c[0], c[1], m2[0]] + e[8:12] + [c[2], c[3], m2[1]] + e[12:16] + [c[4], c[5], c[6], c[7]]
        for x in seq: a(x)
    a(f"v_add_u32 v5, {CHUNK}, v5"); a(f"v_add_u32 v6, {CHUNK}, v6"); a(f"v_add_u32 v7, {CHUNK}, v7")
    a("s_add_u32 s33, s33, 1")
    a("s_cmp_lt_u32 s33, 4")
    a(f"s_cbranch_scc1 {a.name}_loop")
    a("s_waitcnt lgkmcnt(0)")
    for x in pv(1): a(x)
    if 'stamp' in FL:
        a("s_memtime s[66:67]"); a("s_memrealtime s[68:69]"); a("s_waitcnt lgkmcnt(0)")
        a("s_sub_u32 s64, s64, s60"); a("s_sub_u32 s66, s66, s60"); a("s_sub_u32 s68, s68, s62")
        a("v_mov_b32 v140, s64"); a("v_mov_b32 v141, s66"); a("v_mov_b32 v142, s68"); a("v_mov_b32 v143, s60")
        a("s_lshl_b32 s70, s2, 3"); a("s_add_u32 s70, s70, s26"); a("s_lshl_b32 s70, s70, 4")
        a("v_mov_b32 v139, s70")
        a("buffer_store_dwordx4 v[140:143], v139, s[20:23], 0 offen")
    a.lab(f"{a.name}_fin")
    a("s_nop 7"); a("s_nop 7")
    a(f"v_mov_b32 v134, v{O+10}")
    a(f"v_mov_b32 v135, v{O+10}")
    a("s_nop 1")
    a("v_permlane32_swap_b32 v134, v135")
    a(f"s_mov_b32 s36, {f32hex(2.0**40)}")
    a("s_nop 0")
    a("v_cmp_nlt_f32 vcc, v134, s36") if False else a("v_cmp_ngt_f32 vcc, s36, v134")
    a("s_cmp_eq_u32 s33, 99")
    a(f"s_cbranch_scc1 {a.name}_store")
    a(f"s_cbranch_vccnz {a.name}_slow")
    a.lab(f"{a.name}_store")
    a("v_rcp_f32 v134, v134")
    a("s_nop 0")
    for r in range(10): a(f"v_mul_f32 v{O+r}, v{O+r}, v134")
    for r in range(5): a(f"v_cvt_pk_bf16_f32 v{E+r}, v{O+2*r}, v{O+2*r+1}")
    a("v_add_u32 v128, s27, v3")
    a("v_mul_u32_u24 v128, 1152, v128")
    a("v_lshl_add_u32 v128, v2, 3, v128")
    a("s_mul_i32 s30, s24, 36")
    a(f"buffer_store_dwordx2 {vr(E,2)}, v128, s[16:19], s30 offen")
    a(f"buffer_store_dwordx2 {vr(E+2,2)}, v128, s[16:19], s30 offen offset:16")
    a("s_and_saveexec_b64 s[38:39], s[34:35]")
    a(f"buffer_store_dword v{E+4}, v128, s[16:19], s30 offen offset:32")
    a("s_endpgm")
    a.lab(f"{a.name}_slow")
    a("v_mov_b32 v5, v131"); a("v_mov_b32 v6, v132"); a("v_mov_b32 v7, v133")
    a(f"v_mov_b32 v{Q2+1}, 0")
    for r in range(16): a(f"v_mov_b32 v{O+r}, 0")
    a("v_mov_b32 v136, 0xff800000")
    a("s_mov_b32 s33, 0")
    a.lab(f"{a.name}_sl1")
    a("s_mov_b32 s37, 0")
    a.lab(f"{a.name}_sl2")
    for x in kread(0, 0) + vread(0, 0): a(x)
    a("s_waitcnt lgkmcnt(0)")
    for x in qk(0): a(x)
    a("s_nop 7"); a("s_nop 7")
    a(f"v_max_f32 v134, v{SS(0)}, v{SS(0)+1}")
    for r in range(2, 16): a(f"v_max_f32 v134, v134, v{SS(0)+r}")
    a("v_mov_b32 v135, v134")
    a("s_nop 1")
    a("v_permlane32_swap_b32 v134, v135")
    a("s_nop 1")
    a("v_max_f32 v134, v134, v135")
    a("v_max_f32 v134, v134, v136")
    a("v_sub_f32 v135, v136, v134")
    a("v_exp_f32 v135, v135")
    a("v_mov_b32 v136, v134")
    for r in range(16): a(f"v_sub_f32 v{E+r}, v{SS(0)+r}, v134")
    for r in range(16): a(f"v_exp_f32 v{E+r}, v{E+r}")
    for r in range(16): a(f"v_mul_f32 v{O+r}, v{O+r}, v135")
    for r in range(8): a(f"v_cvt_pk_bf16_f32 v{PP(0)+r}, v{E+2*r}, v{E+2*r+1}")
    a("s_nop 1")
    for x in pv(0): a(x)
    a("s_nop 7"); a("s_nop 7")
    a("v_add_u32 v5, 1024, v5"); a("v_add_u32 v6, 256, v6"); a("v_add_u32 v7, 1216, v7")
    a("s_add_u32 s37, s37, 1")
    a("s_cmp_lt_u32 s37, 16")
    a(f"s_cbranch_scc1 {a.name}_sl2")
    a(f"v_add_u32 v5, {CHUNK-16*1024}, v5"); a(f"v_add_u32 v6, {CHUNK-16*256}, v6"); a(f"v_add_u32 v7, {CHUNK-16*1216}, v7")
    a("s_add_u32 s33, s33, 1")
    a("s_cmp_lt_u32 s33, 4")
    a(f"s_cbranch_scc1 {a.name}_sl1")
    a("s_mov_b32 s33, 99")
    a(f"s_branch {a.name}_fin")
    a.lab(f"{a.name}_end")
    a("s_endpgm")
    return a.text(), descriptor(a.name, 144, 0), f"; @launch kernel={a.name} grid=(256,1,1) block=(512,1,1) lds=163840"

def swap23(a, p, t1, t2):
    a(f"v_and_b32 v{t1}, 0x33, v{p}")
    a(f"v_and_b32 v{t2}, 4, v{p}")
    a(f"v_lshlrev_b32 v{t2}, 1, v{t2}")
    a(f"v_or_b32 v{t1}, v{t1}, v{t2}")
    a(f"v_and_b32 v{t2}, 8, v{p}")
    a(f"v_lshrrev_b32 v{t2}, 1, v{t2}")
    a(f"v_or_b32 v{t1}, v{t1}, v{t2}")

def k3():
    a = Asm("oproj_kernel"); header(a)
    R = 3; STG = 9216; ABYTES = 36864
    ACC = lambda i, j: 64 + (i*9 + j)*4
    XR = lambda i, j: 136 + (i*9 + j)*2
    AFR = lambda buf, i: 40 + (buf*2 + i)*4
    BF = lambda buf, j: (buf*9 + j)*4
    a("s_cmp_ge_u32 s2, 64")
    a(f"s_cbranch_scc1 {a.name}_end")
    a("s_load_dwordx2 s[4:5], s[0:1], 0")
    a("s_load_dwordx2 s[6:7], s[0:1], 16")
    a("s_load_dwordx2 s[28:29], s[0:1], 80")
    a("v_and_b32 v1, 63, v0")
    a("v_lshrrev_b32 v2, 4, v1")
    a("v_and_b32 v3, 15, v1")
    a("v_lshrrev_b32 v4, 6, v0")
    a("s_nop 1")
    a("v_readfirstlane_b32 s26, v4")
    a("s_lshl_b32 s27, s2, 5")
    a("s_waitcnt lgkmcnt(0)")
    srd_from_arg(a, 8, 0, S*D*2, 4)
    srd_from_arg(a, 12, 16, D*D*2, 6)
    srd_ws(a, 16, 28, WS_O, SZ_SD)
    srd_ws(a, 20, 28, WS_H, SZ_SD)
    srd_ws(a, 44, 28, WS_G, SZ_SD)
    a("s_mul_i32 s30, s26, 576")
    a("s_mul_i32 s31, s27, 1152")
    a("s_mul_i32 s36, s26, 9216")
    for m in range(9):
        a(f"v_add_u32 v200, s30, v1")
        if m: a(f"v_add_u32 v200, {m*64}, v200")
        a("v_mul_u32_u24 v201, 58255, v200")
        a("v_lshrrev_b32 v201, 22, v201")
        a("v_mul_u32_u24 v202, 72, v201")
        a("v_sub_u32 v202, v200, v202")
        a("v_bfe_u32 v203, v201, 1, 3")
        a("v_xor_b32 v202, v202, v203")
        a("v_mul_u32_u24 v201, 1152, v201")
        a("v_lshl_add_u32 v201, v202, 4, v201")
        a(f"s_add_u32 m0, s36, {m*1024}")
        a("s_nop 0")
        a("buffer_load_dwordx4 v201, s[16:19], s31 offen lds")
    a("s_mul_i32 s35, s26, 288")
    for n in range(9):
        a(f"v_add_u32 v200, {n*64}, v1")
        a("v_mul_u32_u24 v201, 3641, v200")
        a("v_lshrrev_b32 v201, 16, v201")
        a("v_mul_u32_u24 v202, 18, v201")
        a("v_sub_u32 v202, v200, v202")
        swap23(a, 201, 203, 204)
        a("v_mul_u32_u24 v203, 1152, v203")
        a("v_lshl_add_u32 v203, v202, 4, v203")
        a(f"v_add_u32 v{5+n}, s35, v203")
    a(f"s_mul_i32 s37, s26, {R*STG}")
    a(f"s_add_u32 s37, s37, {ABYTES}")
    def dma(t):
        a(f"s_mov_b32 s38, {t*32*1152}")
        for n in range(9):
            a(f"s_add_u32 m0, s37, {(t % R)*STG + n*1024}")
            a("s_nop 0")
            a(f"buffer_load_dwordx4 v{5+n}, s[12:15], s38 offen lds")
    for t in range(R): dma(t)
    a("v_add_u32 v14, s27, v3")
    a("v_mul_u32_u24 v14, 1152, v14")
    a("v_lshl_add_u32 v14, v2, 3, v14")
    a("v_add_u32 v14, s35, v14")
    a("s_mov_b32 s39, 18432")
    a("v_lshrrev_b32 v200, 1, v2")
    a("v_and_b32 v201, 1, v2")
    a("v_lshlrev_b32 v200, 4, v200")
    a("v_lshl_add_u32 v200, v201, 2, v200")
    a("v_lshrrev_b32 v201, 2, v3")
    a("v_add_u32 v200, v200, v201")
    a("v_mul_u32_u24 v200, 288, v200")
    a("v_and_b32 v201, 3, v3")
    a("v_lshl_add_u32 v15, v201, 3, v200")
    a("v_add_u32 v15, s37, v15")
    a("v_lshrrev_b32 v200, 1, v3")
    a("v_xor_b32 v201, v2, v200")
    a("v_mul_u32_u24 v202, 1152, v3")
    a("v_lshl_add_u32 v16, v201, 4, v202")
    a("v_xor_b32 v201, 4, v201")
    a("v_lshl_add_u32 v17, v201, 4, v202")
    for r in range(64, 136): a(f"v_mov_b32 v{r}, 0")
    def reads(t):
        L = []
        for i in range(2):
            L.append(f"ds_read_b128 {vr(AFR(t%2,i),4)}, v{16 + (t&1)} offset:{i*18432 + (t>>1)*128}")
        for j in range(9):
            for hh in range(2):
                L.append(f"ds_read_b64_tr_b16 {ar(BF(t%2,j)+2*hh,2)}, v15 offset:{(t%R)*STG + hh*8*288 + 32*j}")
        return L
    def mf(t):
        L = []
        for j in range(9):
            for i in range(2):
                C = vr(ACC(i,j),4)
                L.append(f"v_mfma_f32_16x16x32_bf16 {C}, {ar(BF(t%2,j),4)}, {vr(AFR(t%2,i),4)}, {C}")
        return L
    a("s_waitcnt vmcnt(18)")
    a("s_barrier")
    for x in reads(0): a(x)
    for t in range(18):
        a("s_waitcnt lgkmcnt(0)")
        if t + R < 18: dma(t + R)
        if t == 14:
            for i in range(2):
                for j in range(9):
                    a(f"buffer_load_dwordx2 {vr(XR(i,j),2)}, v14, s[8:11], {'s39' if i else '0'} offen offset:{32*j}")
        if t < 17:
            nb = (min(t + R, 17) - (t + 1))*9 + (18 if t >= 14 else 0)
            a(f"s_waitcnt vmcnt({nb})")
            for x in interleave(mf(t), reads(t+1)): a(x)
        else:
            for x in mf(t): a(x)
    a("s_waitcnt vmcnt(0)")
    a("s_nop 7")
    a("v_mov_b32 v18, 0"); a("v_mov_b32 v19, 0")
    for i in range(2):
        for j in range(9):
            c = ACC(i,j); x = XR(i,j)
            a(f"v_lshlrev_b32 v200, 16, v{x}")
            a(f"v_and_b32 v201, 0xffff0000, v{x}")
            a(f"v_lshlrev_b32 v202, 16, v{x+1}")
            a(f"v_and_b32 v203, 0xffff0000, v{x+1}")
            for r in range(4): a(f"v_add_f32 v{200+r}, v{200+r}, v{c+r}")
            a(f"v_cvt_pk_bf16_f32 v{x}, v200, v201")
            a(f"v_cvt_pk_bf16_f32 v{x+1}, v202, v203")
            a(f"v_lshlrev_b32 v{c}, 16, v{x}")
            a(f"v_and_b32 v{c+1}, 0xffff0000, v{x}")
            a(f"v_lshlrev_b32 v{c+2}, 16, v{x+1}")
            a(f"v_and_b32 v{c+3}, 0xffff0000, v{x+1}")
            a(f"buffer_store_dwordx2 {vr(x,2)}, v14, s[20:23], {'s39' if i else '0'} offen offset:{32*j}")
            a(f"v_add_f32 v200, v{c}, v{c+1}")
            a(f"v_add_f32 v201, v{c+2}, v{c+3}")
            a(f"v_add_f32 v{18+i}, v{18+i}, v200")
            a(f"v_add_f32 v{18+i}, v{18+i}, v201")

    a("v_xor_b32 v26, 16, v1"); a("v_lshlrev_b32 v26, 2, v26")
    a("v_xor_b32 v27, 32, v1"); a("v_lshlrev_b32 v27, 2, v27")
    STAT = ABYTES + 4*R*STG
    a("s_lshl_b32 s40, s26, 7")
    a(f"s_add_u32 s40, s40, {STAT}")
    a("v_lshl_add_u32 v28, v3, 2, s40")
    a(f"v_lshlrev_b32 v29, 2, v3")
    a(f"v_add_u32 v29, {STAT}, v29")
    def allreduce(phase):
        for addr in ("v26", "v27"):
            for r in range(2): a(f"ds_bpermute_b32 v{20+r}, {addr}, v{18+r}")
            a("s_waitcnt lgkmcnt(0)")
            for r in range(2): a(f"v_add_f32 v{18+r}, v{18+r}, v{20+r}")
        for i in range(2): a(f"ds_write_b32 v28, v{18+i} offset:{phase*512 + i*64}")
        a("s_waitcnt lgkmcnt(0)")
        a("s_barrier")
        for i in range(2):
            for w in range(4): a(f"ds_read_b32 v{200+i*4+w}, v29 offset:{phase*512 + w*128 + i*64}")
        a("s_waitcnt lgkmcnt(0)")
        for i in range(2):
            a(f"v_add_f32 v{200+i*4}, v{200+i*4}, v{201+i*4}")
            a(f"v_add_f32 v{202+i*4}, v{202+i*4}, v{203+i*4}")
            a(f"v_add_f32 v{18+i}, v{200+i*4}, v{202+i*4}")
    allreduce(0)
    a(f"s_mov_b32 s41, {f32hex(1.0/576)}")
    a(f"s_mov_b32 s42, {f32hex(1e-5)}")
    for i in range(2):
        a(f"v_mul_f32 v{22+i}, s41, v{18+i}")
        a(f"v_mov_b32 v{18+i}, 0")
    for i in range(2):
        for j in range(9):
            c = ACC(i,j)
            for r in range(4):
                a(f"v_sub_f32 v{c+r}, v{c+r}, v{22+i}")
                a(f"v_fmac_f32 v{18+i}, v{c+r}, v{c+r}")
    allreduce(1)
    for i in range(2):
        a(f"v_mul_f32 v{18+i}, s41, v{18+i}")
        a(f"v_add_f32 v{20+i}, s42, v{18+i}")
        a(f"v_rcp_f32 v{22+i}, v{20+i}")
        a(f"v_rsq_f32 v{24+i}, v{20+i}")
        a("s_nop 0")
        a(f"v_mul_f32 v{22+i}, v{22+i}, v{18+i}")
        a(f"v_add_f32 v{22+i}, s42, v{22+i}")
        a(f"v_rsq_f32 v{22+i}, v{22+i}")
        a("s_nop 0")
        a(f"v_mul_f32 v{22+i}, v{22+i}, v{24+i}")
    for i in range(2):
        for j in range(9):
            c = ACC(i,j)
            for r in range(4): a(f"v_mul_f32 v{c+r}, v{c+r}, v{22+i}")
            a(f"v_cvt_pk_bf16_f32 v{c}, v{c}, v{c+1}")
            a(f"v_cvt_pk_bf16_f32 v{c+1}, v{c+2}, v{c+3}")
            a(f"buffer_store_dwordx2 {vr(c,2)}, v14, s[44:47], {'s39' if i else '0'} offen offset:{32*j}")
    a.lab(f"{a.name}_end")
    a("s_endpgm")
    return a.text(), descriptor(a.name, 208, 72), f"; @launch kernel={a.name} grid=(64,1,1) block=(256,1,1) lds={ABYTES + 4*R*STG + 1024}"

def k4():
    a = Asm("mlp1_kernel"); header(a)
    R = 5; STG = 28672; NST = 32
    ACC = lambda b: 64 + 16*b
    WF = lambda buf: 24 + buf*4
    GF = lambda buf, b: 32 + (buf*3 + b)*4
    a("s_cmp_ge_u32 s2, 216")
    a(f"s_cbranch_scc1 {a.name}_end")
    a("s_load_dwordx2 s[4:5], s[0:1], 32")
    a("s_load_dwordx2 s[6:7], s[0:1], 40")
    a("s_load_dwordx2 s[28:29], s[0:1], 80")
    a("s_and_b32 s24, s2, 7")
    a("s_mul_i32 s24, s24, 27")
    a("s_lshr_b32 s25, s2, 3")
    a("s_add_u32 s24, s24, s25")
    a("s_mul_i32 s25, s24, 10923")
    a("s_lshr_b32 s25, s25, 16")
    a("s_mul_i32 s30, s25, 6")
    a("s_sub_u32 s24, s24, s30")
    a("v_and_b32 v1, 63, v0")
    a("v_lshrrev_b32 v2, 4, v1")
    a("v_and_b32 v3, 15, v1")
    a("v_lshrrev_b32 v4, 6, v0")
    a("s_nop 1")
    a("v_readfirstlane_b32 s26, v4")
    a("s_waitcnt lgkmcnt(0)")
    srd_from_arg(a, 8, 32, S*F*2, 4)
    srd_from_arg(a, 12, 40, F*2, 6)
    srd_ws(a, 16, 28, WS_G, SZ_SD)
    srd_ws(a, 20, 28, WS_U, SZ_U)
    a("s_lshl_b32 s30, s26, 4")
    a("v_add_u32 v200, s30, v2")
    a("v_mul_u32_u24 v200, 9216, v200")
    a("v_lshlrev_b32 v201, 2, v2")
    a("v_xor_b32 v201, v201, v3")
    a("v_lshl_add_u32 v200, v201, 4, v200")
    a("s_lshl_b32 s30, s25, 8")
    a("v_add_u32 v5, s30, v200")
    a("s_mul_i32 s30, s26, 192")
    a("s_mul_i32 s31, s24, 192")
    for m in range(3):
        a("v_add_u32 v200, s30, v1")
        if m: a(f"v_add_u32 v200, {64*m}, v200")
        a("v_mul_u32_u24 v201, 43691, v200")
        a("v_lshrrev_b32 v201, 19, v201")
        a("v_mul_u32_u24 v202, 12, v201")
        a("v_sub_u32 v202, v200, v202")
        a("v_mul_u32_u24 v201, 1152, v201")
        a("v_lshl_add_u32 v201, v202, 4, v201")
        a(f"v_add_u32 v{6+m}, s31, v201")
    a("s_lshl_b32 s32, s26, 12")
    a("s_mul_i32 s33, s26, 3072")
    a("s_add_u32 s33, s33, 16384")
    a("s_mov_b32 s34, 0")
    a("s_mov_b32 s35, 0")
    a("s_mov_b32 s36, 0")
    def dma():
        a("s_add_u32 s37, s34, s32")
        for m in range(4):
            a(f"s_add_u32 m0, s37, {m*1024}")
            a(f"s_add_u32 s38, s35, {m*36864}")
            a("buffer_load_dwordx4 v5, s[8:11], s38 offen lds")
        a("s_add_u32 s37, s34, s33")
        for m in range(3):
            a(f"s_add_u32 m0, s37, {m*1024}")
            a("s_nop 0")
            a(f"buffer_load_dwordx4 v{6+m}, s[16:19], s36 offen lds")
        a(f"s_add_u32 s35, s35, {64*9216}")
        a(f"s_add_u32 s36, s36, {64*1152}")
        a(f"s_add_u32 s34, s34, {STG}")
        a(f"s_cmp_eq_u32 s34, {R*STG}")
        a("s_cselect_b32 s34, 0, s34")
    for st in range(R): dma()
    a("v_lshrrev_b32 v200, 2, v3")
    a("v_and_b32 v201, 3, v3")
    a("v_lshrrev_b32 v202, 1, v2")
    a("v_and_b32 v203, 1, v2")
    a("v_lshl_add_u32 v204, v202, 3, v200")
    a("v_lshrrev_b32 v205, 1, v201")
    a("v_lshl_add_u32 v205, v203, 1, v205")
    a("s_lshl_b32 s30, s26, 2")
    a("v_add_u32 v205, s30, v205")
    a("v_lshlrev_b32 v206, 2, v200")
    a("v_xor_b32 v205, v205, v206")
    a("v_lshlrev_b32 v205, 4, v205")
    a("v_lshl_add_u32 v205, v204, 8, v205")
    a("v_and_b32 v206, 1, v201")
    a("v_lshl_add_u32 v10, v206, 3, v205")
    a("v_mul_u32_u24 v205, 192, v204")
    a("v_lshl_add_u32 v205, v203, 5, v205")
    a("v_lshl_add_u32 v205, v201, 3, v205")
    a("v_add_u32 v11, 16384, v205")
    a("v_mov_b32 v12, v10"); a("v_mov_b32 v13, v11")
    a("s_mov_b32 s39, 0")
    for r in range(64, 112): a(f"v_mov_b32 v{r}, 0")
    def reads(ks, buf, wb="v12", gb="v13"):
        L = []
        for hh in range(2):
            L.append(f"ds_read_b64_tr_b16 {vr(WF(buf)+2*hh,2)}, {wb} offset:{ks*4096 + hh*1024}")
        for b in range(3):
            for hh in range(2):
                L.append(f"ds_read_b64_tr_b16 {vr(GF(buf,b)+2*hh,2)}, {gb} offset:{ks*3072 + hh*768 + 64*b}")
        return L
    def mf(buf):
        return [f"v_mfma_f32_32x32x16_bf16 {vr(ACC(b),16)}, {vr(WF(buf),4)}, {vr(GF(buf,b),4)}, {vr(ACC(b),16)}" for b in range(3)]
    a(f"s_waitcnt vmcnt({(R-1)*7})")
    a("s_barrier")
    for x in reads(0, 0): a(x)
    a("s_mov_b32 s40, 0")
    a.lab(f"{a.name}_loop")
    for ks in range(3):
        a("s_waitcnt lgkmcnt(0)")
        for x in interleave(mf(ks % 2), reads(ks+1, (ks+1) % 2)): a(x)
    a(f"s_add_u32 s39, s39, {STG}")
    a(f"s_cmp_eq_u32 s39, {R*STG}")
    a("s_cselect_b32 s39, 0, s39")
    a("v_add_u32 v12, s39, v10"); a("v_add_u32 v13, s39, v11")
    a("s_waitcnt lgkmcnt(0)")
    a(f"s_waitcnt vmcnt({(R-2)*7})")
    a("s_barrier")
    dma()
    for x in interleave(mf(1), reads(0, 0)): a(x)
    a("s_add_u32 s40, s40, 1")
    a(f"s_cmp_lt_u32 s40, {NST}")
    a(f"s_cbranch_scc1 {a.name}_loop")
    a("v_lshrrev_b32 v4, 5, v1")
    a("s_lshl_b32 s30, s25, 8")
    a("s_lshl_b32 s31, s26, 6")
    a("s_add_u32 s30, s30, s31")
    a("v_lshl_add_u32 v200, v4, 3, s30")
    a("s_waitcnt lgkmcnt(0)")
    for qd in range(4): a(f"buffer_load_dwordx2 {vr(24+2*qd,2)}, v200, s[12:15], 0 offen offset:{16*qd}")
    a("v_and_b32 v201, 31, v1")
    a("s_mul_i32 s31, s24, 96")
    a("v_add_u32 v201, s31, v201")
    a("v_mul_u32_u24 v201, 9216, v201")
    a("v_add_u32 v14, v201, v200")
    a("s_waitcnt vmcnt(0) lgkmcnt(0)")
    for qd in range(4):
        for p in range(2):
            a(f"v_lshlrev_b32 v{32+4*qd+2*p}, 16, v{24+2*qd+p}")
            a(f"v_and_b32 v{33+4*qd+2*p}, 0xffff0000, v{24+2*qd+p}")
    c0 = -2.0*math.sqrt(2.0/math.pi)*LOG2E
    a(f"s_mov_b32 s41, {f32hex(c0*0.044715)}")
    a(f"v_mov_b32 v15, {f32hex(c0)}")
    a(f"s_mov_b32 s42, {32*9216}")
    a(f"s_mov_b32 s43, {64*9216}")
    for b in range(3):
        for qd in range(4):
            c = ACC(b) + 4*qd
            for r in range(4): a(f"v_add_f32 v{c+r}, v{c+r}, v{32+4*qd+r}")
            for r in range(4): a(f"v_mul_f32 v{200+r}, v{c+r}, v{c+r}")
            for r in range(4): a(f"v_fma_f32 v{200+r}, v{200+r}, s41, v15")
            for r in range(4): a(f"v_mul_f32 v{200+r}, v{200+r}, v{c+r}")
            for r in range(4): a(f"v_exp_f32 v{200+r}, v{200+r}")
            for r in range(4): a(f"v_add_f32 v{200+r}, 1.0, v{200+r}")
            for r in range(4): a(f"v_rcp_f32 v{200+r}, v{200+r}")
            for r in range(4): a(f"v_mul_f32 v{c+r}, v{c+r}, v{200+r}")
            a(f"v_cvt_pk_bf16_f32 v{c}, v{c}, v{c+1}")
            a(f"v_cvt_pk_bf16_f32 v{c+1}, v{c+2}, v{c+3}")
            so = ["0", "s42", "s43"][b]
            a(f"buffer_store_dwordx2 {vr(c,2)}, v14, s[20:23], {so} offen offset:{16*qd}")
    a.lab(f"{a.name}_end")
    a("s_endpgm")
    return a.text(), descriptor(a.name, 208, 0), f"; @launch kernel={a.name} grid=(216,1,1) block=(256,1,1) lds={R*STG}"

def k5():
    a = Asm("mlp2_kernel"); header(a)
    R = 4; STG = 34816; NST = 18; UB = 18432
    ACC = lambda j, t: 112 + (j*2 + t)*4
    UF = lambda buf, j: 24 + (buf*9 + j)*4
    WF = lambda buf, t: 96 + (buf*2 + t)*4
    a("s_cmp_ge_u32 s2, 256")
    a(f"s_cbranch_scc1 {a.name}_end")
    a("s_load_dwordx2 s[4:5], s[0:1], 48")
    a("s_load_dwordx2 s[28:29], s[0:1], 80")
    a("s_and_b32 s24, s2, 7")
    a("s_lshl_b32 s24, s24, 5")
    a("s_lshr_b32 s25, s2, 3")
    a("s_add_u32 s27, s24, s25")
    a("s_and_b32 s24, s27, 3")
    a("s_lshr_b32 s25, s27, 2")
    a("s_and_b32 s25, s25, 15")
    a("s_lshr_b32 s27, s27, 6")
    a("v_and_b32 v1, 63, v0")
    a("v_lshrrev_b32 v2, 4, v1")
    a("v_and_b32 v3, 15, v1")
    a("v_lshrrev_b32 v4, 6, v0")
    a("s_nop 1")
    a("v_readfirstlane_b32 s26, v4")
    a("s_waitcnt lgkmcnt(0)")
    srd_from_arg(a, 8, 48, F*S*2, 4)
    srd_ws(a, 16, 28, WS_U, SZ_U)
    srd_ws(a, 20, 28, WS_P, SZ_P)
    a("v_lshrrev_b32 v200, 3, v1")
    a("s_lshl_b32 s30, s26, 3")
    a("s_mul_i32 s31, s24, 144")
    a("s_add_u32 s30, s30, s31")
    a("v_add_u32 v200, s30, v200")
    a("v_mul_u32_u24 v200, 9216, v200")
    a("s_lshl_b32 s30, s26, 2")
    a("v_add_u32 v201, s30, v2")
    a("v_and_b32 v201, 7, v201")
    a("v_and_b32 v202, 7, v1")
    a("v_xor_b32 v201, v201, v202")
    a("v_lshl_add_u32 v5, v201, 4, v200")
    a("s_and_b32 s30, s26, 1")
    a("s_add_u32 s45, s30, 16")
    a("s_sub_u32 s30, s45, s26")
    a(f"s_mul_i32 s44, s30, {8*9216}")
    a("s_lshl_b32 s45, s45, 10")
    a("s_lshl_b32 s46, s26, 10")
    a("s_lshl_b32 s30, s26, 4")
    a("v_add_u32 v200, s30, v2")
    a("v_lshlrev_b32 v200, 12, v200")
    a("s_lshl_b32 s30, s25, 8")
    a("v_add_u32 v200, s30, v200")
    a("v_lshlrev_b32 v201, 1, v2")
    a("v_xor_b32 v201, v201, v3")
    a("v_lshl_add_u32 v6, v201, 4, v200")
    a("v_xor_b32 v201, 8, v201")
    a("v_lshl_add_u32 v7, v201, 4, v200")
    a("s_lshl_b32 s32, s26, 12")
    a(f"s_add_u32 s32, s32, {UB}")
    a("s_mov_b32 s34, 0")
    a(f"s_mul_i32 s35, s27, {1152*2}")
    a(f"s_mul_i32 s36, s27, {1152*4096}")
    def dma(last=False):
        a("s_add_u32 s37, s34, s46")
        for m in range(4):
            a(f"s_add_u32 m0, s37, {m*4096}")
            a(f"s_add_u32 s38, s35, {m*32*9216}")
            a("buffer_load_dwordx4 v5, s[16:19], s38 offen lds")
        a("s_add_u32 m0, s34, s45")
        a("s_add_u32 s38, s35, s44")
        a("buffer_load_dwordx4 v5, s[16:19], s38 offen lds")
        a("s_add_u32 s37, s34, s32")
        for m in range(4):
            a(f"s_add_u32 m0, s37, {m*1024}")
            a(f"s_add_u32 s38, s36, {m*4*4096}")
            a(f"buffer_load_dwordx4 v{6 + (m>>1)}, s[8:11], s38 offen lds")
        a("s_add_u32 s35, s35, 128")
        a(f"s_add_u32 s36, s36, {64*4096}")
        a(f"s_add_u32 s34, s34, {STG}")
        a(f"s_cmp_eq_u32 s34, {R*STG}")
        a("s_cselect_b32 s34, 0, s34")
    for st in range(R): dma()
    a("v_lshrrev_b32 v200, 1, v3")
    a("v_xor_b32 v201, v2, v200")
    a("v_lshlrev_b32 v202, 7, v3")
    a("v_lshl_add_u32 v8, v201, 4, v202")
    a("v_xor_b32 v201, 4, v201")
    a("v_lshl_add_u32 v9, v201, 4, v202")
    a("v_lshrrev_b32 v200, 2, v3")
    a("v_and_b32 v201, 3, v3")
    a("v_lshl_add_u32 v202, v2, 3, v200")
    a("v_and_b32 v203, 1, v2")
    a("v_lshl_add_u32 v203, v203, 2, v200")
    a("v_lshlrev_b32 v203, 1, v203")
    a("v_lshrrev_b32 v204, 1, v201")
    a("s_lshl_b32 s30, s26, 2")
    a("v_add_u32 v204, s30, v204")
    a("v_xor_b32 v205, v204, v203")
    a("v_lshlrev_b32 v205, 4, v205")
    a("v_lshl_add_u32 v205, v202, 8, v205")
    a("v_and_b32 v206, 1, v201")
    a("v_lshl_add_u32 v205, v206, 3, v205")
    a(f"v_add_u32 v10, {UB}, v205")
    a("v_xor_b32 v11, 32, v10")
    for r in range(8, 12): a(f"v_mov_b32 v{r+4}, v{r}")
    a("s_mov_b32 s39, 0")
    for r in range(112, 184): a(f"v_mov_b32 v{r}, 0")
    def reads(ks):
        buf = ks % 2
        L = []
        for t in range(2):
            for hh in range(2):
                L.append(f"ds_read_b64_tr_b16 {vr(WF(buf,t)+2*hh,2)}, v{14+t} offset:{ks*8192 + hh*1024}")
        for j in range(9):
            L.append(f"ds_read_b128 {vr(UF(buf,j),4)}, v{12+ks} offset:{j*2048}")
        return L
    def mf(buf):
        L = []
        for j in range(9):
            for t in range(2):
                C = vr(ACC(j,t),4)
                L.append(f"v_mfma_f32_16x16x32_bf16 {C}, {vr(UF(buf,j),4)}, {vr(WF(buf,t),4)}, {C}")
        return L
    a(f"s_waitcnt vmcnt({(R-1)*9})")
    a("s_barrier")
    for x in reads(0): a(x)
    a("s_mov_b32 s40, 0")
    a.lab(f"{a.name}_loop")
    a("s_waitcnt lgkmcnt(0)")
    for x in interleave(mf(0), reads(1)): a(x)
    a(f"s_add_u32 s39, s39, {STG}")
    a(f"s_cmp_eq_u32 s39, {R*STG}")
    a("s_cselect_b32 s39, 0, s39")
    for r in range(8, 12): a(f"v_add_u32 v{r+4}, s39, v{r}")
    a("s_waitcnt lgkmcnt(0)")
    a(f"s_waitcnt vmcnt({(R-2)*9})")
    a("s_barrier")
    ls = a.newlabel("nod"); le = a.newlabel("dd")
    a(f"s_cmp_lt_u32 s40, {NST-R}")
    a(f"s_cbranch_scc0 {ls}")
    dma()
    a(f"s_branch {le}")
    a.lab(ls)
    a("s_waitcnt vmcnt(0)")
    a("s_barrier")
    a.lab(le)
    for x in interleave(mf(1), reads(0)): a(x)
    a("s_add_u32 s40, s40, 1")
    a(f"s_cmp_lt_u32 s40, {NST}")
    a(f"s_cbranch_scc1 {a.name}_loop")
    a("s_lshl_b32 s30, s27, 11")
    a("s_lshl_b32 s31, s25, 7")
    a("s_add_u32 s30, s30, s31")
    a("s_lshl_b32 s31, s26, 5")
    a("s_add_u32 s30, s30, s31")
    a("v_add_u32 v200, s30, v3")
    a("s_mov_b32 s31, 2304")
    a("v_mul_lo_u32 v200, v200, s31")
    a("s_mul_i32 s31, s24, 576")
    a("v_lshl_add_u32 v200, v2, 4, v200")
    a("v_add_u32 v200, s31, v200")
    a(f"s_mov_b32 s31, {16*2304}")
    a("s_waitcnt lgkmcnt(0)")
    a("s_nop 7")
    for j in range(9):
        for t in range(2):
            a(f"buffer_store_dwordx4 {vr(ACC(j,t),4)}, v200, s[20:23], {'s31' if t else '0'} offen offset:{64*j}")
    a.lab(f"{a.name}_end")
    a("s_endpgm")
    return a.text(), descriptor(a.name, 208, 0), f"; @launch kernel={a.name} grid=(256,1,1) block=(256,1,1) lds={R*STG}"

def k6():
    a = Asm("final_kernel"); header(a)
    a("s_cmp_ge_u32 s2, 576")
    a(f"s_cbranch_scc1 {a.name}_end")
    a("s_load_dwordx2 s[4:5], s[0:1], 56")
    a("s_load_dwordx2 s[6:7], s[0:1], 64")
    a("s_load_dwordx2 s[28:29], s[0:1], 80")
    a("s_lshl_b32 s3, s2, 8")
    a("v_add_u32 v1, s3, v0")
    a("v_lshlrev_b32 v2, 4, v1")
    a("v_lshlrev_b32 v3, 5, v1")
    a("v_mul_u32_u24 v4, 58255, v1") if False else None
    a("s_mov_b32 s30, 0x38e38e4")
    a("v_mul_hi_u32 v4, v1, s30")
    a("v_lshlrev_b32 v4, 1, v4")
    a("s_waitcnt lgkmcnt(0)")
    srd_from_arg(a, 8, 56, S*2, 4)
    srd_from_arg(a, 12, 64, S*D*2, 6)
    srd_ws(a, 16, 28, WS_H, SZ_SD)
    srd_ws(a, 20, 28, WS_P, SZ_P)
    a("buffer_load_ushort v5, v4, s[8:11], 0 offen")
    a("buffer_load_dwordx4 v[8:11], v2, s[16:19], 0 offen")
    for p in range(4):
        a(f"s_mov_b32 s{32+p}, {p*S*D*4}")
        a(f"buffer_load_dwordx4 {vr(16+8*p,4)}, v3, s[20:23], s{32+p} offen")
        a(f"buffer_load_dwordx4 {vr(20+8*p,4)}, v3, s[20:23], s{32+p} offen offset:16")
    a("s_waitcnt vmcnt(0)")
    a("v_lshlrev_b32 v5, 16, v5")
    for r in range(8):
        a(f"v_add_f32 v{16+r}, v{16+r}, v{24+r}")
        a(f"v_add_f32 v{32+r}, v{32+r}, v{40+r}")
        a(f"v_add_f32 v{16+r}, v{16+r}, v{32+r}")
        a(f"v_add_f32 v{16+r}, v{16+r}, v5")
    for r in range(4):
        a(f"v_lshlrev_b32 v6, 16, v{8+r}")
        a(f"v_and_b32 v7, 0xffff0000, v{8+r}")
        a(f"v_add_f32 v6, v6, v{16+2*r}")
        a(f"v_add_f32 v7, v7, v{17+2*r}")
        a(f"v_cvt_pk_bf16_f32 v{8+r}, v6, v7")
    a("buffer_store_dwordx4 v[8:11], v2, s[12:15], 0 offen")
    a.lab(f"{a.name}_end")
    a("s_endpgm")
    return a.text(), descriptor(a.name, 48, 0), f"; @launch kernel={a.name} grid=(576,1,1) block=(256,1,1) lds=0"

def build(kernels):
    hdr = "; generated by gen.py\n"
    texts, descs, launches = [], [], []
    for k in kernels:
        t, d, l = k()
        texts.append(t); descs.append(d); launches.append(l)
    if 'dup3' in FL: launches.append(launches[2])
    out = hdr + "\n".join(launches) + "\n"
    out += '.amdgcn_target "amdgcn-amd-amdhsa--gfx950"\n.text\n'
    out += "\n".join(texts)
    out += '.section .rodata,"a"\n' + "\n".join(descs)
    return out

if __name__ == "__main__":
    ks = [k1, k2, k3, k4, k5, k6]
    out = build(ks)
    open(sys.argv[1] if len(sys.argv) > 1 else "out.s", "w").write(out)
```

```python
import sys, math, os
FL = os.environ.get('FLAGS', '').split(',')

S, D, F, H, DH = 2048, 576, 4608, 32, 18
WS_Q  = 0x0        ; SZ_Q  = 32*2048*48
WS_KV = 0x300000   ; HB = 159744 ; SZ_KV = 32*HB + 8192
WS_O  = 0x800000   ; SZ_SD = 2048*576*2
WS_H  = 0xA80000
WS_G  = 0xD00000
WS_ST = 0xF80000   ; SZ_ST = 6*2048*8
WS_U  = 0x1000000  ; SZ_U = 576*4608*2
WS_P  = 0x1800000  ; SZ_P = 4*2048*576*4
CHUNK = 39936
LOG2E = 1.4426950408889634
QSCALE = (18 ** -0.5) * LOG2E

import struct
def f32hex(x):
    return "0x%08x" % struct.unpack("<I", struct.pack("<f", x))[0]

class Asm:
    def __init__(s, name):
        s.name = name; s.t = []; s.nl = 0
    def __call__(s, line):
        if s.name in ('mlp1_kernel', 'mlp2_kernel'):
            if 'gnomfma' in FL and line.startswith('v_mfma'): return
            if 'gnords' in FL and line.startswith('ds_read'): return
            if 'gnodma' in FL and line.startswith('buffer_load') and line.endswith('lds'): return
            if 'gnobar' in FL and line.startswith('s_barrier'): return
            if 'gnopk' in FL and (line.startswith('v_pk_fma') or line.startswith('v_cvt_pk_bf16_f32 v3') or line.startswith('v_cvt_pk_bf16_f32 v4') or line.startswith('v_cvt_pk_bf16_f32 v5') or line.startswith('v_cvt_pk_bf16_f32 v6') or line.startswith('v_cvt_pk_bf16_f32 v7') or line.startswith('v_lshlrev_b32 v28') or line.startswith('v_and_b32 v29') or line.startswith('v_cvt_pk_bf16_f32 v8') or line.startswith('v_cvt_pk_bf16_f32 v9') or line.startswith('v_cvt_pk_bf16_f32 v10') or line.startswith('v_cvt_pk_bf16_f32 v11')): return
            if 'gnowr' in FL and line.startswith('ds_write_b128'): return
            if 'gnohl' in FL and line.startswith('buffer_load_dwordx4 v['): return
        if s.name == 'qkv_kernel':
            if 'k1nostore' in FL and line.startswith('buffer_store'): return
            if 'k1nomfma' in FL and line.startswith('v_mfma'): return
            if 'k1nodot' in FL and line.startswith('v_dot2c'): return
            if 'k1notr' in FL and line.startswith('ds_read_b64_tr'): return
            if 'k1noa' in FL and line.startswith('buffer_load_dwordx4 v['): return
            if 'k1nodma' in FL and line.startswith('buffer_load') and line.endswith('lds'): return
            if 'k1nobar' in FL and line.startswith('s_barrier'): return
        s.t.append("    " + line)
    def lab(s, l):
        s.t.append(l + ":")
    def newlabel(s, p="L"):
        s.nl += 1
        return f"{s.name}_{p}{s.nl}"
    def text(s):
        return "\n".join(s.t) + "\n"

def vr(b, n):  return f"v[{b}:{b+n-1}]"
def ar(b, n):  return f"a[{b}:{b+n-1}]"
def sr(b, n):  return f"s[{b}:{b+n-1}]"

def srd_from_arg(a, sreg, argoff, size, tmp):
    a(f"s_mov_b32 s{sreg}, s{tmp}")
    a(f"s_mov_b32 s{sreg+1}, s{tmp+1}")
    a(f"s_mov_b32 s{sreg+2}, {size}")
    a(f"s_mov_b32 s{sreg+3}, 0x00020000")

def srd_ws(a, sreg, wsreg, off, size):
    a(f"s_add_u32 s{sreg}, s{wsreg}, {off}")
    a(f"s_addc_u32 s{sreg+1}, s{wsreg+1}, 0")
    a(f"s_mov_b32 s{sreg+2}, {size}")
    a(f"s_mov_b32 s{sreg+3}, 0x00020000")

def stamp_begin(a, wsreg=28):
    if 'stamp_' + a.name[:4] in FL:
        srd_ws(a, 80, wsreg, 0x3000000, 0x100000)
        a("s_memtime s[84:85]"); a("s_memrealtime s[86:87]")
def stamp_mid(a, k):
    if 'stamp_' + a.name[:4] in FL:
        a(f"s_memtime s[{88+2*k}:{89+2*k}]")
def stamp_end(a, nwaves, wavereg=26):
    if 'stamp_' + a.name[:4] in FL:
        a("s_memtime s[92:93]"); a("s_memrealtime s[94:95]"); a("s_waitcnt lgkmcnt(0)")
        a("s_sub_u32 s88, s88, s84"); a("s_sub_u32 s92, s92, s84"); a("s_sub_u32 s94, s94, s86"); a("s_sub_u32 s90, s90, s84")
        a("v_mov_b32 v16, s88"); a("v_mov_b32 v17, s92"); a("v_mov_b32 v18, s94"); a("v_mov_b32 v19, s90")
        a(f"s_mul_i32 s70, s2, {nwaves}"); a(f"s_add_u32 s70, s70, s{wavereg}"); a("s_lshl_b32 s70, s70, 4")
        a("v_mov_b32 v20, s70")
        a("buffer_store_dwordx4 v[16:19], v20, s[80:83], 0 offen")

def prefetch(a, srd, nlines, nshare, share_sgpr, addr_fn, vt=250, wave_sgpr=26, nwaves=4, dst=255):
    if 'pf' not in FL: return
    per = (nlines + nshare - 1)//nshare
    nt = (per + 64*nwaves - 1)//(64*nwaves)
    a(f"s_lshl_b32 s60, s{wave_sgpr}, 6")
    for t in range(nt):
        a(f"v_add_u32 v{vt}, s60, v1")
        if t: a(f"v_add_u32 v{vt}, {t*nwaves*64}, v{vt}")
        if nshare > 1:
            a(f"v_mul_u32_u24 v{vt}, {nshare}, v{vt}")
            a(f"v_add_u32 v{vt}, s{share_sgpr}, v{vt}")
        addr_fn(vt, vt+1)
        a(f"buffer_load_dword v{dst}, v{vt+1}, s[{srd}:{srd+3}], 0 offen")

def header(a):
    a.t.append(f".globl {a.name}\n.p2align 8\n.type {a.name},@function\n{a.name}:")

def descriptor(name, vgpr, agpr, sgpr=96):
    acc = (vgpr + 3) // 4 * 4
    return f""".p2align 6
.amdhsa_kernel {name}
  .amdhsa_next_free_vgpr {acc + agpr if agpr else vgpr}
  .amdhsa_next_free_sgpr {sgpr}
  .amdhsa_accum_offset {acc}
  .amdhsa_group_segment_fixed_size 0
  .amdhsa_kernarg_size 88
  .amdhsa_user_sgpr_count 2
  .amdhsa_user_sgpr_kernarg_segment_ptr 1
  .amdhsa_system_sgpr_workgroup_id_x 1
.end_amdhsa_kernel
"""

def interleave(main, *fill):
    out = []
    n = len(main)
    pos = [0]*len(fill)
    for idx, m in enumerate(main):
        out.append(m)
        for fi, f in enumerate(fill):
            tgt = (idx+1)*len(f)//n
            while pos[fi] < tgt:
                out.append(f[pos[fi]]); pos[fi] += 1
    return out

def k2():
    a = Asm("attn_kernel"); header(a)
    Q1, Q2 = 8, 12
    KF1 = lambda b: 16 + 8*b
    KF2 = lambda b: 20 + 8*b
    VF = lambda b, t: 32 + 8*b + 4*t
    SS = lambda b: 48 + 16*b
    PP = lambda b: 80 + 8*b
    E = 96; O = 112
    a("s_cmp_ge_u32 s2, 256")
    a(f"s_cbranch_scc1 {a.name}_end")
    a("s_load_dwordx2 s[28:29], s[0:1], 80")
    a("s_and_b32 s24, s2, 7")
    a("s_lshl_b32 s24, s24, 2")
    a("s_lshr_b32 s25, s2, 3")
    a("s_and_b32 s25, s25, 3")
    a("s_add_u32 s24, s24, s25")
    a("s_lshr_b32 s25, s2, 5")
    a("v_and_b32 v1, 63, v0")
    a("v_lshrrev_b32 v2, 5, v1")
    a("v_and_b32 v3, 31, v1")
    a("v_lshrrev_b32 v4, 6, v0")
    a("s_nop 1")
    a("v_readfirstlane_b32 s26, v4")
    a("s_waitcnt lgkmcnt(0)")
    srd_ws(a, 8, 28, WS_Q, SZ_Q)
    srd_ws(a, 12, 28, WS_KV, SZ_KV)
    srd_ws(a, 16, 28, WS_O, SZ_SD)
    if 'stamp' in FL:
        srd_ws(a, 20, 28, 0x3000000, 0x100000)
        a("s_memtime s[60:61]"); a("s_memrealtime s[62:63]")
    a("s_lshl_b32 s27, s25, 8")
    a("s_lshl_b32 s30, s26, 5")
    a("s_add_u32 s27, s27, s30")
    a("s_lshl_b32 s30, s24, 11")
    a("s_add_u32 s30, s30, s27")
    a("v_add_u32 v128, s30, v3")
    a("v_mul_u32_u24 v128, 48, v128")
    a("v_lshl_add_u32 v129, v2, 4, v128")
    a(f"buffer_load_dwordx4 {vr(Q1,4)}, v129, s[8:11], 0 offen")
    a(f"buffer_load_dword v{Q2}, v128, s[8:11], 0 offen offset:32")
    a(f"s_mul_i32 s30, s24, {HB}")
    a("s_lshl_b32 s31, s26, 10")
    a("s_add_u32 s30, s30, s31")
    a("v_lshl_add_u32 v4, v1, 4, s30")
    for n in range(20):
        a(f"s_add_u32 m0, s31, {n*8192}")
        a(f"s_mov_b32 s32, {n*8192}")
        a(f"buffer_load_dwordx4 v4, s[12:15], s32 offen lds")
    a("v_lshlrev_b32 v5, 4, v1")
    a("v_lshlrev_b32 v6, 3, v3")
    a("v_add_u32 v6, 16384, v6")
    a("v_min_u32 v7, 18, v3")
    a("v_lshlrev_b32 v7, 4, v7")
    a("v_mul_u32_u24 v130, 304, v2")
    a("v_add_u32 v7, v7, v130")
    a("v_add_u32 v7, 20480, v7")
    a("v_mov_b32 v131, v5"); a("v_mov_b32 v132, v6"); a("v_mov_b32 v133, v7")
    for r in list(range(KF2(0)+2, KF2(0)+4)) + list(range(KF2(1)+2, KF2(1)+4)) + list(range(32, 48)) + list(range(80, 96)) + list(range(O, O+16)) + [Q2+1, Q2+2, Q2+3]:
        a(f"v_mov_b32 v{r}, 0")
    a("v_cmp_gt_u32 s[34:35], 32, v1")
    a("s_waitcnt vmcnt(15)")
    a(f"v_cndmask_b32 v{Q2}, 0, v{Q2}, s[34:35]")
    a("s_barrier")
    if 'stamp' in FL: a("s_memtime s[64:65]")
    def kread(t, b):
        off = (t // 16)*CHUNK; tt = t % 16
        return [f"ds_read_b128 {vr(KF1(b),4)}, v5 offset:{off + tt*1024}",
                f"ds_read_b64 {vr(KF2(b),2)}, v6 offset:{off + tt*256}"]
    def vread(t, b):
        return [f"ds_read_b128 {vr(VF(b,0),4)}, v7 offset:{t*1216}",
                f"ds_read_b128 {vr(VF(b,1),4)}, v7 offset:{t*1216 + 608}"]
    def qk(b):
        return [f"v_mfma_f32_32x32x16_bf16 {vr(SS(b),16)}, {vr(KF1(b),4)}, {vr(Q1,4)}, 0",
                f"v_mfma_f32_32x32x16_bf16 {vr(SS(b),16)}, {vr(KF2(b),4)}, {vr(Q2,4)}, {vr(SS(b),16)}"]
    def pv(b):
        return [f"v_mfma_f32_32x32x16_bf16 {vr(O,16)}, {vr(VF(b,0),4)}, {vr(PP(b),4)}, {vr(O,16)}",
                f"v_mfma_f32_32x32x16_bf16 {vr(O,16)}, {vr(VF(b,1),4)}, {vr(PP(b)+4,4)}, {vr(O,16)}"]
    for x in kread(0, 0) + kread(1, 1): a(x)
    a("s_waitcnt lgkmcnt(0)")
    for x in qk(0): a(x)
    a("s_nop 7"); a("s_nop 7")
    a(f"v_max_f32 v134, v{SS(0)}, v{SS(0)+1}")
    for r in range(2, 16): a(f"v_max_f32 v134, v134, v{SS(0)+r}")
    a("v_mov_b32 v135, v134")
    a("s_nop 1")
    a("v_permlane32_swap_b32 v134, v135")
    a("s_nop 1")
    a("v_max_f32 v134, v134, v135")
    a("v_sub_f32 v134, 0, v134")
    a("v_cvt_pk_bf16_f32 v134, v134, 0")
    a("s_nop 0")
    a(f"v_cndmask_b32 v{Q2+1}, 0, v134, s[34:35]")
    a("s_nop 1")
    for x in qk(0): a(x)
    a("s_mov_b32 s33, 0")
    a("s_nop 7"); a("s_nop 3")
    a.lab(f"{a.name}_loop")
    for t in range(16):
        b = t % 2; nb = 1 - b
        if t == 14:
            l = a.newlabel("nb")
            a("s_cmp_eq_u32 s33, 0")
            a(f"s_cbranch_scc0 {l}")
            a("s_waitcnt vmcnt(0)")
            a("s_barrier")
            a.lab(l)
        a("s_waitcnt lgkmcnt(0)")
        e = [f"v_exp_f32 v{E+r}, v{SS(b)+r}" for r in range(16)]
        c = [f"v_cvt_pk_bf16_f32 v{PP(b)+r}, v{E+2*r}, v{E+2*r+1}" for r in range(8)]
        m1 = qk(nb); m2 = pv(nb)
        kr = kread(t+2, b); vrd = vread(t, b)
        seq = [m1[0], kr[0], kr[1]] + e[0:4] + [vrd[0], m1[1], vrd[1]] + e[4:8] + [c[0], c[1], m2[0]] + e[8:12] + [c[2], c[3], m2[1]] + e[12:16] + [c[4], c[5], c[6], c[7]]
        for x in seq: a(x)
    a(f"v_add_u32 v5, {CHUNK}, v5"); a(f"v_add_u32 v6, {CHUNK}, v6"); a(f"v_add_u32 v7, {CHUNK}, v7")
    a("s_add_u32 s33, s33, 1")
    a("s_cmp_lt_u32 s33, 4")
    a(f"s_cbranch_scc1 {a.name}_loop")
    a("s_waitcnt lgkmcnt(0)")
    for x in pv(1): a(x)
    if 'stamp' in FL:
        a("s_memtime s[66:67]"); a("s_memrealtime s[68:69]"); a("s_waitcnt lgkmcnt(0)")
        a("s_sub_u32 s64, s64, s60"); a("s_sub_u32 s66, s66, s60"); a("s_sub_u32 s68, s68, s62")
        a("v_mov_b32 v140, s64"); a("v_mov_b32 v141, s66"); a("v_mov_b32 v142, s68"); a("v_mov_b32 v143, s60")
        a("s_lshl_b32 s70, s2, 3"); a("s_add_u32 s70, s70, s26"); a("s_lshl_b32 s70, s70, 4")
        a("v_mov_b32 v139, s70")
        a("buffer_store_dwordx4 v[140:143], v139, s[20:23], 0 offen")
    a.lab(f"{a.name}_fin")
    a("s_nop 7"); a("s_nop 7")
    a(f"v_mov_b32 v134, v{O+10}")
    a(f"v_mov_b32 v135, v{O+10}")
    a("s_nop 1")
    a("v_permlane32_swap_b32 v134, v135")
    a(f"s_mov_b32 s36, {f32hex(2.0**40)}")
    a("s_nop 0")
    a("v_cmp_nlt_f32 vcc, v134, s36") if False else a("v_cmp_ngt_f32 vcc, s36, v134")
    a("s_cmp_eq_u32 s33, 99")
    a(f"s_cbranch_scc1 {a.name}_store")
    a(f"s_cbranch_vccnz {a.name}_slow")
    a.lab(f"{a.name}_store")
    a("v_rcp_f32 v134, v134")
    a("s_nop 0")
    for r in range(10): a(f"v_mul_f32 v{O+r}, v{O+r}, v134")
    for r in range(5): a(f"v_cvt_pk_bf16_f32 v{E+r}, v{O+2*r}, v{O+2*r+1}")
    a("v_add_u32 v128, s27, v3")
    a("v_mul_u32_u24 v128, 1152, v128")
    a("v_lshl_add_u32 v128, v2, 3, v128")
    a("s_mul_i32 s30, s24, 36")
    a(f"buffer_store_dwordx2 {vr(E,2)}, v128, s[16:19], s30 offen")
    a(f"buffer_store_dwordx2 {vr(E+2,2)}, v128, s[16:19], s30 offen offset:16")
    a("s_and_saveexec_b64 s[38:39], s[34:35]")
    a(f"buffer_store_dword v{E+4}, v128, s[16:19], s30 offen offset:32")
    a("s_endpgm")
    a.lab(f"{a.name}_slow")
    a("v_mov_b32 v5, v131"); a("v_mov_b32 v6, v132"); a("v_mov_b32 v7, v133")
    a(f"v_mov_b32 v{Q2+1}, 0")
    for r in range(16): a(f"v_mov_b32 v{O+r}, 0")
    a("v_mov_b32 v136, 0xff800000")
    a("s_mov_b32 s33, 0")
    a.lab(f"{a.name}_sl1")
    a("s_mov_b32 s37, 0")
    a.lab(f"{a.name}_sl2")
    for x in kread(0, 0) + vread(0, 0): a(x)
    a("s_waitcnt lgkmcnt(0)")
    for x in qk(0): a(x)
    a("s_nop 7"); a("s_nop 7")
    a(f"v_max_f32 v134, v{SS(0)}, v{SS(0)+1}")
    for r in range(2, 16): a(f"v_max_f32 v134, v134, v{SS(0)+r}")
    a("v_mov_b32 v135, v134")
    a("s_nop 1")
    a("v_permlane32_swap_b32 v134, v135")
    a("s_nop 1")
    a("v_max_f32 v134, v134, v135")
    a("v_max_f32 v134, v134, v136")
    a("v_sub_f32 v135, v136, v134")
    a("v_exp_f32 v135, v135")
    a("v_mov_b32 v136, v134")
    for r in range(16): a(f"v_sub_f32 v{E+r}, v{SS(0)+r}, v134")
    for r in range(16): a(f"v_exp_f32 v{E+r}, v{E+r}")
    for r in range(16): a(f"v_mul_f32 v{O+r}, v{O+r}, v135")
    for r in range(8): a(f"v_cvt_pk_bf16_f32 v{PP(0)+r}, v{E+2*r}, v{E+2*r+1}")
    a("s_nop 1")
    for x in pv(0): a(x)
    a("s_nop 7"); a("s_nop 7")
    a("v_add_u32 v5, 1024, v5"); a("v_add_u32 v6, 256, v6"); a("v_add_u32 v7, 1216, v7")
    a("s_add_u32 s37, s37, 1")
    a("s_cmp_lt_u32 s37, 16")
    a(f"s_cbranch_scc1 {a.name}_sl2")
    a(f"v_add_u32 v5, {CHUNK-16*1024}, v5"); a(f"v_add_u32 v6, {CHUNK-16*256}, v6"); a(f"v_add_u32 v7, {CHUNK-16*1216}, v7")
    a("s_add_u32 s33, s33, 1")
    a("s_cmp_lt_u32 s33, 4")
    a(f"s_cbranch_scc1 {a.name}_sl1")
    a("s_mov_b32 s33, 99")
    a(f"s_branch {a.name}_fin")
    a.lab(f"{a.name}_end")
    a("s_endpgm")
    return a.text(), descriptor(a.name, 144, 0), f"; @launch kernel={a.name} grid=(256,1,1) block=(512,1,1) lds=163840"

def swap23(a, p, t1, t2):
    a(f"v_and_b32 v{t1}, 0x33, v{p}")
    a(f"v_and_b32 v{t2}, 4, v{p}")
    a(f"v_lshlrev_b32 v{t2}, 1, v{t2}")
    a(f"v_or_b32 v{t1}, v{t1}, v{t2}")
    a(f"v_and_b32 v{t2}, 8, v{p}")
    a(f"v_lshrrev_b32 v{t2}, 1, v{t2}")
    a(f"v_or_b32 v{t1}, v{t1}, v{t2}")

def sched_waits(seq):
    issued = []
    out = []
    known = 0
    for it in range(2):
        for item in seq:
            if item[0] == 'r':
                name, rel = item[1]
                issued.append((name, it + rel))
                if it == 1: out.append(item[2])
            elif item[0] == 'm':
                if it == 1:
                    idx = max(i for i, (n, t) in enumerate(issued) if t == it and n in item[1])
                    assert len([1 for (n, t) in issued if t == it and n in item[1]]) == len(item[1]), item
                    if idx + 1 > known:
                        cnt = min(len(issued) - (idx + 1), 15)
                        out.append(f"s_waitcnt lgkmcnt({cnt})")
                        known = idx + 1
                    out.append(item[2])
            else:
                if it == 1: out.append(item[1])
    return out

def skeleton(a, R, STG, NST, NLD, loader_setup, dma, cons_setup, body, nbase, epilogue, custom_loader=None):
    skeleton2(a, R, STG, NST, NLD, loader_setup, dma, cons_setup, [(None, body, epilogue)], nbase, custom_loader)

def skeleton2(a, R, STG, NST, NLD, loader_setup, dma, cons_setup, variants, nbase, custom_loader=None):
    a("s_cmp_ge_u32 s26, 4")
    a(f"s_cbranch_scc0 {a.name}_cons")
    a("s_sub_u32 s26, s26, 4")
    if custom_loader:
        a("s_cmp_ge_u32 s26, 4")
        a(f"s_cbranch_scc0 {a.name}_std")
        a("s_sub_u32 s26, s26, 4")
        custom_loader()
        a("s_endpgm")
        a.lab(f"{a.name}_std")
    std_loader(a, R, STG, NST, NLD, loader_setup, dma)
    cons_part(a, R, STG, NST, cons_setup, variants, nbase)

def std_loader(a, R, STG, NST, NLD, loader_setup, dma):
    loader_setup()
    a("s_mov_b32 s34, 0")
    def dma_adv():
        dma()
        a(f"s_add_u32 s34, s34, {STG}")
        a(f"s_cmp_eq_u32 s34, {R*STG}")
        a("s_cselect_b32 s34, 0, s34")
    for st in range(R-1): dma_adv()
    a(f"s_waitcnt vmcnt({(R-2)*NLD})")
    a("s_barrier")
    a("s_mov_b32 s40, 0")
    a.lab(f"{a.name}_lloop")
    a(f"s_waitcnt vmcnt({(R-3)*NLD})")
    a("s_barrier")
    dma_adv()
    a("s_add_u32 s40, s40, 1")
    a(f"s_cmp_lt_u32 s40, {NST-R+1}")
    a(f"s_cbranch_scc1 {a.name}_lloop")
    for k in range(R-1):
        a(f"s_waitcnt vmcnt({max(R-3-k,0)*NLD})")
        a("s_barrier")
    a("s_endpgm")

def cons_part(a, R, STG, NST, cons_setup, variants, nbase):
    a.lab(f"{a.name}_cons")
    cons_setup()
    nb0, n = nbase
    for r in range(n):
        a(f"v_mov_b32 v{nb0+n+r}, v{nb0+r}")
        a(f"v_mov_b32 v{nb0+2*n+r}, v{nb0+r}")
    a("s_mov_b32 s39, 0")
    a("s_mov_b32 s40, 0")
    a("s_barrier")
    stamp_mid(a, 0)
    for vi, (cmp, body, epilogue) in enumerate(variants):
        if vi: a.lab(f"{a.name}_var{vi}")
        if cmp:
            a(cmp); a(f"s_cbranch_scc1 {a.name}_var{vi+1}")
        seq = body()
        for item in seq:
            if item[0] == 'r' and item[1][1] == 1: a(item[2])
        a.lab(f"{a.name}_loop{vi}")
        a(f"s_add_u32 s39, s39, {STG}")
        a(f"s_cmp_eq_u32 s39, {R*STG}")
        a("s_cselect_b32 s39, 0, s39")
        for r in range(n):
            a(f"v_mov_b32 v{nb0+n+r}, v{nb0+2*n+r}")
            a(f"v_add_u32 v{nb0+2*n+r}, s39, v{nb0+r}")
        for x in sched_waits(seq):
            if x == '@BAR': a("s_barrier")
            elif x.startswith('@LAB '): a.lab(x[5:])
            else: a(x)
        a("s_add_u32 s40, s40, 1")
        a(f"s_cmp_lt_u32 s40, {NST}")
        a(f"s_cbranch_scc1 {a.name}_loop{vi}")
        a("s_waitcnt lgkmcnt(0)")
        stamp_mid(a, 1)
        epilogue()
    a.lab(f"{a.name}_done")
    stamp_end(a, 8)
    a.lab(f"{a.name}_end")
    a("s_endpgm")

def common_entry(a, nwg, args):
    a(f"s_cmp_ge_u32 s2, {nwg}")
    a(f"s_cbranch_scc1 {a.name}_end")
    for reg, off in args: a(f"s_load_dwordx2 s[{reg}:{reg+1}], s[0:1], {off}")
    a("v_and_b32 v1, 63, v0")
    a("v_lshrrev_b32 v2, 4, v1")
    a("v_and_b32 v3, 15, v1")
    a("v_lshrrev_b32 v4, 6, v0")
    a("s_nop 1")
    a("v_readfirstlane_b32 s26, v4")

def k4():
    a = Asm("mlp1_kernel"); header(a)
    R = 5; STG = 28672; NST = 32
    ACC = lambda b: 96 + 16*b
    WF = lambda ks: 24 + ks*4
    GF = lambda ks, b: 40 + (ks*3 + b)*4
    common_entry(a, 216, [(4, 32), (6, 40), (28, 80)])
    a("s_and_b32 s24, s2, 7")
    a("s_mul_i32 s24, s24, 27")
    a("s_lshr_b32 s25, s2, 3")
    a("s_add_u32 s24, s24, s25")
    a("s_mul_i32 s25, s24, 10923")
    a("s_lshr_b32 s25, s25, 16")
    a("s_mul_i32 s30, s25, 6")
    a("s_sub_u32 s24, s24, s30")
    a("s_waitcnt lgkmcnt(0)")
    srd_from_arg(a, 8, 32, S*F*2, 4)
    srd_from_arg(a, 12, 40, F*2, 6)
    srd_ws(a, 16, 28, WS_G, SZ_SD)
    srd_ws(a, 20, 28, WS_U, SZ_U)
    stamp_begin(a)
    def loader_setup():
        a("s_lshl_b32 s30, s26, 4")
        a("v_add_u32 v10, s30, v2")
        a("v_mul_u32_u24 v10, 9216, v10")
        a("v_lshlrev_b32 v11, 2, v2")
        a("v_xor_b32 v11, v11, v3")
        a("v_lshl_add_u32 v10, v11, 4, v10")
        a("s_lshl_b32 s30, s25, 8")
        a("v_add_u32 v5, s30, v10")
        a("s_mul_i32 s30, s26, 3072")
        a(f"s_mul_i32 s31, s24, {2048*192}")
        a("s_add_u32 s30, s30, s31")
        a("v_lshl_add_u32 v6, v1, 4, s30")
        a("s_lshl_b32 s32, s26, 12")
        a("s_mul_i32 s33, s26, 3072")
        a("s_add_u32 s33, s33, 16384")
        a("s_mov_b32 s35, 0"); a("s_mov_b32 s36, 0")
    def dma():
        a("s_add_u32 s37, s34, s32")
        for m in range(4):
            a(f"s_add_u32 m0, s37, {m*1024}")
            a(f"s_add_u32 s38, s35, {m*36864}")
            a("buffer_load_dwordx4 v5, s[8:11], s38 offen lds")
        a("s_add_u32 m0, s34, s33")
        a("s_nop 0")
        for m in range(3):
            a(f"buffer_load_dwordx4 v6, s[16:19], s36 offen offset:{m*1024} lds")
        a(f"s_add_u32 s35, s35, {64*9216}")
        a(f"s_add_u32 s36, s36, {64*192}")
    def cons_setup():
        a("v_lshrrev_b32 v150, 2, v3")
        a("v_and_b32 v151, 3, v3")
        a("v_lshrrev_b32 v152, 1, v2")
        a("v_and_b32 v153, 1, v2")
        a("v_lshl_add_u32 v154, v152, 3, v150")
        a("v_lshrrev_b32 v155, 1, v151")
        a("v_lshl_add_u32 v155, v153, 1, v155")
        a("s_lshl_b32 s30, s26, 2")
        a("v_add_u32 v155, s30, v155")
        a("v_lshlrev_b32 v156, 2, v150")
        a("v_xor_b32 v155, v155, v156")
        a("v_lshlrev_b32 v155, 4, v155")
        a("v_lshl_add_u32 v155, v154, 8, v155")
        a("v_and_b32 v156, 1, v151")
        a("v_lshl_add_u32 v10, v156, 3, v155")
        a("v_mul_u32_u24 v155, 192, v154")
        a("v_lshl_add_u32 v155, v153, 5, v155")
        a("v_lshl_add_u32 v155, v151, 3, v155")
        a("v_add_u32 v11, 16384, v155")
        a("s_lshl_b32 s61, s25, 8")
        def afw(vl, vo):
            a(f"v_lshrrev_b32 v{vo}, 1, v{vl}")
            a(f"v_mul_u32_u24 v{vo}, 9216, v{vo}")
            a(f"v_and_b32 v{vl}, 1, v{vl}")
            a(f"v_lshl_add_u32 v{vo}, v{vl}, 7, v{vo}")
            a(f"v_add_u32 v{vo}, s61, v{vo}")
        prefetch(a, 8, 4096, 6, 24, afw, vt=150, dst=157)
        a(f"s_mul_i32 s61, s24, {2048*192}")
        a("s_and_b32 s62, s25, 3")
        def afh(vl, vo):
            a(f"v_min_u32 v{vl}, 3071, v{vl}")
            a(f"v_lshl_add_u32 v{vo}, v{vl}, 7, s61")
        prefetch(a, 16, 3072, 4, 62, afh, vt=150, dst=157)
        for r in range(96, 144): a(f"v_mov_b32 v{r}, 0")
    def rd(ks, rel):
        wb, gb = ("v14", "v15") if rel else ("v12", "v13")
        L = []
        for hh in range(2):
            L.append(('r', (f"W{ks}{hh}", rel), f"ds_read_b64_tr_b16 {vr(WF(ks)+2*hh,2)}, {wb} offset:{ks*4096 + hh*1024}"))
        for b in range(3):
            for hh in range(2):
                L.append(('r', (f"G{ks}{b}{hh}", rel), f"ds_read_b64_tr_b16 {vr(GF(ks,b)+2*hh,2)}, {gb} offset:{ks*3072 + hh*768 + 64*b}"))
        return L
    def body():
        seq = []
        for ks in range(4):
            if ks == 2: seq.append(('x', '@BAR'))
            r = rd((ks+2) % 4, 1 if ks >= 2 else 0)
            for b in range(3):
                seq.append(('m', [f"W{ks}0", f"W{ks}1", f"G{ks}{b}0", f"G{ks}{b}1"],
                            f"v_mfma_f32_32x32x16_bf16 {vr(ACC(b),16)}, {vr(WF(ks),4)}, {vr(GF(ks,b),4)}, {vr(ACC(b),16)}"))
                seq += r[3*b:3*b+3]
        return seq
    def epilogue():
        a("v_lshrrev_b32 v4, 5, v1")
        a("s_lshl_b32 s30, s25, 8")
        a("s_lshl_b32 s31, s26, 6")
        a("s_add_u32 s30, s30, s31")
        a("v_lshl_add_u32 v150, v4, 3, s30")
        for qd in range(4): a(f"buffer_load_dwordx2 {vr(24+2*qd,2)}, v150, s[12:15], 0 offen offset:{16*qd}")
        a("v_and_b32 v151, 31, v1")
        a("s_mul_i32 s31, s24, 96")
        a("v_add_u32 v151, s31, v151")
        a("v_lshlrev_b32 v151, 7, v151")
        a("v_lshl_add_u32 v151, v4, 3, v151")
        a("s_lshr_b32 s31, s26, 1")
        a("s_lshl_b32 s30, s25, 1")
        a("s_add_u32 s31, s31, s30")
        a("s_mul_i32 s31, s31, 73728")
        a("s_and_b32 s30, s26, 1")
        a("s_lshl_b32 s30, s30, 6")
        a("s_add_u32 s31, s31, s30")
        a("v_add_u32 v16, s31, v151")
        a("s_waitcnt vmcnt(0)")
        for qd in range(4):
            for p in range(2):
                a(f"v_lshlrev_b32 v{32+4*qd+2*p}, 16, v{24+2*qd+p}")
                a(f"v_and_b32 v{33+4*qd+2*p}, 0xffff0000, v{24+2*qd+p}")
        c0 = -2.0*math.sqrt(2.0/math.pi)*LOG2E
        a(f"s_mov_b32 s41, {f32hex(c0*0.044715)}")
        a(f"v_mov_b32 v17, {f32hex(c0)}")
        for b in range(3):
            for qd in range(4):
                c = ACC(b) + 4*qd
                for r in range(4): a(f"v_add_f32 v{c+r}, v{c+r}, v{32+4*qd+r}")
                for r in range(4): a(f"v_mul_f32 v{150+r}, v{c+r}, v{c+r}")
                for r in range(4): a(f"v_fma_f32 v{150+r}, v{150+r}, s41, v17")
                for r in range(4): a(f"v_mul_f32 v{150+r}, v{150+r}, v{c+r}")
                for r in range(4): a(f"v_exp_f32 v{150+r}, v{150+r}")
                for r in range(4): a(f"v_add_f32 v{150+r}, 1.0, v{150+r}")
                for r in range(4): a(f"v_rcp_f32 v{150+r}, v{150+r}")
                for r in range(4): a(f"v_mul_f32 v{c+r}, v{c+r}, v{150+r}")
                a(f"v_cvt_pk_bf16_f32 v{c}, v{c}, v{c+1}")
                a(f"v_cvt_pk_bf16_f32 v{c+1}, v{c+2}, v{c+3}")
                a(f"buffer_store_dwordx2 {vr(c,2)}, v16, s[20:23], 0 offen offset:{b*4096 - (4096 if b==1 else 0)*0 + 16*qd}" if b == 0 else
                  f"buffer_store_dwordx2 {vr(c,2)}, v16, s[20:23], s{41+b} offen offset:{16*qd}")
            if b < 2: a(f"s_mov_b32 s{42+b}, {(b+1)*4096}")
    skeleton(a, R, STG, NST, 7, loader_setup, dma, cons_setup, body, (10, 2), epilogue)
    return a.text(), descriptor(a.name, 168, 0), f"; @launch kernel={a.name} grid=(216,1,1) block=(512,1,1) lds={R*STG}"

def k5():
    a = Asm("mlp2_kernel"); header(a)
    R = 4; STG = 34816; NST = 18; UB = 18432
    ACC = lambda j, t: 112 + (j*2 + t)*4
    UF = lambda buf, j: 24 + (buf*9 + j)*4
    WF = lambda buf, t: 96 + (buf*2 + t)*4
    common_entry(a, 256, [(4, 48), (28, 80)])
    a("s_and_b32 s24, s2, 7")
    a("s_lshl_b32 s24, s24, 5")
    a("s_lshr_b32 s25, s2, 3")
    a("s_add_u32 s27, s24, s25")
    a("s_and_b32 s24, s27, 3")
    a("s_lshr_b32 s25, s27, 2")
    a("s_and_b32 s25, s25, 15")
    a("s_lshr_b32 s27, s27, 6")
    a("s_waitcnt lgkmcnt(0)")
    srd_from_arg(a, 8, 48, F*S*2, 4)
    srd_ws(a, 16, 28, WS_U, SZ_U)
    srd_ws(a, 20, 28, WS_P, SZ_P)
    stamp_begin(a)
    def loader_setup():
        a("s_lshl_b32 s30, s26, 2")
        a("v_add_u32 v10, s30, v2")
        a("v_and_b32 v10, 7, v10")
        a("v_and_b32 v11, 7, v1")
        a("v_xor_b32 v10, v10, v11")
        a("v_lshrrev_b32 v11, 3, v1")
        a("v_lshlrev_b32 v11, 7, v11")
        a("v_lshl_add_u32 v5, v10, 4, v11")
        a("s_and_b32 s30, s26, 1")
        a("s_add_u32 s45, s30, 16")
        a("s_lshl_b32 s45, s45, 10")
        a("s_lshl_b32 s46, s26, 10")
        a("s_lshl_b32 s30, s26, 4")
        a("v_add_u32 v10, s30, v2")
        a("v_lshlrev_b32 v10, 12, v10")
        a("s_lshl_b32 s30, s25, 8")
        a("v_add_u32 v10, s30, v10")
        a("v_lshlrev_b32 v11, 1, v2")
        a("v_xor_b32 v11, v11, v3")
        a("v_lshl_add_u32 v6, v11, 4, v10")
        a("v_xor_b32 v11, 8, v11")
        a("v_lshl_add_u32 v7, v11, 4, v10")
        a("s_lshl_b32 s32, s26, 12")
        a(f"s_add_u32 s32, s32, {UB}")
        a(f"s_mul_i32 s35, s27, {18*73728}")
        a(f"s_mul_i32 s30, s24, {UB}")
        a("s_add_u32 s35, s35, s30")
        a(f"s_mul_i32 s36, s27, {1152*4096}")
    def dma():
        a("s_add_u32 s37, s34, s46")
        a("s_add_u32 s47, s35, s46")
        for m in range(4):
            a(f"s_add_u32 m0, s37, {m*4096}")
            a(f"s_add_u32 s38, s47, {m*4096}")
            a("buffer_load_dwordx4 v5, s[16:19], s38 offen lds")
        a("s_add_u32 m0, s34, s45")
        a("s_add_u32 s38, s35, s45")
        a("buffer_load_dwordx4 v5, s[16:19], s38 offen lds")
        a("s_add_u32 s37, s34, s32")
        for m in range(4):
            a(f"s_add_u32 m0, s37, {m*1024}")
            a(f"s_add_u32 s38, s36, {m*4*4096}")
            a(f"buffer_load_dwordx4 v{6 + (m>>1)}, s[8:11], s38 offen lds")
        a("s_add_u32 s35, s35, 73728")
        a(f"s_add_u32 s36, s36, {64*4096}")
    def cons_setup():
        a("v_lshrrev_b32 v200, 1, v3")
        a("v_xor_b32 v201, v2, v200")
        a("v_lshlrev_b32 v202, 7, v3")
        a("v_lshl_add_u32 v8, v201, 4, v202")
        a("v_xor_b32 v201, 4, v201")
        a("v_lshl_add_u32 v9, v201, 4, v202")
        a("v_lshrrev_b32 v200, 2, v3")
        a("v_and_b32 v201, 3, v3")
        a("v_lshl_add_u32 v202, v2, 3, v200")
        a("v_and_b32 v203, 1, v2")
        a("v_lshl_add_u32 v203, v203, 2, v200")
        a("v_lshlrev_b32 v203, 1, v203")
        a("v_lshrrev_b32 v204, 1, v201")
        a("s_lshl_b32 s30, s26, 2")
        a("v_add_u32 v204, s30, v204")
        a("v_xor_b32 v205, v204, v203")
        a("v_lshlrev_b32 v205, 4, v205")
        a("v_lshl_add_u32 v205, v202, 8, v205")
        a("v_and_b32 v206, 1, v201")
        a("v_lshl_add_u32 v205, v206, 3, v205")
        a(f"v_add_u32 v10, {UB}, v205")
        a("v_xor_b32 v11, 32, v10")
        a(f"s_mul_i32 s61, s27, {1152*4096}")
        a("s_lshl_b32 s62, s25, 8")
        a("s_add_u32 s61, s61, s62")
        def afw(vl, vo):
            a(f"v_min_u32 v{vl}, 2303, v{vl}")
            a(f"v_lshrrev_b32 v{vo}, 1, v{vl}")
            a(f"v_lshlrev_b32 v{vo}, 12, v{vo}")
            a(f"v_and_b32 v{vl}, 1, v{vl}")
            a(f"v_lshl_add_u32 v{vo}, v{vl}, 7, v{vo}")
            a(f"v_add_u32 v{vo}, s61, v{vo}")
        prefetch(a, 8, 2304, 4, 24, afw, vt=200, dst=207)
        a(f"s_mul_i32 s61, s27, {18*73728}")
        a(f"s_mul_i32 s62, s24, {UB}")
        a("s_add_u32 s61, s61, s62")
        a("s_and_b32 s62, s25, 7")
        def afu(vl, vo):
            a(f"v_min_u32 v{vl}, 2591, v{vl}")
            a(f"v_mul_u32_u24 v{vo}, 29128, v{vl}")
            a(f"v_lshrrev_b32 v{vo}, 22, v{vo}")
            a(f"v_mul_u32_u24 v{vl+2}, {73728 - 144*128}, v{vo}")
            a(f"v_lshl_add_u32 v{vo}, v{vl}, 7, v{vl+2}")
            a(f"v_add_u32 v{vo}, s61, v{vo}")
        prefetch(a, 16, 2592, 8, 62, afu, vt=200, dst=207)
        for r in range(112, 184): a(f"v_mov_b32 v{r}, 0")
    def rd(ks, rel):
        b = 16 if rel else 12
        L = []
        for t in range(2):
            for hh in range(2):
                L.append(('r', (f"W{ks}{t}{hh}", rel), f"ds_read_b64_tr_b16 {vr(WF(ks,t)+2*hh,2)}, v{b+2+t} offset:{ks*8192 + hh*1024}"))
        for j in range(9):
            L.append(('r', (f"U{ks}{j}", rel), f"ds_read_b128 {vr(UF(ks,j),4)}, v{b+ks} offset:{j*2048}"))
        return L
    def body():
        seq = []
        for ks in range(2):
            if ks == 1: seq.append(('x', '@BAR'))
            r = rd(1-ks, ks)
            k = 0
            for j in range(9):
                for t in range(2):
                    C = vr(ACC(j,t),4)
                    seq.append(('m', [f"U{ks}{j}", f"W{ks}{t}0", f"W{ks}{t}1"], f"v_mfma_f32_16x16x32_bf16 {C}, {vr(UF(ks,j),4)}, {vr(WF(ks,t),4)}, {C}"))
                    if k < len(r): seq.append(r[k]); k += 1
        return seq
    def epilogue():
        a("s_lshl_b32 s30, s27, 11")
        a("s_lshl_b32 s31, s25, 7")
        a("s_add_u32 s30, s30, s31")
        a("s_lshl_b32 s31, s26, 5")
        a("s_add_u32 s30, s30, s31")
        a("v_add_u32 v200, s30, v3")
        a("s_mov_b32 s31, 2304")
        a("v_mul_lo_u32 v200, v200, s31")
        a("s_mul_i32 s31, s24, 576")
        a("v_lshl_add_u32 v200, v2, 4, v200")
        a("v_add_u32 v200, s31, v200")
        a(f"s_mov_b32 s31, {16*2304}")
        a("s_nop 7")
        for j in range(9):
            for t in range(2):
                a(f"buffer_store_dwordx4 {vr(ACC(j,t),4)}, v200, s[20:23], {'s31' if t else '0'} offen offset:{64*j}")
    skeleton(a, R, STG, NST, 9, loader_setup, dma, cons_setup, body, (8, 4), epilogue)
    return a.text(), descriptor(a.name, 208, 0), f"; @launch kernel={a.name} grid=(256,1,1) block=(512,1,1) lds={R*STG}"

def k6():
    a = Asm("final_kernel"); header(a)
    a("s_cmp_ge_u32 s2, 576")
    a(f"s_cbranch_scc1 {a.name}_end")
    a("s_load_dwordx2 s[4:5], s[0:1], 56")
    a("s_load_dwordx2 s[6:7], s[0:1], 64")
    a("s_load_dwordx2 s[28:29], s[0:1], 80")
    a("s_lshl_b32 s3, s2, 8")
    a("v_add_u32 v1, s3, v0")
    a("v_lshlrev_b32 v2, 4, v1")
    a("v_lshlrev_b32 v3, 5, v1")
    a("v_mul_u32_u24 v4, 58255, v1") if False else None
    a("s_mov_b32 s30, 0x38e38e4")
    a("v_mul_hi_u32 v4, v1, s30")
    a("v_mul_u32_u24 v12, 72, v4")
    a("v_sub_u32 v12, v1, v12")
    a("v_mul_u32_u24 v13, 43691, v12")
    a("v_lshrrev_b32 v13, 19, v13")
    a("v_mul_u32_u24 v14, 12, v13")
    a("v_sub_u32 v12, v12, v14")
    a("s_mov_b32 s31, 393216")
    a("v_mul_lo_u32 v13, v13, s31")
    a("v_mul_u32_u24 v14, 192, v4")
    a("v_add_u32 v13, v13, v14")
    a("v_lshl_add_u32 v12, v12, 4, v13")
    a("v_lshlrev_b32 v4, 1, v4")
    a("s_waitcnt lgkmcnt(0)")
    srd_from_arg(a, 8, 56, S*2, 4)
    srd_from_arg(a, 12, 64, S*D*2, 6)
    srd_ws(a, 16, 28, WS_H, SZ_SD)
    srd_ws(a, 20, 28, WS_P, SZ_P)
    a("buffer_load_ushort v5, v4, s[8:11], 0 offen")
    a("buffer_load_dwordx4 v[8:11], v12, s[16:19], 0 offen")
    for p in range(4):
        a(f"s_mov_b32 s{32+p}, {p*S*D*4}")
        a(f"buffer_load_dwordx4 {vr(16+8*p,4)}, v3, s[20:23], s{32+p} offen")
        a(f"buffer_load_dwordx4 {vr(20+8*p,4)}, v3, s[20:23], s{32+p} offen offset:16")
    a("s_waitcnt vmcnt(0)")
    a("v_lshlrev_b32 v5, 16, v5")
    for r in range(8):
        a(f"v_add_f32 v{16+r}, v{16+r}, v{24+r}")
        a(f"v_add_f32 v{32+r}, v{32+r}, v{40+r}")
        a(f"v_add_f32 v{16+r}, v{16+r}, v{32+r}")
        a(f"v_add_f32 v{16+r}, v{16+r}, v5")
    for r in range(4):
        a(f"v_lshlrev_b32 v6, 16, v{8+r}")
        a(f"v_and_b32 v7, 0xffff0000, v{8+r}")
        a(f"v_add_f32 v6, v6, v{16+2*r}")
        a(f"v_add_f32 v7, v7, v{17+2*r}")
        a(f"v_cvt_pk_bf16_f32 v{8+r}, v6, v7")
    a("buffer_store_dwordx4 v[8:11], v2, s[12:15], 0 offen")
    a.lab(f"{a.name}_end")
    a("s_endpgm")
    return a.text(), descriptor(a.name, 48, 0), f"; @launch kernel={a.name} grid=(576,1,1) block=(256,1,1) lds=0"

def k1():
    a = Asm("qkv_kernel"); header(a)
    R = 4; XB = 16384; STG = 34816; NST = 9
    ACC = lambda i, j: 112 + (i*9 + j)*4
    XF = lambda ks, i: 24 + (ks*2 + i)*4
    WF = lambda ks, j: 40 + (ks*9 + j)*4
    CW = lambda j: 184 + 4*j
    S1 = lambda i: 220 + 4*i
    S2 = lambda i: 228 + 4*i
    ONE = 236
    T = 240
    common_entry(a, 192, [(4, 0), (6, 8), (28, 80)])
    a("s_mul_i32 s24, s2, 5462")
    a("s_lshr_b32 s24, s24, 16")
    a("s_mul_i32 s25, s24, 12")
    a("s_sub_u32 s25, s2, s25")
    a("s_lshr_b32 s41, s25, 2")
    a("s_waitcnt lgkmcnt(0)")
    srd_from_arg(a, 8, 0, S*D*2, 4)
    srd_from_arg(a, 12, 8, D*3*D*2, 6)
    srd_ws(a, 16, 28, WS_Q, SZ_Q)
    srd_ws(a, 20, 28, WS_KV, SZ_KV)
    stamp_begin(a)
    def loader_setup():
        a("s_lshl_b32 s30, s26, 2")
        a("v_add_u32 v10, s30, v2")
        a("v_and_b32 v10, 7, v10")
        a("v_and_b32 v11, 7, v1")
        a("v_xor_b32 v10, v10, v11")
        a("v_lshrrev_b32 v11, 3, v1")
        a("s_lshl_b32 s30, s24, 7")
        a("s_lshl_b32 s31, s26, 3")
        a("s_add_u32 s30, s30, s31")
        a("v_add_u32 v11, s30, v11")
        a("v_mul_u32_u24 v11, 1152, v11")
        a("v_lshl_add_u32 v5, v10, 4, v11")
        a("s_lshl_b32 s32, s26, 6")
        a("s_and_b32 s33, s26, 1")
        a("s_add_u32 s33, s33, 16")
        a("s_lshl_b32 s30, s33, 6")
        a("s_mul_i32 s31, s25, 288")
        for n in range(5):
            if n < 4:
                a(f"v_add_u32 v20, s32, v1")
                if n: a(f"v_add_u32 v20, {n*256}, v20")
            else:
                a(f"v_add_u32 v20, s30, v1")
            a("v_mul_u32_u24 v21, 3641, v20")
            a("v_lshrrev_b32 v21, 16, v21")
            a("v_mul_u32_u24 v22, 18, v21")
            a("v_sub_u32 v22, v20, v22")
            swap23(a, 21, 23, 24)
            a("v_mul_u32_u24 v23, 3456, v23")
            a("v_lshl_add_u32 v23, v22, 4, v23")
            a(f"v_add_u32 v{6+n}, s31, v23")
        a("s_lshl_b32 s46, s26, 10")
        a("s_lshl_b32 s45, s33, 10")
        a(f"s_add_u32 s45, s45, {XB}")
        a("s_mov_b32 s35, 0"); a("s_mov_b32 s36, 0")
    def dma():
        a("s_add_u32 s37, s34, s46")
        for m in range(4):
            a(f"s_add_u32 m0, s37, {m*4096}")
            a(f"s_add_u32 s38, s35, {m*32*1152}")
            a("buffer_load_dwordx4 v5, s[8:11], s38 offen lds")
        for n in range(5):
            if n < 4: a(f"s_add_u32 m0, s37, {XB + n*4096}")
            else:     a("s_add_u32 m0, s34, s45")
            a("s_nop 0")
            a(f"buffer_load_dwordx4 v{6+n}, s[12:15], s36 offen lds")
        a("s_add_u32 s35, s35, 128")
        a(f"s_add_u32 s36, s36, {64*3456}")
    def cons_setup():
        a("v_lshrrev_b32 v240, 1, v3")
        a("v_xor_b32 v241, v2, v240")
        a("s_lshl_b32 s30, s26, 5")
        a("v_add_u32 v242, s30, v3")
        a("v_lshlrev_b32 v242, 7, v242")
        a("v_lshl_add_u32 v8, v241, 4, v242")
        a("v_xor_b32 v241, 4, v241")
        a("v_lshl_add_u32 v9, v241, 4, v242")
        a("v_lshrrev_b32 v240, 1, v2")
        a("v_and_b32 v241, 1, v2")
        a("v_lshlrev_b32 v240, 4, v240")
        a("v_lshl_add_u32 v240, v241, 2, v240")
        a("v_lshrrev_b32 v241, 2, v3")
        a("v_add_u32 v240, v240, v241")
        a("v_mul_u32_u24 v240, 288, v240")
        a("v_and_b32 v241, 3, v3")
        a("v_lshl_add_u32 v10, v241, 3, v240")
        a(f"v_add_u32 v10, {XB}, v10")
        for r in range(112, 236): a(f"v_mov_b32 v{r}, 0")
        for r in range(236, 240): a(f"v_mov_b32 v{r}, 0x3f803f80")
        a("s_mov_b32 s42, 0")
    def mkbody(mode):
        def rd(ks, rel):
            b = 14 if rel else 11
            L = []
            for i in range(2):
                L.append(('r', (f"X{ks}{i}", rel), f"ds_read_b128 {vr(XF(ks,i),4)}, v{b+ks} offset:{i*2048}"))
            for j in range(9):
                for hh in range(2):
                    L.append(('r', (f"W{ks}{j}{hh}", rel), f"ds_read_b64_tr_b16 {vr(WF(ks,j)+2*hh,2)}, v{b+2} offset:{ks*32*288 + hh*8*288 + 32*j}"))
            return L
        def body():
            seq = []
            for ks in range(2):
                if ks == 1: seq.append(('x', '@BAR'))
                r = rd(1-ks, ks)
                ms = []
                for i in range(2):
                    X = vr(XF(ks,i),4)
                    ms.append(('m', [f"X{ks}{i}"], f"v_mfma_f32_16x16x32_bf16 {vr(S1(i),4)}, {vr(ONE,4)}, {X}, {vr(S1(i),4)}"))
                    ms.append(('m', [f"X{ks}{i}"], f"v_mfma_f32_16x16x32_bf16 {vr(S2(i),4)}, {X}, {X}, {vr(S2(i),4)}"))
                for j in range(9):
                    for i in range(2):
                        W = vr(WF(ks,j),4); X = vr(XF(ks,i),4); C = vr(ACC(i,j),4)
                        ops = f"{W}, {X}" if mode == "qk" else f"{X}, {W}"
                        ms.append(('m', [f"X{ks}{i}", f"W{ks}{j}0", f"W{ks}{j}1"], f"v_mfma_f32_16x16x32_bf16 {C}, {ops}, {C}"))
                k = 0
                for m in ms:
                    seq.append(m)
                    if k < len(r): seq.append(r[k]); k += 1
                l = a.newlabel("cw")
                seq.append(('x', "s_and_b32 s43, s42, 3"))
                seq.append(('x', "s_add_u32 s42, s42, 1"))
                seq.append(('x', "s_cmp_eq_u32 s43, s26"))
                seq.append(('x', f"s_cbranch_scc0 {l}"))
                for j in range(9):
                    W = vr(WF(ks,j),4); C = vr(CW(j),4)
                    ops = f"{W}, {vr(ONE,4)}" if mode == "qk" else f"{vr(ONE,4)}, {W}"
                    seq.append(('x', f"v_mfma_f32_16x16x32_bf16 {C}, {ops}, {C}"))
                seq.append(('x', f"@LAB {l}"))
            return seq
        return body
    P = 296
    def mkepi(mode):
        def epilogue():
            a("s_nop 7")
            a("s_barrier")
            a("s_mul_i32 s40, s26, 576")
            if mode == "qk":
                a("v_lshlrev_b32 v24, 4, v2")
                a("v_add_u32 v25, s40, v24")
                for j in range(9): a(f"ds_write_b128 v25, {vr(CW(j),4)} offset:{j*64}")
            else:
                a("v_lshlrev_b32 v24, 2, v3")
                a("v_add_u32 v25, s40, v24")
                for j in range(9): a(f"ds_write_b32 v25, v{CW(j)} offset:{j*64}")
            a("v_and_b32 v26, 3, v3")
            a("v_lshrrev_b32 v27, 2, v3")
            a("v_lshl_add_u32 v27, v27, 4, v3")
            a("v_lshlrev_b32 v27, 2, v27")
            for i in range(2):
                a(f"v_cmp_eq_u32 vcc, 1, v26"); a("s_nop 1")
                a(f"v_cndmask_b32 v{28+i}, v{S2(i)}, v{S2(i)+1}, vcc")
                a(f"v_cmp_eq_u32 vcc, 2, v26"); a("s_nop 1")
                a(f"v_cndmask_b32 v{28+i}, v{28+i}, v{S2(i)+2}, vcc")
                a(f"v_cmp_eq_u32 vcc, 3, v26"); a("s_nop 1")
                a(f"v_cndmask_b32 v{28+i}, v{28+i}, v{S2(i)+3}, vcc")
                a(f"ds_bpermute_b32 v{30+i}, v27, v{28+i}")
            a(f"s_mov_b32 s44, {f32hex(1.0/576)}")
            a(f"s_mov_b32 s45, {f32hex(1e-5)}")
            a("s_waitcnt lgkmcnt(0)")
            for i in range(2):
                a(f"v_mul_f32 v{28+i}, s44, v{S1(i)}")
                a(f"v_mul_f32 v{30+i}, s44, v{30+i}")
                a(f"v_fma_f32 v{30+i}, -v{28+i}, v{28+i}, v{30+i}")
                a(f"v_max_f32 v{30+i}, 0, v{30+i}")
                a(f"v_add_f32 v{30+i}, s45, v{30+i}")
                a(f"v_rsq_f32 v{32+i}, v{30+i}")
            a("s_nop 0")
            if mode == "qk":
                a(f"s_mov_b32 s43, {f32hex(QSCALE)}")
                a("s_cmp_eq_u32 s41, 0")
                a("s_cselect_b32 s43, s43, 1.0")
                for i in range(2): a(f"v_mul_f32 v{32+i}, s43, v{32+i}")
            for i in range(2): a(f"v_mul_f32 v{34+i}, v{28+i}, v{32+i}")
            a("s_barrier")
            a("s_and_b32 s44, s25, 3")
            a("s_lshl_b32 s44, s44, 3")
            a("s_lshl_b32 s27, s24, 7")
            a("s_lshl_b32 s30, s26, 5")
            a("s_add_u32 s27, s27, s30")
            a("s_mul_i32 s47, s26, 12288")
            a("s_add_u32 s47, s47, 4096")
            a("s_lshr_b32 s48, s27, 9")
            a(f"s_mul_i32 s48, s48, {CHUNK}")
            a("s_and_b32 s49, s27, 511")
            a(f"s_mul_i32 s50, s44, {HB}")
            a("s_add_u32 s48, s48, s50")
            if mode == "qk":
                for j in range(9):
                    a(f"ds_read_b128 {vr(40+4*j,4)}, v24 offset:{j*64}")
                    a(f"ds_read_b128 {vr(76+4*j,4)}, v24 offset:{576 + j*64}")
                a("s_waitcnt lgkmcnt(0)")
                for k in range(36): a(f"v_add_f32 v{40+k}, v{40+k}, v{76+k}")
                for j in range(9):
                    a(f"ds_read_b128 {vr(76+4*j,4)}, v24 offset:{2*576 + j*64}")
                    a(f"ds_read_b128 {vr(184+4*j,4)}, v24 offset:{3*576 + j*64}")
                a("s_waitcnt lgkmcnt(0)")
                for k in range(36):
                    a(f"v_add_f32 v{76+k}, v{76+k}, v{184+k}")
                    a(f"v_add_f32 v{40+k}, v{40+k}, v{76+k}")
                a(f"v_mul_u32_u24 v36, {P}, v3")
                a("v_lshl_add_u32 v36, v2, 3, v36")
                a("v_add_u32 v36, s47, v36")
                for i in range(2):
                    for j in range(9):
                        c = ACC(i,j)
                        for r in range(4):
                            a(f"v_mul_f32 v{96+r}, v{40+4*j+r}, v{34+i}")
                            a(f"v_fma_f32 v{96+r}, v{c+r}, v{32+i}, -v{96+r}")
                        a(f"v_cvt_pk_bf16_f32 v{c}, v96, v97")
                        a(f"v_cvt_pk_bf16_f32 v{c+1}, v98, v99")
                        a(f"ds_write_b64 v36, {vr(c,2)} offset:{i*16*P + 32*j}")
                lq = a.newlabel("isq")
                a("s_waitcnt lgkmcnt(0)")
                a("s_cmp_eq_u32 s41, 0")
                a(f"s_cbranch_scc1 {lq}")
                a("v_and_b32 v37, 31, v1")
                a("v_lshrrev_b32 v38, 5, v1")
                a(f"v_mul_u32_u24 v39, {P}, v37")
                a("v_add_u32 v39, s47, v39")
                a("v_lshl_add_u32 v40, v38, 4, v39")
                a("v_lshlrev_b32 v41, 4, v1")
                a("s_lshr_b32 s50, s49, 5")
                a("s_lshl_b32 s50, s50, 10")
                a("s_add_u32 s50, s50, s48")
                for h in range(8):
                    b = 48 + 4*h
                    a(f"ds_read2_b32 {vr(b,2)}, v40 offset0:{9*h} offset1:{9*h+1}")
                    a(f"ds_read2_b32 {vr(b+2,2)}, v40 offset0:{9*h+2} offset1:{9*h+3}")
                a("v_mul_u32_u24 v42, 36, v38")
                a("v_add_u32 v42, v42, v39")
                for p in range(4): a(f"ds_read_b32 v{80+2*p}, v42 offset:{72*p + 32}")
                for p in range(4): a(f"v_mov_b32 v{81+2*p}, 0x00003f80")
                a(f"s_mov_b32 s51, {HB}")
                a("v_mul_lo_u32 v43, v38, s51")
                a("v_lshl_add_u32 v43, v37, 3, v43")
                a("s_lshl_b32 s51, s49, 3")
                a("s_add_u32 s51, s51, s48")
                a("s_add_u32 s51, s51, 16384")
                a("s_waitcnt lgkmcnt(0)")
                for h in range(8):
                    a(f"buffer_store_dwordx4 {vr(48+4*h,4)}, v41, s[20:23], s50 offen")
                    if h < 7: a(f"s_add_u32 s50, s50, {HB}")
                for p in range(4):
                    a(f"buffer_store_dwordx2 {vr(80+2*p,2)}, v43, s[20:23], s51 offen")
                    if p < 3: a(f"s_add_u32 s51, s51, {2*HB}")
                a(f"s_branch {a.name}_done")
                a.lab(lq)
                for n in range(3):
                    a(f"v_add_u32 v37, {64*n}, v1")
                    a("v_cmp_le_u32 vcc, 96, v37"); a("s_nop 1")
                    a("v_cndmask_b32 v38, 0, 1, vcc")
                    a("v_mul_u32_u24 v39, 96, v38")
                    a("v_sub_u32 v37, v37, v39")
                    a("v_mul_u32_u24 v39, 171, v37")
                    a("v_lshrrev_b32 v39, 9, v39")
                    a("v_mul_u32_u24 v40, 3, v39")
                    a("v_sub_u32 v40, v37, v40")
                    a(f"v_mul_u32_u24 v41, {P}, v39")
                    a("v_mul_u32_u24 v42, 36, v38")
                    a("v_add_u32 v41, v41, v42")
                    a("v_lshl_add_u32 v41, v40, 4, v41")
                    a(f"v_add_u32 v{44+n}, s47, v41")
                    a("v_mul_u32_u24 v41, 48, v39")
                    a("v_lshl_add_u32 v41, v40, 4, v41")
                    a("s_mov_b32 s51, 98304")
                    a("v_mul_lo_u32 v42, v38, s51")
                    a(f"v_add_u32 v{100+n}, v41, v42")
                for p in range(4):
                    for n in range(3):
                        b = 48 + (p*3+n)*4
                        a(f"ds_read2_b32 {vr(b,2)}, v{44+n} offset0:{18*p} offset1:{18*p+1}")
                        a(f"ds_read2_b32 {vr(b+2,2)}, v{44+n} offset0:{18*p+2} offset1:{18*p+3}")
                a("s_lshl_b32 s50, s44, 11")
                a("s_add_u32 s50, s50, s27")
                a("s_mul_i32 s50, s50, 48")
                a("s_waitcnt lgkmcnt(0)")
                for p in range(4):
                    for n in range(3):
                        a(f"buffer_store_dwordx4 {vr(48+(p*3+n)*4,4)}, v{100+n}, s[16:19], s50 offen")
                    if p < 3: a(f"s_add_u32 s50, s50, {2*98304}")
                a(f"s_branch {a.name}_done")
            else:
                for j in range(9):
                    for w in range(4): a(f"ds_read_b32 v{184+4*j+w}, v24 offset:{w*576 + j*64}")
                a("s_waitcnt lgkmcnt(0)")
                for j in range(9):
                    b = 184 + 4*j
                    a(f"v_add_f32 v{b}, v{b}, v{b+1}"); a(f"v_add_f32 v{b+2}, v{b+2}, v{b+3}")
                    a(f"v_add_f32 v{40+j}, v{b}, v{b+2}")
                a("s_lshl_b32 s45, s26, 8")
                a("s_add_u32 s45, s45, 2304")
                a("v_lshl_add_u32 v96, v3, 2, s45")
                for i in range(2):
                    a(f"ds_write_b32 v96, v{32+i} offset:{i*64}")
                    a(f"ds_write_b32 v96, v{34+i} offset:{128 + i*64}")
                a("v_lshl_add_u32 v97, v2, 4, s45")
                a("v_lshrrev_b32 v98, 2, v1")
                a("v_mul_u32_u24 v98, 1216, v98")
                a("v_and_b32 v99, 3, v1")
                a("v_mul_u32_u24 v99, 304, v99")
                a("v_add3_u32 v98, v98, v99, s47")
                a("v_cmp_gt_u32 vcc, 32, v1")
                a("s_and_saveexec_b64 s[52:53], vcc")
                a(f"ds_write_b128 v98, {vr(ONE,4)} offset:288")
                a("s_mov_b64 exec, s[52:53]")
                a("s_waitcnt lgkmcnt(0)")
                for i in range(2):
                    a(f"ds_read_b128 {vr(52+8*i,4)}, v97 offset:{i*64}")
                    a(f"ds_read_b128 {vr(56+8*i,4)}, v97 offset:{128+i*64}")
                a("v_and_b32 v98, 1, v2")
                a("v_mul_u32_u24 v98, 304, v98")
                a("v_lshrrev_b32 v99, 1, v2")
                a("v_lshl_add_u32 v98, v99, 3, v98")
                a("v_add_u32 v98, s47, v98")
                a("s_waitcnt lgkmcnt(0)")
                for j in range(9):
                    a(f"v_add_u32 v106, {16*j}, v3")
                    a("v_mul_u32_u24 v107, 3641, v106")
                    a("v_lshrrev_b32 v107, 16, v107")
                    a("v_mul_u32_u24 v108, 18, v107")
                    a("v_sub_u32 v108, v106, v108")
                    a("v_mul_u32_u24 v107, 1216, v107")
                    a("v_lshl_add_u32 v107, v108, 4, v107")
                    a("v_add_u32 v107, v107, v98")
                    for i in range(2):
                        c = ACC(i,j)
                        for r in range(4):
                            a(f"v_mul_f32 v{100+r}, v{40+j}, v{56+8*i+r}")
                            a(f"v_fma_f32 v{100+r}, v{c+r}, v{52+8*i+r}, -v{100+r}")
                        a(f"v_cvt_pk_bf16_f32 v{c}, v100, v101")
                        a(f"v_cvt_pk_bf16_f32 v{c+1}, v102, v103")
                        a(f"ds_write_b64 v107, {vr(c,2)} offset:{i*608}")
                a("v_lshl_add_u32 v96, v1, 4, s47")
                a("s_waitcnt lgkmcnt(0)")
                for n in range(10): a(f"ds_read_b128 {vr(40+4*n,4)}, v96 offset:{n*1024}")
                a("s_lshr_b32 s50, s49, 4")
                a("s_mul_i32 s50, s50, 608")
                a("s_add_u32 s50, s50, s48")
                a("s_add_u32 s50, s50, 20480")
                a(f"s_mov_b32 s51, {HB-1216}")
                for n in range(10):
                    a(f"v_add_u32 v100, {64*n}, v1")
                    a("v_mul_u32_u24 v101, 863, v100")
                    a("v_lshrrev_b32 v101, 16, v101")
                    a("v_mul_lo_u32 v101, v101, s51")
                    a(f"v_lshl_add_u32 v{84+n}, v100, 4, v101")
                a("s_waitcnt lgkmcnt(0)")
                for n in range(10):
                    if n == 9: a("s_and_saveexec_b64 s[52:53], vcc")
                    a(f"buffer_store_dwordx4 {vr(40+4*n,4)}, v{84+n}, s[20:23], s50 offen")
                a("s_mov_b64 exec, s[52:53]")
        return epilogue
    skeleton2(a, R, STG, NST, 9, loader_setup, dma, cons_setup, [("s_cmp_eq_u32 s41, 2", mkbody("qk"), mkepi("qk")), (None, mkbody("v"), mkepi("v"))], (8, 3))
    return a.text(), descriptor(a.name, 256, 0), f"; @launch kernel={a.name} grid=(192,1,1) block=(512,1,1) lds={R*STG}"


def k3():
    a = Asm("oproj_kernel"); header(a)
    R = 6; OB = 8192; STG = 20480; NST = 9
    ACC = lambda i, j: 72 + (i*3 + j)*4
    OF = lambda ks, i: 24 + (ks*2 + i)*4
    WF = lambda ks, j: 40 + (ks*3 + j)*4
    XR = lambda i, j: 96 + (i*3 + j)*2
    common_entry(a, 192, [(4, 0), (6, 16), (28, 80)])
    a("s_and_b32 s24, s2, 7")
    a("s_mul_i32 s24, s24, 24")
    a("s_lshr_b32 s25, s2, 3")
    a("s_add_u32 s24, s24, s25")
    a("s_mul_i32 s25, s24, 10923")
    a("s_lshr_b32 s25, s25, 16")
    a("s_mul_i32 s30, s25, 6")
    a("s_sub_u32 s24, s24, s30")
    a("s_waitcnt lgkmcnt(0)")
    srd_from_arg(a, 8, 0, S*D*2, 4)
    srd_from_arg(a, 12, 16, D*D*2, 6)
    srd_ws(a, 16, 28, WS_O, SZ_SD)
    srd_ws(a, 20, 28, WS_H, SZ_SD)
    srd_ws(a, 44, 28, WS_ST, SZ_ST)
    stamp_begin(a)
    def loader_setup():
        a("s_lshl_b32 s30, s26, 2")
        a("v_add_u32 v10, s30, v2")
        a("v_and_b32 v10, 7, v10")
        a("v_and_b32 v11, 7, v1")
        a("v_xor_b32 v10, v10, v11")
        a("v_lshrrev_b32 v11, 3, v1")
        a("s_lshl_b32 s30, s25, 6")
        a("s_lshl_b32 s31, s26, 3")
        a("s_add_u32 s30, s30, s31")
        a("v_add_u32 v11, s30, v11")
        a("v_mul_u32_u24 v11, 1152, v11")
        a("v_lshl_add_u32 v5, v10, 4, v11")
        a("s_mul_i32 s30, s26, 192")
        a("s_mul_i32 s31, s24, 192")
        for m in range(3):
            a("v_add_u32 v20, s30, v1")
            if m: a(f"v_add_u32 v20, {64*m}, v20")
            a("v_mul_u32_u24 v21, 43691, v20")
            a("v_lshrrev_b32 v21, 19, v21")
            a("v_mul_u32_u24 v22, 12, v21")
            a("v_sub_u32 v22, v20, v22")
            a("v_lshrrev_b32 v23, 2, v21")
            a("v_and_b32 v23, 2, v23")
            a("v_xor_b32 v22, v22, v23")
            a("v_mul_u32_u24 v21, 1152, v21")
            a("v_lshl_add_u32 v21, v22, 4, v21")
            a(f"v_add_u32 v{6+m}, s31, v21")
        a("s_lshl_b32 s46, s26, 10")
        a("s_mul_i32 s45, s26, 3072")
        a(f"s_add_u32 s45, s45, {OB}")
        a("s_mov_b32 s35, 0"); a("s_mov_b32 s36, 0")
    def dma():
        a("s_add_u32 s37, s34, s46")
        for m in range(2):
            a(f"s_add_u32 m0, s37, {m*4096}")
            a(f"s_add_u32 s38, s35, {m*32*1152}")
            a("buffer_load_dwordx4 v5, s[16:19], s38 offen lds")
        a("s_add_u32 s37, s34, s45")
        for m in range(3):
            a(f"s_add_u32 m0, s37, {m*1024}")
            a("s_nop 0")
            a(f"buffer_load_dwordx4 v{6+m}, s[12:15], s36 offen lds")
        a("s_add_u32 s35, s35, 128")
        a(f"s_add_u32 s36, s36, {64*1152}")
    def cons_setup():
        a("s_lshr_b32 s41, s26, 1")
        a("s_and_b32 s42, s26, 1")
        a("v_lshrrev_b32 v110, 1, v3")
        a("v_xor_b32 v111, v2, v110")
        a("s_lshl_b32 s30, s41, 5")
        a("v_add_u32 v112, s30, v3")
        a("v_lshlrev_b32 v112, 7, v112")
        a("v_lshl_add_u32 v6, v111, 4, v112")
        a("v_xor_b32 v111, 4, v111")
        a("v_lshl_add_u32 v7, v111, 4, v112")
        a("v_lshrrev_b32 v110, 2, v3")
        a("v_and_b32 v111, 3, v3")
        a("v_lshl_add_u32 v112, v2, 3, v110")
        a("v_mul_u32_u24 v112, 192, v112")
        a("v_and_b32 v113, 1, v111")
        a("v_lshl_add_u32 v112, v113, 3, v112")
        a(f"v_add_u32 v112, {OB}, v112")
        a("v_lshrrev_b32 v113, 1, v111")
        a("s_mul_i32 s30, s42, 6")
        a("v_add_u32 v113, s30, v113")
        a("v_and_b32 v114, 1, v2")
        a("v_lshlrev_b32 v114, 1, v114")
        for j in range(3):
            a(f"v_add_u32 v115, {2*j}, v113")
            a("v_xor_b32 v115, v115, v114")
            a(f"v_lshl_add_u32 v{8+j}, v115, 4, v112")
        for r in range(72, 96): a(f"v_mov_b32 v{r}, 0")
        a("s_lshl_b32 s27, s25, 6")
        a("s_lshl_b32 s30, s41, 5")
        a("s_add_u32 s27, s27, s30")
        a("v_add_u32 v110, s27, v3")
        a("v_mul_u32_u24 v111, 1152, v110")
        a("v_lshl_add_u32 v111, v2, 3, v111")
        a("s_mul_i32 s30, s24, 192")
        a("s_mul_i32 s31, s42, 96")
        a("s_add_u32 s30, s30, s31")
        a("v_add_u32 v111, s30, v111")
        a("s_mov_b32 s43, 18432")
        for i in range(2):
            for j in range(3):
                a(f"buffer_load_dwordx2 {vr(XR(i,j),2)}, v111, s[8:11], {'s43' if i else '0'} offen offset:{32*j}")
        a("v_mul_u32_u24 v110, 192, v110")
        a("v_lshl_add_u32 v110, v2, 3, v110")
        a(f"s_mul_i32 s30, s24, {2048*192}")
        a("s_add_u32 s30, s30, s31")
        a("v_add_u32 v108, s30, v110")
    def rd(ks, rel):
        b = 16 if rel else 11
        L = []
        for i in range(2):
            L.append(('r', (f"O{ks}{i}", rel), f"ds_read_b128 {vr(OF(ks,i),4)}, v{b+ks} offset:{i*2048}"))
        for j in range(3):
            for hh in range(2):
                L.append(('r', (f"W{ks}{j}{hh}", rel), f"ds_read_b64_tr_b16 {vr(WF(ks,j)+2*hh,2)}, v{b+2+j} offset:{ks*6144 + hh*768}"))
        return L
    def body():
        seq = []
        for ks in range(2):
            if ks == 1: seq.append(('x', '@BAR'))
            r = rd(1-ks, ks)
            ms = []
            for j in range(3):
                for i in range(2):
                    C = vr(ACC(i,j),4)
                    ms.append(('m', [f"O{ks}{i}", f"W{ks}{j}0", f"W{ks}{j}1"], f"v_mfma_f32_16x16x32_bf16 {C}, {vr(WF(ks,j),4)}, {vr(OF(ks,i),4)}, {C}"))
            k = 0
            for idx, m in enumerate(ms):
                seq.append(m)
                n = 2 if idx < 2 else 1
                seq += r[k:k+n]; k += n
        return seq
    def epilogue():
        a("s_waitcnt vmcnt(0)")
        a("s_nop 7")
        for r in range(24, 28): a(f"v_mov_b32 v{r}, 0")
        for i in range(2):
            for j in range(3):
                c = ACC(i,j); x = XR(i,j)
                a(f"v_lshlrev_b32 v40, 16, v{x}")
                a(f"v_and_b32 v41, 0xffff0000, v{x}")
                a(f"v_lshlrev_b32 v42, 16, v{x+1}")
                a(f"v_and_b32 v43, 0xffff0000, v{x+1}")
                for r in range(4): a(f"v_add_f32 v{40+r}, v{40+r}, v{c+r}")
                a(f"v_cvt_pk_bf16_f32 v{x}, v40, v41")
                a(f"v_cvt_pk_bf16_f32 v{x+1}, v42, v43")
                a(f"buffer_store_dwordx2 {vr(x,2)}, v108, s[20:23], 0 offen offset:{i*3072 + 32*j}")
                a(f"v_lshlrev_b32 v40, 16, v{x}")
                a(f"v_and_b32 v41, 0xffff0000, v{x}")
                a(f"v_lshlrev_b32 v42, 16, v{x+1}")
                a(f"v_and_b32 v43, 0xffff0000, v{x+1}")
                for r in range(4):
                    a(f"v_add_f32 v{24+i}, v{24+i}, v{40+r}")
                    a(f"v_fmac_f32 v{26+i}, v{40+r}, v{40+r}")
        a("v_xor_b32 v30, 16, v1"); a("v_lshlrev_b32 v30, 2, v30")
        a("v_xor_b32 v31, 32, v1"); a("v_lshlrev_b32 v31, 2, v31")
        for addr in ("v30", "v31"):
            for r in range(4): a(f"ds_bpermute_b32 v{32+r}, {addr}, v{24+r}")
            a("s_waitcnt lgkmcnt(0)")
            for r in range(4): a(f"v_add_f32 v{24+r}, v{24+r}, v{32+r}")
        X = R*STG
        a("s_lshl_b32 s30, s26, 8")
        a(f"s_add_u32 s30, s30, {X}")
        a("v_lshl_add_u32 v36, v3, 3, s30")
        for i in range(2):
            a(f"v_mov_b32 v{40+2*i}, v{24+i}"); a(f"v_mov_b32 v{41+2*i}, v{26+i}")
            a(f"ds_write_b64 v36, {vr(40+2*i,2)} offset:{i*128}")
        a("s_waitcnt lgkmcnt(0)")
        a("s_barrier")
        a("s_cmp_eq_u32 s42, 0")
        a(f"s_cbranch_scc0 {a.name}_done")
        for i in range(2): a(f"ds_read_b64 {vr(44+2*i,2)}, v36 offset:{256 + i*128}")
        a("s_lshl_b32 s30, s24, 11")
        a("s_add_u32 s30, s30, s27")
        a("v_add_u32 v37, s30, v3")
        a("v_lshlrev_b32 v37, 3, v37")
        a("v_cmp_gt_u32 vcc, 16, v1")
        a("s_waitcnt lgkmcnt(0)")
        for r in range(4): a(f"v_add_f32 v{40+r}, v{40+r}, v{44+r}")
        a("s_and_saveexec_b64 s[52:53], vcc")
        for i in range(2): a(f"buffer_store_dwordx2 {vr(40+2*i,2)}, v37, s[44:47], 0 offen offset:{i*128}")
        a("s_mov_b64 exec, s[52:53]")
    skeleton(a, R, STG, NST, 5, loader_setup, dma, cons_setup, body, (6, 5), epilogue)
    return a.text(), descriptor(a.name, 120, 0), f"; @launch kernel={a.name} grid=(192,1,1) block=(512,1,1) lds={R*STG + 1024}"


def k3b():
    a = Asm("ln_kernel"); header(a)
    a("s_cmp_ge_u32 s2, 576")
    a(f"s_cbranch_scc1 {a.name}_end")
    a("s_load_dwordx2 s[28:29], s[0:1], 80")
    a("s_lshl_b32 s3, s2, 8")
    a("v_add_u32 v1, s3, v0")
    a("v_lshlrev_b32 v2, 4, v1")
    a("s_mul_i32 s4, s2, 683")
    a("s_lshr_b32 s4, s4, 16")
    a("s_mul_i32 s4, s4, 24576")
    a("v_subrev_u32 v3, s4, v1")
    a("v_mul_u32_u24 v3, 43691, v3")
    a("v_lshrrev_b32 v3, 19, v3")
    a("v_lshlrev_b32 v3, 3, v3")
    a("s_waitcnt lgkmcnt(0)")
    srd_ws(a, 8, 28, WS_H, SZ_SD)
    srd_ws(a, 12, 28, WS_G, SZ_SD)
    srd_ws(a, 16, 28, WS_ST, SZ_ST)
    a("buffer_load_dwordx4 v[4:7], v2, s[8:11], 0 offen")
    for p in range(6):
        a(f"s_mov_b32 s20, {p*16384}")
        a(f"buffer_load_dwordx2 {vr(8+2*p,2)}, v3, s[16:19], s20 offen")
    a(f"s_mov_b32 s41, {f32hex(1.0/576)}")
    a(f"s_mov_b32 s42, {f32hex(1e-5)}")
    a("s_waitcnt vmcnt(0)")
    b = 8
    for c in range(2):
        a(f"v_add_f32 v{b+c}, v{b+c}, v{b+2+c}")
        a(f"v_add_f32 v{b+4+c}, v{b+4+c}, v{b+6+c}")
        a(f"v_add_f32 v{b+8+c}, v{b+8+c}, v{b+10+c}")
        a(f"v_add_f32 v{b+c}, v{b+c}, v{b+4+c}")
        a(f"v_add_f32 v{b+c}, v{b+c}, v{b+8+c}")
    a(f"v_mul_f32 v{b}, s41, v{b}")
    a(f"v_mul_f32 v{b+1}, s41, v{b+1}")
    a(f"v_fma_f32 v{b+1}, -v{b}, v{b}, v{b+1}")
    a(f"v_max_f32 v{b+1}, 0, v{b+1}")
    a(f"v_add_f32 v{b+2}, s42, v{b+1}")
    a(f"v_rcp_f32 v{b+3}, v{b+2}")
    a(f"v_rsq_f32 v{b+4}, v{b+2}")
    a("s_nop 0")
    a(f"v_mul_f32 v{b+3}, v{b+3}, v{b+1}")
    a(f"v_add_f32 v{b+3}, s42, v{b+3}")
    a(f"v_rsq_f32 v{b+3}, v{b+3}")
    a("s_nop 0")
    a(f"v_mul_f32 v{b+6}, v{b+3}, v{b+4}")
    a(f"v_mul_f32 v{b+7}, v{b+6}, v{b}")
    for r in range(4):
        a(f"v_lshlrev_b32 v20, 16, v{4+r}")
        a(f"v_and_b32 v21, 0xffff0000, v{4+r}")
        a(f"v_fma_f32 v20, v20, v14, -v15")
        a(f"v_fma_f32 v21, v21, v14, -v15")
        a(f"v_cvt_pk_bf16_f32 v{4+r}, v20, v21")
    a("buffer_store_dwordx4 v[4:7], v2, s[12:15], 0 offen")
    a.lab(f"{a.name}_end")
    a("s_endpgm")
    return a.text(), descriptor(a.name, 24, 0), f"; @launch kernel={a.name} grid=(576,1,1) block=(256,1,1) lds=0"


def build(kernels):
    hdr = "; generated by gen.py\n"
    texts, descs, launches = [], [], []
    for k in kernels:
        t, d, l = k()
        texts.append(t); descs.append(d); launches.append(l)
    if 'dup3' in FL: launches.append(launches[2])
    if 'dup45' in FL: launches = launches[:4] + [launches[3], launches[4], launches[4], launches[5]]
    out = hdr + "\n".join(launches) + "\n"
    out += '.amdgcn_target "amdgcn-amd-amdhsa--gfx950"\n.text\n'
    out += "\n".join(texts)
    out += '.section .rodata,"a"\n' + "\n".join(descs)
    return out

if __name__ == "__main__":
    ks = [k1, k2, k3, k3b, k4, k5, k6]
    out = build(ks)
    open(sys.argv[1] if len(sys.argv) > 1 else "out.s", "w").write(out)
```

```python
import sys, math, os
FL = os.environ.get('FLAGS', '').split(',')

S, D, F, H, DH = 2048, 576, 4608, 32, 18
WS_Q  = 0x0        ; SZ_Q  = 32*2048*48
WS_KV = 0x300000   ; HB = 159744 ; SZ_KV = 32*HB + 8192
WS_O  = 0x800000   ; SZ_SD = 2048*576*2
WS_H  = 0xA80000
WS_G  = 0xD00000
WS_ST = 0xF80000   ; SZ_ST = 6*2048*8
WS_U  = 0x1000000  ; SZ_U = 576*4608*2
WS_P  = 0x1800000  ; SZ_P = 4*2048*576*4
CHUNK = 39936
LOG2E = 1.4426950408889634
QSCALE = (18 ** -0.5) * LOG2E

import struct
def f32hex(x):
    return "0x%08x" % struct.unpack("<I", struct.pack("<f", x))[0]

class Asm:
    def __init__(s, name):
        s.name = name; s.t = []; s.nl = 0
    def __call__(s, line):
        if s.name in ('mlp1_kernel', 'mlp2_kernel'):
            if 'gnomfma' in FL and line.startswith('v_mfma'): return
            if 'gnords' in FL and line.startswith('ds_read'): return
            if 'gnodma' in FL and line.startswith('buffer_load') and line.endswith('lds'): return
            if 'gnobar' in FL and line.startswith('s_barrier'): return
            if 'gnopk' in FL and (line.startswith('v_pk_fma') or line.startswith('v_cvt_pk_bf16_f32 v3') or line.startswith('v_cvt_pk_bf16_f32 v4') or line.startswith('v_cvt_pk_bf16_f32 v5') or line.startswith('v_cvt_pk_bf16_f32 v6') or line.startswith('v_cvt_pk_bf16_f32 v7') or line.startswith('v_lshlrev_b32 v28') or line.startswith('v_and_b32 v29') or line.startswith('v_cvt_pk_bf16_f32 v8') or line.startswith('v_cvt_pk_bf16_f32 v9') or line.startswith('v_cvt_pk_bf16_f32 v10') or line.startswith('v_cvt_pk_bf16_f32 v11')): return
            if 'gnowr' in FL and line.startswith('ds_write_b128'): return
            if 'gnohl' in FL and line.startswith('buffer_load_dwordx4 v['): return
        if s.name == 'qkv_kernel':
            if 'k1nostore' in FL and line.startswith('buffer_store'): return
            if 'k1nomfma' in FL and line.startswith('v_mfma'): return
            if 'k1nodot' in FL and line.startswith('v_dot2c'): return
            if 'k1notr' in FL and line.startswith('ds_read_b64_tr'): return
            if 'k1noa' in FL and line.startswith('buffer_load_dwordx4 v['): return
            if 'k1nodma' in FL and line.startswith('buffer_load') and line.endswith('lds'): return
            if 'k1nobar' in FL and line.startswith('s_barrier'): return
        s.t.append("    " + line)
    def lab(s, l):
        s.t.append(l + ":")
    def newlabel(s, p="L"):
        s.nl += 1
        return f"{s.name}_{p}{s.nl}"
    def text(s):
        return "\n".join(s.t) + "\n"

def vr(b, n):  return f"v[{b}:{b+n-1}]"
def ar(b, n):  return f"a[{b}:{b+n-1}]"
def sr(b, n):  return f"s[{b}:{b+n-1}]"

def srd_from_arg(a, sreg, argoff, size, tmp):
    a(f"s_mov_b32 s{sreg}, s{tmp}")
    a(f"s_mov_b32 s{sreg+1}, s{tmp+1}")
    a(f"s_mov_b32 s{sreg+2}, {size}")
    a(f"s_mov_b32 s{sreg+3}, 0x00020000")

def srd_ws(a, sreg, wsreg, off, size):
    a(f"s_add_u32 s{sreg}, s{wsreg}, {off}")
    a(f"s_addc_u32 s{sreg+1}, s{wsreg+1}, 0")
    a(f"s_mov_b32 s{sreg+2}, {size}")
    a(f"s_mov_b32 s{sreg+3}, 0x00020000")

def stamp_begin(a, wsreg=28):
    if 'stamp_' + a.name[:4] in FL:
        srd_ws(a, 80, wsreg, 0x3000000, 0x100000)
        a("s_memtime s[84:85]"); a("s_memrealtime s[86:87]")
def stamp_mid(a, k):
    if 'stamp_' + a.name[:4] in FL:
        a(f"s_memtime s[{88+2*k}:{89+2*k}]")
def stamp_end(a, nwaves, wavereg=26):
    if 'stamp_' + a.name[:4] in FL:
        a("s_memtime s[92:93]"); a("s_memrealtime s[94:95]"); a("s_waitcnt lgkmcnt(0)")
        a("s_sub_u32 s88, s88, s84"); a("s_sub_u32 s92, s92, s84"); a("s_sub_u32 s94, s94, s86"); a("s_sub_u32 s90, s90, s84")
        a("v_mov_b32 v16, s88"); a("v_mov_b32 v17, s92"); a("v_mov_b32 v18, s94"); a("v_mov_b32 v19, s90")
        a(f"s_mul_i32 s70, s2, {nwaves}"); a(f"s_add_u32 s70, s70, s{wavereg}"); a("s_lshl_b32 s70, s70, 4")
        a("v_mov_b32 v20, s70")
        a("buffer_store_dwordx4 v[16:19], v20, s[80:83], 0 offen")

def prefetch(a, srd, nlines, nshare, share_sgpr, addr_fn, vt=250, wave_sgpr=26, nwaves=4, dst=255):
    if 'pf' not in FL: return
    per = (nlines + nshare - 1)//nshare
    nt = (per + 64*nwaves - 1)//(64*nwaves)
    a(f"s_lshl_b32 s60, s{wave_sgpr}, 6")
    for t in range(nt):
        a(f"v_add_u32 v{vt}, s60, v1")
        if t: a(f"v_add_u32 v{vt}, {t*nwaves*64}, v{vt}")
        if nshare > 1:
            a(f"v_mul_u32_u24 v{vt}, {nshare}, v{vt}")
            a(f"v_add_u32 v{vt}, s{share_sgpr}, v{vt}")
        addr_fn(vt, vt+1)
        a(f"buffer_load_dword v{dst}, v{vt+1}, s[{srd}:{srd+3}], 0 offen")

def header(a):
    a.t.append(f".globl {a.name}\n.p2align 8\n.type {a.name},@function\n{a.name}:")

def descriptor(name, vgpr, agpr, sgpr=96):
    acc = (vgpr + 3) // 4 * 4
    return f""".p2align 6
.amdhsa_kernel {name}
  .amdhsa_next_free_vgpr {acc + agpr if agpr else vgpr}
  .amdhsa_next_free_sgpr {sgpr}
  .amdhsa_accum_offset {acc}
  .amdhsa_group_segment_fixed_size 0
  .amdhsa_kernarg_size 88
  .amdhsa_user_sgpr_count 2
  .amdhsa_user_sgpr_kernarg_segment_ptr 1
  .amdhsa_system_sgpr_workgroup_id_x 1
.end_amdhsa_kernel
"""

def interleave(main, *fill):
    out = []
    n = len(main)
    pos = [0]*len(fill)
    for idx, m in enumerate(main):
        out.append(m)
        for fi, f in enumerate(fill):
            tgt = (idx+1)*len(f)//n
            while pos[fi] < tgt:
                out.append(f[pos[fi]]); pos[fi] += 1
    return out

def k2():
    a = Asm("attn_kernel"); header(a)
    Q1, Q2 = 8, 12
    KF1 = lambda b: 16 + 8*b
    KF2 = lambda b: 20 + 8*b
    VF = lambda b, t: 32 + 8*b + 4*t
    SS = lambda b: 48 + 16*b
    PP = lambda b: 80 + 8*b
    E = 96; O = 112
    a("s_cmp_ge_u32 s2, 256")
    a(f"s_cbranch_scc1 {a.name}_end")
    a("s_load_dwordx2 s[28:29], s[0:1], 80")
    a("s_load_dwordx2 s[4:5], s[0:1], 32")
    a("s_load_dwordx2 s[6:7], s[0:1], 48")
    a("s_and_b32 s24, s2, 7")
    a("s_lshl_b32 s24, s24, 2")
    a("s_lshr_b32 s25, s2, 3")
    a("s_and_b32 s25, s25, 3")
    a("s_add_u32 s24, s24, s25")
    a("s_lshr_b32 s25, s2, 5")
    a("v_and_b32 v1, 63, v0")
    a("v_lshrrev_b32 v2, 5, v1")
    a("v_and_b32 v3, 31, v1")
    a("v_lshrrev_b32 v4, 6, v0")
    a("s_nop 1")
    a("v_readfirstlane_b32 s26, v4")
    a("s_waitcnt lgkmcnt(0)")
    srd_ws(a, 8, 28, WS_Q, SZ_Q)
    srd_ws(a, 12, 28, WS_KV, SZ_KV)
    srd_ws(a, 16, 28, WS_O, SZ_SD)
    srd_from_arg(a, 44, 32, S*F*2, 4)
    srd_from_arg(a, 48, 48, S*F*2, 6)
    if 'stamp' in FL:
        srd_ws(a, 20, 28, 0x3000000, 0x100000)
        a("s_memtime s[60:61]"); a("s_memrealtime s[62:63]")
    a("s_lshl_b32 s27, s25, 8")
    a("s_lshl_b32 s30, s26, 5")
    a("s_add_u32 s27, s27, s30")
    a("s_lshl_b32 s30, s24, 11")
    a("s_add_u32 s30, s30, s27")
    a("v_add_u32 v128, s30, v3")
    a("v_mul_u32_u24 v128, 48, v128")
    a("v_lshl_add_u32 v129, v2, 4, v128")
    a(f"buffer_load_dwordx4 {vr(Q1,4)}, v129, s[8:11], 0 offen")
    a(f"buffer_load_dword v{Q2}, v128, s[8:11], 0 offen offset:32")
    a(f"s_mul_i32 s30, s24, {HB}")
    a("s_lshl_b32 s31, s26, 10")
    a("s_add_u32 s30, s30, s31")
    a("v_lshl_add_u32 v4, v1, 4, s30")
    for n in range(20):
        a(f"s_add_u32 m0, s31, {n*8192}")
        a(f"s_mov_b32 s32, {n*8192}")
        a(f"buffer_load_dwordx4 v4, s[12:15], s32 offen lds")
    a("v_lshlrev_b32 v5, 4, v1")
    a("v_lshlrev_b32 v6, 3, v3")
    a("v_add_u32 v6, 16384, v6")
    a("v_min_u32 v7, 18, v3")
    a("v_lshlrev_b32 v7, 4, v7")
    a("v_mul_u32_u24 v130, 304, v2")
    a("v_add_u32 v7, v7, v130")
    a("v_add_u32 v7, 20480, v7")
    a("v_mov_b32 v131, v5"); a("v_mov_b32 v132, v6"); a("v_mov_b32 v133, v7")
    for r in list(range(KF2(0)+2, KF2(0)+4)) + list(range(KF2(1)+2, KF2(1)+4)) + list(range(32, 48)) + list(range(80, 96)) + list(range(O, O+16)) + [Q2+1, Q2+2, Q2+3]:
        a(f"v_mov_b32 v{r}, 0")
    a("v_cmp_gt_u32 s[34:35], 32, v1")
    a("s_and_b32 s52, s2, 7")
    a("s_lshr_b32 s53, s2, 3")
    a("s_lshl_b32 s53, s53, 3")
    a("s_add_u32 s53, s53, s26")
    a("s_mul_i32 s56, s53, 9")
    a("s_lshr_b32 s56, s56, 1")
    a("s_lshr_b32 s57, s52, 1")
    a("s_mul_i32 s57, s57, 1152")
    a("s_add_u32 s56, s56, s57")
    a("s_lshl_b32 s56, s56, 12")
    a("s_and_b32 s57, s52, 1")
    a("s_lshl_b32 s57, s57, 11")
    a("s_add_u32 s56, s56, s57")
    a("v_lshl_add_u32 v138, v1, 7, s56")
    a("v_mul_u32_u24 v139, 57, v1")
    a("v_lshrrev_b32 v139, 9, v139")
    a("v_mul_u32_u24 v140, 9, v139")
    a("v_sub_u32 v140, v1, v140")
    a("s_lshl_b32 s56, s53, 3")
    a("v_add_u32 v139, s56, v139")
    a("v_mul_u32_u24 v139, 9216, v139")
    a("v_lshl_add_u32 v139, v140, 7, v139")
    a("s_mul_i32 s56, s52, 1152")
    a("v_add_u32 v139, s56, v139")
    a("s_mov_b64 s[58:59], 0xffff")
    a("s_mov_b64 s[60:61], 0x7ffffff")
    a("s_waitcnt vmcnt(15)")
    a(f"v_cndmask_b32 v{Q2}, 0, v{Q2}, s[34:35]")
    a("s_barrier")
    if 'stamp' in FL: a("s_memtime s[64:65]")
    def kread(t, b):
        off = (t // 16)*CHUNK; tt = t % 16
        return [f"ds_read_b128 {vr(KF1(b),4)}, v5 offset:{off + tt*1024}",
                f"ds_read_b64 {vr(KF2(b),2)}, v6 offset:{off + tt*256}"]
    def vread(t, b):
        return [f"ds_read_b128 {vr(VF(b,0),4)}, v7 offset:{t*1216}",
                f"ds_read_b128 {vr(VF(b,1),4)}, v7 offset:{t*1216 + 608}"]
    def qk(b):
        return [f"v_mfma_f32_32x32x16_bf16 {vr(SS(b),16)}, {vr(KF1(b),4)}, {vr(Q1,4)}, 0",
                f"v_mfma_f32_32x32x16_bf16 {vr(SS(b),16)}, {vr(KF2(b),4)}, {vr(Q2,4)}, {vr(SS(b),16)}"]
    def pv(b):
        return [f"v_mfma_f32_32x32x16_bf16 {vr(O,16)}, {vr(VF(b,0),4)}, {vr(PP(b),4)}, {vr(O,16)}",
                f"v_mfma_f32_32x32x16_bf16 {vr(O,16)}, {vr(VF(b,1),4)}, {vr(PP(b)+4,4)}, {vr(O,16)}"]
    for x in kread(0, 0) + kread(1, 1): a(x)
    a("s_waitcnt lgkmcnt(0)")
    for x in qk(0): a(x)
    a("s_nop 7"); a("s_nop 7")
    a(f"v_max_f32 v134, v{SS(0)}, v{SS(0)+1}")
    for r in range(2, 16): a(f"v_max_f32 v134, v134, v{SS(0)+r}")
    a("v_mov_b32 v135, v134")
    a("s_nop 1")
    a("v_permlane32_swap_b32 v134, v135")
    a("s_nop 1")
    a("v_max_f32 v134, v134, v135")
    a("v_sub_f32 v134, 0, v134")
    a("v_cvt_pk_bf16_f32 v134, v134, 0")
    a("s_nop 0")
    a(f"v_cndmask_b32 v{Q2+1}, 0, v134, s[34:35]")
    a("s_nop 1")
    for x in qk(0): a(x)
    a("s_mov_b32 s33, 0")
    a("s_nop 7"); a("s_nop 3")
    a.lab(f"{a.name}_loop")
    for t in range(16):
        b = t % 2; nb = 1 - b
        if t == 14:
            l = a.newlabel("nb")
            a("s_cmp_eq_u32 s33, 0")
            a(f"s_cbranch_scc0 {l}")
            a("s_waitcnt vmcnt(0)")
            a("s_barrier")
            a.lab(l)
        a("s_waitcnt lgkmcnt(0)")
        e = [f"v_exp_f32 v{E+r}, v{SS(b)+r}" for r in range(16)]
        c = [f"v_cvt_pk_bf16_f32 v{PP(b)+r}, v{E+2*r}, v{E+2*r+1}" for r in range(8)]
        m1 = qk(nb); m2 = pv(nb)
        kr = kread(t+2, b); vrd = vread(t, b)
        if t in (1, 4, 7, 10, 13) and 'noapf' not in FL:
            l = a.newlabel("pf")
            a("s_sub_u32 s62, s33, 1")
            a("s_cmp_gt_u32 s62, 1")
            a(f"s_cbranch_scc1 {l}")
            if t in (4, 10):
                a("s_mov_b64 exec, s[60:61]")
                a("buffer_load_dword v141, v139, s[44:47], 0 offen")
                a("s_mov_b64 exec, -1")
                a(f"v_add_u32 v139, {3*9216}, v139")
            else:
                a("s_mov_b64 exec, s[58:59]")
                a("buffer_load_dword v141, v138, s[48:51], 0 offen")
                a("s_mov_b64 exec, -1")
                a("v_add_u32 v138, 4096, v138")
            a.lab(l)
        seq = [m1[0], kr[0], kr[1]] + e[0:4] + [vrd[0], m1[1], vrd[1]] + e[4:8] + [c[0], c[1], m2[0]] + e[8:12] + [c[2], c[3], m2[1]] + e[12:16] + [c[4], c[5], c[6], c[7]]
        for x in seq: a(x)
    a(f"v_add_u32 v5, {CHUNK}, v5"); a(f"v_add_u32 v6, {CHUNK}, v6"); a(f"v_add_u32 v7, {CHUNK}, v7")
    a("s_add_u32 s33, s33, 1")
    a("s_cmp_lt_u32 s33, 4")
    a(f"s_cbranch_scc1 {a.name}_loop")
    a("s_waitcnt lgkmcnt(0)")
    for x in pv(1): a(x)
    if 'stamp' in FL:
        a("s_memtime s[66:67]"); a("s_memrealtime s[68:69]"); a("s_waitcnt lgkmcnt(0)")
        a("s_sub_u32 s64, s64, s60"); a("s_sub_u32 s66, s66, s60"); a("s_sub_u32 s68, s68, s62")
        a("v_mov_b32 v140, s64"); a("v_mov_b32 v141, s66"); a("v_mov_b32 v142, s68"); a("v_mov_b32 v143, s60")
        a("s_lshl_b32 s70, s2, 3"); a("s_add_u32 s70, s70, s26"); a("s_lshl_b32 s70, s70, 4")
        a("v_mov_b32 v139, s70")
        a("buffer_store_dwordx4 v[140:143], v139, s[20:23], 0 offen")
    a.lab(f"{a.name}_fin")
    a("s_nop 7"); a("s_nop 7")
    a(f"v_mov_b32 v134, v{O+10}")
    a(f"v_mov_b32 v135, v{O+10}")
    a("s_nop 1")
    a("v_permlane32_swap_b32 v134, v135")
    a(f"s_mov_b32 s36, {f32hex(2.0**40)}")
    a("s_nop 0")
    a("v_cmp_nlt_f32 vcc, v134, s36") if False else a("v_cmp_ngt_f32 vcc, s36, v134")
    a("s_cmp_eq_u32 s33, 99")
    a(f"s_cbranch_scc1 {a.name}_store")
    a(f"s_cbranch_vccnz {a.name}_slow")
    a.lab(f"{a.name}_store")
    a("v_rcp_f32 v134, v134")
    a("s_nop 0")
    for r in range(10): a(f"v_mul_f32 v{O+r}, v{O+r}, v134")
    for r in range(5): a(f"v_cvt_pk_bf16_f32 v{E+r}, v{O+2*r}, v{O+2*r+1}")
    a("v_add_u32 v128, s27, v3")
    a("v_mul_u32_u24 v128, 1152, v128")
    a("v_lshl_add_u32 v128, v2, 3, v128")
    a("s_mul_i32 s30, s24, 36")
    a(f"buffer_store_dwordx2 {vr(E,2)}, v128, s[16:19], s30 offen")
    a(f"buffer_store_dwordx2 {vr(E+2,2)}, v128, s[16:19], s30 offen offset:16")
    a("s_and_saveexec_b64 s[38:39], s[34:35]")
    a(f"buffer_store_dword v{E+4}, v128, s[16:19], s30 offen offset:32")
    a("s_endpgm")
    a.lab(f"{a.name}_slow")
    a("v_mov_b32 v5, v131"); a("v_mov_b32 v6, v132"); a("v_mov_b32 v7, v133")
    a(f"v_mov_b32 v{Q2+1}, 0")
    for r in range(16): a(f"v_mov_b32 v{O+r}, 0")
    a("v_mov_b32 v136, 0xff800000")
    a("s_mov_b32 s33, 0")
    a.lab(f"{a.name}_sl1")
    a("s_mov_b32 s37, 0")
    a.lab(f"{a.name}_sl2")
    for x in kread(0, 0) + vread(0, 0): a(x)
    a("s_waitcnt lgkmcnt(0)")
    for x in qk(0): a(x)
    a("s_nop 7"); a("s_nop 7")
    a(f"v_max_f32 v134, v{SS(0)}, v{SS(0)+1}")
    for r in range(2, 16): a(f"v_max_f32 v134, v134, v{SS(0)+r}")
    a("v_mov_b32 v135, v134")
    a("s_nop 1")
    a("v_permlane32_swap_b32 v134, v135")
    a("s_nop 1")
    a("v_max_f32 v134, v134, v135")
    a("v_max_f32 v134, v134, v136")
    a("v_sub_f32 v135, v136, v134")
    a("v_exp_f32 v135, v135")
    a("v_mov_b32 v136, v134")
    for r in range(16): a(f"v_sub_f32 v{E+r}, v{SS(0)+r}, v134")
    for r in range(16): a(f"v_exp_f32 v{E+r}, v{E+r}")
    for r in range(16): a(f"v_mul_f32 v{O+r}, v{O+r}, v135")
    for r in range(8): a(f"v_cvt_pk_bf16_f32 v{PP(0)+r}, v{E+2*r}, v{E+2*r+1}")
    a("s_nop 1")
    for x in pv(0): a(x)
    a("s_nop 7"); a("s_nop 7")
    a("v_add_u32 v5, 1024, v5"); a("v_add_u32 v6, 256, v6"); a("v_add_u32 v7, 1216, v7")
    a("s_add_u32 s37, s37, 1")
    a("s_cmp_lt_u32 s37, 16")
    a(f"s_cbranch_scc1 {a.name}_sl2")
    a(f"v_add_u32 v5, {CHUNK-16*1024}, v5"); a(f"v_add_u32 v6, {CHUNK-16*256}, v6"); a(f"v_add_u32 v7, {CHUNK-16*1216}, v7")
    a("s_add_u32 s33, s33, 1")
    a("s_cmp_lt_u32 s33, 4")
    a(f"s_cbranch_scc1 {a.name}_sl1")
    a("s_mov_b32 s33, 99")
    a(f"s_branch {a.name}_fin")
    a.lab(f"{a.name}_end")
    a("s_endpgm")
    return a.text(), descriptor(a.name, 144, 0), f"; @launch kernel={a.name} grid=(256,1,1) block=(512,1,1) lds=163840"

def swap23(a, p, t1, t2):
    a(f"v_and_b32 v{t1}, 0x33, v{p}")
    a(f"v_and_b32 v{t2}, 4, v{p}")
    a(f"v_lshlrev_b32 v{t2}, 1, v{t2}")
    a(f"v_or_b32 v{t1}, v{t1}, v{t2}")
    a(f"v_and_b32 v{t2}, 8, v{p}")
    a(f"v_lshrrev_b32 v{t2}, 1, v{t2}")
    a(f"v_or_b32 v{t1}, v{t1}, v{t2}")

def sched_waits(seq):
    issued = []
    out = []
    known = 0
    for it in range(2):
        for item in seq:
            if item[0] == 'r':
                name, rel = item[1]
                issued.append((name, it + rel))
                if it == 1: out.append(item[2])
            elif item[0] == 'm':
                if it == 1:
                    idx = max(i for i, (n, t) in enumerate(issued) if t == it and n in item[1])
                    assert len([1 for (n, t) in issued if t == it and n in item[1]]) == len(item[1]), item
                    if idx + 1 > known:
                        cnt = min(len(issued) - (idx + 1), 15)
                        out.append(f"s_waitcnt lgkmcnt({cnt})")
                        known = idx + 1
                    out.append(item[2])
            else:
                if it == 1: out.append(item[1])
    return out

def skeleton(a, R, STG, NST, NLD, loader_setup, dma, cons_setup, body, nbase, epilogue, custom_loader=None):
    skeleton2(a, R, STG, NST, NLD, loader_setup, dma, cons_setup, [(None, body, epilogue)], nbase, custom_loader)

def skeleton2(a, R, STG, NST, NLD, loader_setup, dma, cons_setup, variants, nbase, custom_loader=None):
    a("s_cmp_ge_u32 s26, 4")
    a(f"s_cbranch_scc0 {a.name}_cons")
    a("s_sub_u32 s26, s26, 4")
    if custom_loader:
        a("s_cmp_ge_u32 s26, 4")
        a(f"s_cbranch_scc0 {a.name}_std")
        a("s_sub_u32 s26, s26, 4")
        custom_loader()
        a("s_endpgm")
        a.lab(f"{a.name}_std")
    std_loader(a, R, STG, NST, NLD, loader_setup, dma)
    cons_part(a, R, STG, NST, cons_setup, variants, nbase)

def std_loader(a, R, STG, NST, NLD, loader_setup, dma):
    loader_setup()
    a("s_mov_b32 s34, 0")
    def dma_adv():
        dma()
        a(f"s_add_u32 s34, s34, {STG}")
        a(f"s_cmp_eq_u32 s34, {R*STG}")
        a("s_cselect_b32 s34, 0, s34")
    for st in range(R-1): dma_adv()
    a(f"s_waitcnt vmcnt({(R-2)*NLD})")
    a("s_barrier")
    a("s_mov_b32 s40, 0")
    a.lab(f"{a.name}_lloop")
    a(f"s_waitcnt vmcnt({(R-3)*NLD})")
    a("s_barrier")
    dma_adv()
    a("s_add_u32 s40, s40, 1")
    a(f"s_cmp_lt_u32 s40, {NST-R+1}")
    a(f"s_cbranch_scc1 {a.name}_lloop")
    for k in range(R-1):
        a(f"s_waitcnt vmcnt({max(R-3-k,0)*NLD})")
        a("s_barrier")
    a("s_endpgm")

def cons_part(a, R, STG, NST, cons_setup, variants, nbase):
    a.lab(f"{a.name}_cons")
    cons_setup()
    nb0, n = nbase
    for r in range(n):
        a(f"v_mov_b32 v{nb0+n+r}, v{nb0+r}")
        a(f"v_mov_b32 v{nb0+2*n+r}, v{nb0+r}")
    a("s_mov_b32 s39, 0")
    a("s_mov_b32 s40, 0")
    a("s_barrier")
    stamp_mid(a, 0)
    for vi, (cmp, body, epilogue) in enumerate(variants):
        if vi: a.lab(f"{a.name}_var{vi}")
        if cmp:
            a(cmp); a(f"s_cbranch_scc1 {a.name}_var{vi+1}")
        seq = body()
        for item in seq:
            if item[0] == 'r' and item[1][1] == 1: a(item[2])
        a.lab(f"{a.name}_loop{vi}")
        a(f"s_add_u32 s39, s39, {STG}")
        a(f"s_cmp_eq_u32 s39, {R*STG}")
        a("s_cselect_b32 s39, 0, s39")
        for r in range(n):
            a(f"v_mov_b32 v{nb0+n+r}, v{nb0+2*n+r}")
            a(f"v_add_u32 v{nb0+2*n+r}, s39, v{nb0+r}")
        for x in sched_waits(seq):
            if x == '@BAR': a("s_barrier")
            elif x.startswith('@LAB '): a.lab(x[5:])
            else: a(x)
        a("s_add_u32 s40, s40, 1")
        a(f"s_cmp_lt_u32 s40, {NST}")
        a(f"s_cbranch_scc1 {a.name}_loop{vi}")
        a("s_waitcnt lgkmcnt(0)")
        stamp_mid(a, 1)
        epilogue()
    a.lab(f"{a.name}_done")
    stamp_end(a, 8)
    a.lab(f"{a.name}_end")
    a("s_endpgm")

def common_entry(a, nwg, args):
    a(f"s_cmp_ge_u32 s2, {nwg}")
    a(f"s_cbranch_scc1 {a.name}_end")
    for reg, off in args: a(f"s_load_dwordx2 s[{reg}:{reg+1}], s[0:1], {off}")
    a("v_and_b32 v1, 63, v0")
    a("v_lshrrev_b32 v2, 4, v1")
    a("v_and_b32 v3, 15, v1")
    a("v_lshrrev_b32 v4, 6, v0")
    a("s_nop 1")
    a("v_readfirstlane_b32 s26, v4")

def k4():
    a = Asm("mlp1_kernel"); header(a)
    R = 5; STG = 28672; NST = 32
    ACC = lambda b: 96 + 16*b
    WF = lambda ks: 24 + ks*4
    GF = lambda ks, b: 40 + (ks*3 + b)*4
    common_entry(a, 216, [(4, 32), (6, 40), (28, 80)])
    a("s_and_b32 s24, s2, 7")
    a("s_mul_i32 s24, s24, 27")
    a("s_lshr_b32 s25, s2, 3")
    a("s_add_u32 s24, s24, s25")
    a("s_mul_i32 s25, s24, 10923")
    a("s_lshr_b32 s25, s25, 16")
    a("s_mul_i32 s30, s25, 6")
    a("s_sub_u32 s24, s24, s30")
    a("s_waitcnt lgkmcnt(0)")
    srd_from_arg(a, 8, 32, S*F*2, 4)
    srd_from_arg(a, 12, 40, F*2, 6)
    srd_ws(a, 16, 28, WS_G, SZ_SD)
    srd_ws(a, 20, 28, WS_U, SZ_U)
    stamp_begin(a)
    def loader_setup():
        a("s_lshl_b32 s30, s26, 4")
        a("v_add_u32 v10, s30, v2")
        a("v_mul_u32_u24 v10, 9216, v10")
        a("v_lshlrev_b32 v11, 2, v2")
        a("v_xor_b32 v11, v11, v3")
        a("v_lshl_add_u32 v10, v11, 4, v10")
        a("s_lshl_b32 s30, s25, 8")
        a("v_add_u32 v5, s30, v10")
        a("s_mul_i32 s30, s26, 3072")
        a(f"s_mul_i32 s31, s24, {2048*192}")
        a("s_add_u32 s30, s30, s31")
        a("v_lshl_add_u32 v6, v1, 4, s30")
        a("s_lshl_b32 s32, s26, 12")
        a("s_mul_i32 s33, s26, 3072")
        a("s_add_u32 s33, s33, 16384")
        a("s_mov_b32 s35, 0"); a("s_mov_b32 s36, 0")
    def dma():
        a("s_add_u32 s37, s34, s32")
        for m in range(4):
            a(f"s_add_u32 m0, s37, {m*1024}")
            a(f"s_add_u32 s38, s35, {m*36864}")
            a("buffer_load_dwordx4 v5, s[8:11], s38 offen lds")
        a("s_add_u32 m0, s34, s33")
        a("s_nop 0")
        for m in range(3):
            a(f"buffer_load_dwordx4 v6, s[16:19], s36 offen offset:{m*1024} lds")
        a(f"s_add_u32 s35, s35, {64*9216}")
        a(f"s_add_u32 s36, s36, {64*192}")
    def cons_setup():
        a("v_lshrrev_b32 v150, 2, v3")
        a("v_and_b32 v151, 3, v3")
        a("v_lshrrev_b32 v152, 1, v2")
        a("v_and_b32 v153, 1, v2")
        a("v_lshl_add_u32 v154, v152, 3, v150")
        a("v_lshrrev_b32 v155, 1, v151")
        a("v_lshl_add_u32 v155, v153, 1, v155")
        a("s_lshl_b32 s30, s26, 2")
        a("v_add_u32 v155, s30, v155")
        a("v_lshlrev_b32 v156, 2, v150")
        a("v_xor_b32 v155, v155, v156")
        a("v_lshlrev_b32 v155, 4, v155")
        a("v_lshl_add_u32 v155, v154, 8, v155")
        a("v_and_b32 v156, 1, v151")
        a("v_lshl_add_u32 v10, v156, 3, v155")
        a("v_mul_u32_u24 v155, 192, v154")
        a("v_lshl_add_u32 v155, v153, 5, v155")
        a("v_lshl_add_u32 v155, v151, 3, v155")
        a("v_add_u32 v11, 16384, v155")
        a("s_lshl_b32 s61, s25, 8")
        def afw(vl, vo):
            a(f"v_lshrrev_b32 v{vo}, 1, v{vl}")
            a(f"v_mul_u32_u24 v{vo}, 9216, v{vo}")
            a(f"v_and_b32 v{vl}, 1, v{vl}")
            a(f"v_lshl_add_u32 v{vo}, v{vl}, 7, v{vo}")
            a(f"v_add_u32 v{vo}, s61, v{vo}")
        prefetch(a, 8, 4096, 6, 24, afw, vt=150, dst=157)
        a(f"s_mul_i32 s61, s24, {2048*192}")
        a("s_and_b32 s62, s25, 3")
        def afh(vl, vo):
            a(f"v_min_u32 v{vl}, 3071, v{vl}")
            a(f"v_lshl_add_u32 v{vo}, v{vl}, 7, s61")
        prefetch(a, 16, 3072, 4, 62, afh, vt=150, dst=157)
        for r in range(96, 144): a(f"v_mov_b32 v{r}, 0")
    def rd(ks, rel):
        wb, gb = ("v14", "v15") if rel else ("v12", "v13")
        L = []
        for hh in range(2):
            L.append(('r', (f"W{ks}{hh}", rel), f"ds_read_b64_tr_b16 {vr(WF(ks)+2*hh,2)}, {wb} offset:{ks*4096 + hh*1024}"))
        for b in range(3):
            for hh in range(2):
                L.append(('r', (f"G{ks}{b}{hh}", rel), f"ds_read_b64_tr_b16 {vr(GF(ks,b)+2*hh,2)}, {gb} offset:{ks*3072 + hh*768 + 64*b}"))
        return L
    def body():
        seq = []
        for ks in range(4):
            if ks == 2: seq.append(('x', '@BAR'))
            r = rd((ks+2) % 4, 1 if ks >= 2 else 0)
            for b in range(3):
                seq.append(('m', [f"W{ks}0", f"W{ks}1", f"G{ks}{b}0", f"G{ks}{b}1"],
                            f"v_mfma_f32_32x32x16_bf16 {vr(ACC(b),16)}, {vr(WF(ks),4)}, {vr(GF(ks,b),4)}, {vr(ACC(b),16)}"))
                seq += r[3*b:3*b+3]
        return seq
    def epilogue():
        a("v_lshrrev_b32 v4, 5, v1")
        a("s_lshl_b32 s30, s25, 8")
        a("s_lshl_b32 s31, s26, 6")
        a("s_add_u32 s30, s30, s31")
        a("v_lshl_add_u32 v150, v4, 3, s30")
        for qd in range(4): a(f"buffer_load_dwordx2 {vr(24+2*qd,2)}, v150, s[12:15], 0 offen offset:{16*qd}")
        a("v_and_b32 v151, 31, v1")
        a("s_mul_i32 s31, s24, 96")
        a("v_add_u32 v151, s31, v151")
        a("v_lshlrev_b32 v151, 7, v151")
        a("v_lshl_add_u32 v151, v4, 3, v151")
        a("s_lshr_b32 s31, s26, 1")
        a("s_lshl_b32 s30, s25, 1")
        a("s_add_u32 s31, s31, s30")
        a("s_mul_i32 s31, s31, 73728")
        a("s_and_b32 s30, s26, 1")
        a("s_lshl_b32 s30, s30, 6")
        a("s_add_u32 s31, s31, s30")
        a("v_add_u32 v16, s31, v151")
        a("s_waitcnt vmcnt(0)")
        for qd in range(4):
            for p in range(2):
                a(f"v_lshlrev_b32 v{32+4*qd+2*p}, 16, v{24+2*qd+p}")
                a(f"v_and_b32 v{33+4*qd+2*p}, 0xffff0000, v{24+2*qd+p}")
        c0 = -2.0*math.sqrt(2.0/math.pi)*LOG2E
        a(f"s_mov_b32 s41, {f32hex(c0*0.044715)}")
        a(f"v_mov_b32 v17, {f32hex(c0)}")
        for b in range(3):
            for qd in range(4):
                c = ACC(b) + 4*qd
                for r in range(4): a(f"v_add_f32 v{c+r}, v{c+r}, v{32+4*qd+r}")
                for r in range(4): a(f"v_mul_f32 v{150+r}, v{c+r}, v{c+r}")
                for r in range(4): a(f"v_fma_f32 v{150+r}, v{150+r}, s41, v17")
                for r in range(4): a(f"v_mul_f32 v{150+r}, v{150+r}, v{c+r}")
                for r in range(4): a(f"v_exp_f32 v{150+r}, v{150+r}")
                for r in range(4): a(f"v_add_f32 v{150+r}, 1.0, v{150+r}")
                for r in range(4): a(f"v_rcp_f32 v{150+r}, v{150+r}")
                for r in range(4): a(f"v_mul_f32 v{c+r}, v{c+r}, v{150+r}")
                a(f"v_cvt_pk_bf16_f32 v{c}, v{c}, v{c+1}")
                a(f"v_cvt_pk_bf16_f32 v{c+1}, v{c+2}, v{c+3}")
                a(f"buffer_store_dwordx2 {vr(c,2)}, v16, s[20:23], 0 offen offset:{b*4096 - (4096 if b==1 else 0)*0 + 16*qd}" if b == 0 else
                  f"buffer_store_dwordx2 {vr(c,2)}, v16, s[20:23], s{41+b} offen offset:{16*qd}")
            if b < 2: a(f"s_mov_b32 s{42+b}, {(b+1)*4096}")
    skeleton(a, R, STG, NST, 7, loader_setup, dma, cons_setup, body, (10, 2), epilogue)
    return a.text(), descriptor(a.name, 168, 0), f"; @launch kernel={a.name} grid=(216,1,1) block=(512,1,1) lds={R*STG}"

def k5():
    a = Asm("mlp2_kernel"); header(a)
    R = 4; STG = 34816; NST = 18; UB = 18432
    ACC = lambda j, t: 112 + (j*2 + t)*4
    UF = lambda buf, j: 24 + (buf*9 + j)*4
    WF = lambda buf, t: 96 + (buf*2 + t)*4
    common_entry(a, 256, [(4, 48), (28, 80)])
    a("s_and_b32 s24, s2, 7")
    a("s_lshl_b32 s24, s24, 5")
    a("s_lshr_b32 s25, s2, 3")
    a("s_add_u32 s27, s24, s25")
    a("s_and_b32 s24, s27, 3")
    a("s_lshr_b32 s25, s27, 2")
    a("s_and_b32 s25, s25, 15")
    a("s_lshr_b32 s27, s27, 6")
    a("s_waitcnt lgkmcnt(0)")
    srd_from_arg(a, 8, 48, F*S*2, 4)
    srd_ws(a, 16, 28, WS_U, SZ_U)
    srd_ws(a, 20, 28, WS_P, SZ_P)
    stamp_begin(a)
    def loader_setup():
        a("s_lshl_b32 s30, s26, 2")
        a("v_add_u32 v10, s30, v2")
        a("v_and_b32 v10, 7, v10")
        a("v_and_b32 v11, 7, v1")
        a("v_xor_b32 v10, v10, v11")
        a("v_lshrrev_b32 v11, 3, v1")
        a("v_lshlrev_b32 v11, 7, v11")
        a("v_lshl_add_u32 v5, v10, 4, v11")
        a("s_and_b32 s30, s26, 1")
        a("s_add_u32 s45, s30, 16")
        a("s_lshl_b32 s45, s45, 10")
        a("s_lshl_b32 s46, s26, 10")
        a("s_lshl_b32 s30, s26, 4")
        a("v_add_u32 v10, s30, v2")
        a("v_lshlrev_b32 v10, 12, v10")
        a("s_lshl_b32 s30, s25, 8")
        a("v_add_u32 v10, s30, v10")
        a("v_lshlrev_b32 v11, 1, v2")
        a("v_xor_b32 v11, v11, v3")
        a("v_lshl_add_u32 v6, v11, 4, v10")
        a("v_xor_b32 v11, 8, v11")
        a("v_lshl_add_u32 v7, v11, 4, v10")
        a("s_lshl_b32 s32, s26, 12")
        a(f"s_add_u32 s32, s32, {UB}")
        a(f"s_mul_i32 s35, s27, {18*73728}")
        a(f"s_mul_i32 s30, s24, {UB}")
        a("s_add_u32 s35, s35, s30")
        a(f"s_mul_i32 s36, s27, {1152*4096}")
    def dma():
        a("s_add_u32 s37, s34, s46")
        a("s_add_u32 s47, s35, s46")
        for m in range(4):
            a(f"s_add_u32 m0, s37, {m*4096}")
            a(f"s_add_u32 s38, s47, {m*4096}")
            a("buffer_load_dwordx4 v5, s[16:19], s38 offen lds")
        a("s_add_u32 m0, s34, s45")
        a("s_add_u32 s38, s35, s45")
        a("buffer_load_dwordx4 v5, s[16:19], s38 offen lds")
        a("s_add_u32 s37, s34, s32")
        for m in range(4):
            a(f"s_add_u32 m0, s37, {m*1024}")
            a(f"s_add_u32 s38, s36, {m*4*4096}")
            a(f"buffer_load_dwordx4 v{6 + (m>>1)}, s[8:11], s38 offen lds")
        a("s_add_u32 s35, s35, 73728")
        a(f"s_add_u32 s36, s36, {64*4096}")
    def cons_setup():
        a("v_lshrrev_b32 v200, 1, v3")
        a("v_xor_b32 v201, v2, v200")
        a("v_lshlrev_b32 v202, 7, v3")
        a("v_lshl_add_u32 v8, v201, 4, v202")
        a("v_xor_b32 v201, 4, v201")
        a("v_lshl_add_u32 v9, v201, 4, v202")
        a("v_lshrrev_b32 v200, 2, v3")
        a("v_and_b32 v201, 3, v3")
        a("v_lshl_add_u32 v202, v2, 3, v200")
        a("v_and_b32 v203, 1, v2")
        a("v_lshl_add_u32 v203, v203, 2, v200")
        a("v_lshlrev_b32 v203, 1, v203")
        a("v_lshrrev_b32 v204, 1, v201")
        a("s_lshl_b32 s30, s26, 2")
        a("v_add_u32 v204, s30, v204")
        a("v_xor_b32 v205, v204, v203")
        a("v_lshlrev_b32 v205, 4, v205")
        a("v_lshl_add_u32 v205, v202, 8, v205")
        a("v_and_b32 v206, 1, v201")
        a("v_lshl_add_u32 v205, v206, 3, v205")
        a(f"v_add_u32 v10, {UB}, v205")
        a("v_xor_b32 v11, 32, v10")
        a(f"s_mul_i32 s61, s27, {1152*4096}")
        a("s_lshl_b32 s62, s25, 8")
        a("s_add_u32 s61, s61, s62")
        def afw(vl, vo):
            a(f"v_min_u32 v{vl}, 2303, v{vl}")
            a(f"v_lshrrev_b32 v{vo}, 1, v{vl}")
            a(f"v_lshlrev_b32 v{vo}, 12, v{vo}")
            a(f"v_and_b32 v{vl}, 1, v{vl}")
            a(f"v_lshl_add_u32 v{vo}, v{vl}, 7, v{vo}")
            a(f"v_add_u32 v{vo}, s61, v{vo}")
        prefetch(a, 8, 2304, 4, 24, afw, vt=200, dst=207)
        a(f"s_mul_i32 s61, s27, {18*73728}")
        a(f"s_mul_i32 s62, s24, {UB}")
        a("s_add_u32 s61, s61, s62")
        a("s_and_b32 s62, s25, 7")
        def afu(vl, vo):
            a(f"v_min_u32 v{vl}, 2591, v{vl}")
            a(f"v_mul_u32_u24 v{vo}, 29128, v{vl}")
            a(f"v_lshrrev_b32 v{vo}, 22, v{vo}")
            a(f"v_mul_u32_u24 v{vl+2}, {73728 - 144*128}, v{vo}")
            a(f"v_lshl_add_u32 v{vo}, v{vl}, 7, v{vl+2}")
            a(f"v_add_u32 v{vo}, s61, v{vo}")
        prefetch(a, 16, 2592, 8, 62, afu, vt=200, dst=207)
        for r in range(112, 184): a(f"v_mov_b32 v{r}, 0")
    def rd(ks, rel):
        b = 16 if rel else 12
        L = []
        for t in range(2):
            for hh in range(2):
                L.append(('r', (f"W{ks}{t}{hh}", rel), f"ds_read_b64_tr_b16 {vr(WF(ks,t)+2*hh,2)}, v{b+2+t} offset:{ks*8192 + hh*1024}"))
        for j in range(9):
            L.append(('r', (f"U{ks}{j}", rel), f"ds_read_b128 {vr(UF(ks,j),4)}, v{b+ks} offset:{j*2048}"))
        return L
    def body():
        seq = []
        for ks in range(2):
            if ks == 1: seq.append(('x', '@BAR'))
            r = rd(1-ks, ks)
            k = 0
            for j in range(9):
                for t in range(2):
                    C = vr(ACC(j,t),4)
                    seq.append(('m', [f"U{ks}{j}", f"W{ks}{t}0", f"W{ks}{t}1"], f"v_mfma_f32_16x16x32_bf16 {C}, {vr(UF(ks,j),4)}, {vr(WF(ks,t),4)}, {C}"))
                    if k < len(r): seq.append(r[k]); k += 1
        return seq
    def epilogue():
        a("s_lshl_b32 s30, s27, 11")
        a("s_lshl_b32 s31, s25, 7")
        a("s_add_u32 s30, s30, s31")
        a("s_lshl_b32 s31, s26, 5")
        a("s_add_u32 s30, s30, s31")
        a("v_add_u32 v200, s30, v3")
        a("s_mov_b32 s31, 2304")
        a("v_mul_lo_u32 v200, v200, s31")
        a("s_mul_i32 s31, s24, 576")
        a("v_lshl_add_u32 v200, v2, 4, v200")
        a("v_add_u32 v200, s31, v200")
        a(f"s_mov_b32 s31, {16*2304}")
        a("s_nop 7")
        for j in range(9):
            for t in range(2):
                a(f"buffer_store_dwordx4 {vr(ACC(j,t),4)}, v200, s[20:23], {'s31' if t else '0'} offen offset:{64*j}")
    skeleton(a, R, STG, NST, 9, loader_setup, dma, cons_setup, body, (8, 4), epilogue)
    return a.text(), descriptor(a.name, 208, 0), f"; @launch kernel={a.name} grid=(256,1,1) block=(512,1,1) lds={R*STG}"

def k6():
    a = Asm("final_kernel"); header(a)
    a("s_cmp_ge_u32 s2, 576")
    a(f"s_cbranch_scc1 {a.name}_end")
    a("s_load_dwordx2 s[4:5], s[0:1], 56")
    a("s_load_dwordx2 s[6:7], s[0:1], 64")
    a("s_load_dwordx2 s[28:29], s[0:1], 80")
    a("s_lshl_b32 s3, s2, 8")
    a("v_add_u32 v1, s3, v0")
    a("v_lshlrev_b32 v2, 4, v1")
    a("v_lshlrev_b32 v3, 5, v1")
    a("v_mul_u32_u24 v4, 58255, v1") if False else None
    a("s_mov_b32 s30, 0x38e38e4")
    a("v_mul_hi_u32 v4, v1, s30")
    a("v_mul_u32_u24 v12, 72, v4")
    a("v_sub_u32 v12, v1, v12")
    a("v_mul_u32_u24 v13, 43691, v12")
    a("v_lshrrev_b32 v13, 19, v13")
    a("v_mul_u32_u24 v14, 12, v13")
    a("v_sub_u32 v12, v12, v14")
    a("s_mov_b32 s31, 393216")
    a("v_mul_lo_u32 v13, v13, s31")
    a("v_mul_u32_u24 v14, 192, v4")
    a("v_add_u32 v13, v13, v14")
    a("v_lshl_add_u32 v12, v12, 4, v13")
    a("v_lshlrev_b32 v4, 1, v4")
    a("s_waitcnt lgkmcnt(0)")
    srd_from_arg(a, 8, 56, S*2, 4)
    srd_from_arg(a, 12, 64, S*D*2, 6)
    srd_ws(a, 16, 28, WS_H, SZ_SD)
    srd_ws(a, 20, 28, WS_P, SZ_P)
    a("buffer_load_ushort v5, v4, s[8:11], 0 offen")
    a("buffer_load_dwordx4 v[8:11], v12, s[16:19], 0 offen")
    for p in range(4):
        a(f"s_mov_b32 s{32+p}, {p*S*D*4}")
        a(f"buffer_load_dwordx4 {vr(16+8*p,4)}, v3, s[20:23], s{32+p} offen")
        a(f"buffer_load_dwordx4 {vr(20+8*p,4)}, v3, s[20:23], s{32+p} offen offset:16")
    a("s_waitcnt vmcnt(0)")
    a("v_lshlrev_b32 v5, 16, v5")
    for r in range(8):
        a(f"v_add_f32 v{16+r}, v{16+r}, v{24+r}")
        a(f"v_add_f32 v{32+r}, v{32+r}, v{40+r}")
        a(f"v_add_f32 v{16+r}, v{16+r}, v{32+r}")
        a(f"v_add_f32 v{16+r}, v{16+r}, v5")
    for r in range(4):
        a(f"v_lshlrev_b32 v6, 16, v{8+r}")
        a(f"v_and_b32 v7, 0xffff0000, v{8+r}")
        a(f"v_add_f32 v6, v6, v{16+2*r}")
        a(f"v_add_f32 v7, v7, v{17+2*r}")
        a(f"v_cvt_pk_bf16_f32 v{8+r}, v6, v7")
    a("buffer_store_dwordx4 v[8:11], v2, s[12:15], 0 offen")
    a.lab(f"{a.name}_end")
    a("s_endpgm")
    return a.text(), descriptor(a.name, 48, 0), f"; @launch kernel={a.name} grid=(576,1,1) block=(256,1,1) lds=0"

def k1():
    a = Asm("qkv_kernel"); header(a)
    R = 4; XB = 16384; STG = 34816; NST = 9
    ACC = lambda i, j: 112 + (i*9 + j)*4
    XF = lambda ks, i: 24 + (ks*2 + i)*4
    WF = lambda ks, j: 40 + (ks*9 + j)*4
    CW = lambda j: 184 + 4*j
    S1 = lambda i: 220 + 4*i
    S2 = lambda i: 228 + 4*i
    ONE = 236
    T = 240
    common_entry(a, 192, [(4, 0), (6, 8), (28, 80)])
    a("s_mul_i32 s24, s2, 5462")
    a("s_lshr_b32 s24, s24, 16")
    a("s_mul_i32 s25, s24, 12")
    a("s_sub_u32 s25, s2, s25")
    a("s_lshr_b32 s41, s25, 2")
    a("s_waitcnt lgkmcnt(0)")
    srd_from_arg(a, 8, 0, S*D*2, 4)
    srd_from_arg(a, 12, 8, D*3*D*2, 6)
    srd_ws(a, 16, 28, WS_Q, SZ_Q)
    srd_ws(a, 20, 28, WS_KV, SZ_KV)
    stamp_begin(a)
    def loader_setup():
        a("s_lshl_b32 s30, s26, 2")
        a("v_add_u32 v10, s30, v2")
        a("v_and_b32 v10, 7, v10")
        a("v_and_b32 v11, 7, v1")
        a("v_xor_b32 v10, v10, v11")
        a("v_lshrrev_b32 v11, 3, v1")
        a("s_lshl_b32 s30, s24, 7")
        a("s_lshl_b32 s31, s26, 3")
        a("s_add_u32 s30, s30, s31")
        a("v_add_u32 v11, s30, v11")
        a("v_mul_u32_u24 v11, 1152, v11")
        a("v_lshl_add_u32 v5, v10, 4, v11")
        a("s_lshl_b32 s32, s26, 6")
        a("s_and_b32 s33, s26, 1")
        a("s_add_u32 s33, s33, 16")
        a("s_lshl_b32 s30, s33, 6")
        a("s_mul_i32 s31, s25, 288")
        for n in range(5):
            if n < 4:
                a(f"v_add_u32 v20, s32, v1")
                if n: a(f"v_add_u32 v20, {n*256}, v20")
            else:
                a(f"v_add_u32 v20, s30, v1")
            a("v_mul_u32_u24 v21, 3641, v20")
            a("v_lshrrev_b32 v21, 16, v21")
            a("v_mul_u32_u24 v22, 18, v21")
            a("v_sub_u32 v22, v20, v22")
            swap23(a, 21, 23, 24)
            a("v_mul_u32_u24 v23, 3456, v23")
            a("v_lshl_add_u32 v23, v22, 4, v23")
            a(f"v_add_u32 v{6+n}, s31, v23")
        a("s_lshl_b32 s46, s26, 10")
        a("s_lshl_b32 s45, s33, 10")
        a(f"s_add_u32 s45, s45, {XB}")
        a("s_mov_b32 s35, 0"); a("s_mov_b32 s36, 0")
    def dma():
        a("s_add_u32 s37, s34, s46")
        for m in range(4):
            a(f"s_add_u32 m0, s37, {m*4096}")
            a(f"s_add_u32 s38, s35, {m*32*1152}")
            a("buffer_load_dwordx4 v5, s[8:11], s38 offen lds")
        for n in range(5):
            if n < 4: a(f"s_add_u32 m0, s37, {XB + n*4096}")
            else:     a("s_add_u32 m0, s34, s45")
            a("s_nop 0")
            a(f"buffer_load_dwordx4 v{6+n}, s[12:15], s36 offen lds")
        a("s_add_u32 s35, s35, 128")
        a(f"s_add_u32 s36, s36, {64*3456}")
    def cons_setup():
        a("v_lshrrev_b32 v240, 1, v3")
        a("v_xor_b32 v241, v2, v240")
        a("s_lshl_b32 s30, s26, 5")
        a("v_add_u32 v242, s30, v3")
        a("v_lshlrev_b32 v242, 7, v242")
        a("v_lshl_add_u32 v8, v241, 4, v242")
        a("v_xor_b32 v241, 4, v241")
        a("v_lshl_add_u32 v9, v241, 4, v242")
        a("v_lshrrev_b32 v240, 1, v2")
        a("v_and_b32 v241, 1, v2")
        a("v_lshlrev_b32 v240, 4, v240")
        a("v_lshl_add_u32 v240, v241, 2, v240")
        a("v_lshrrev_b32 v241, 2, v3")
        a("v_add_u32 v240, v240, v241")
        a("v_mul_u32_u24 v240, 288, v240")
        a("v_and_b32 v241, 3, v3")
        a("v_lshl_add_u32 v10, v241, 3, v240")
        a(f"v_add_u32 v10, {XB}, v10")
        for r in range(112, 236): a(f"v_mov_b32 v{r}, 0")
        for r in range(236, 240): a(f"v_mov_b32 v{r}, 0x3f803f80")
        a("s_mov_b32 s42, 0")
    def mkbody(mode):
        def rd(ks, rel):
            b = 14 if rel else 11
            L = []
            for i in range(2):
                L.append(('r', (f"X{ks}{i}", rel), f"ds_read_b128 {vr(XF(ks,i),4)}, v{b+ks} offset:{i*2048}"))
            for j in range(9):
                for hh in range(2):
                    L.append(('r', (f"W{ks}{j}{hh}", rel), f"ds_read_b64_tr_b16 {vr(WF(ks,j)+2*hh,2)}, v{b+2} offset:{ks*32*288 + hh*8*288 + 32*j}"))
            return L
        def body():
            seq = []
            for ks in range(2):
                if ks == 1: seq.append(('x', '@BAR'))
                r = rd(1-ks, ks)
                ms = []
                for i in range(2):
                    X = vr(XF(ks,i),4)
                    ms.append(('m', [f"X{ks}{i}"], f"v_mfma_f32_16x16x32_bf16 {vr(S1(i),4)}, {vr(ONE,4)}, {X}, {vr(S1(i),4)}"))
                    ms.append(('m', [f"X{ks}{i}"], f"v_mfma_f32_16x16x32_bf16 {vr(S2(i),4)}, {X}, {X}, {vr(S2(i),4)}"))
                for j in range(9):
                    for i in range(2):
                        W = vr(WF(ks,j),4); X = vr(XF(ks,i),4); C = vr(ACC(i,j),4)
                        ops = f"{W}, {X}" if mode == "qk" else f"{X}, {W}"
                        ms.append(('m', [f"X{ks}{i}", f"W{ks}{j}0", f"W{ks}{j}1"], f"v_mfma_f32_16x16x32_bf16 {C}, {ops}, {C}"))
                k = 0
                for m in ms:
                    seq.append(m)
                    if k < len(r): seq.append(r[k]); k += 1
                l = a.newlabel("cw")
                seq.append(('x', "s_and_b32 s43, s42, 3"))
                seq.append(('x', "s_add_u32 s42, s42, 1"))
                seq.append(('x', "s_cmp_eq_u32 s43, s26"))
                seq.append(('x', f"s_cbranch_scc0 {l}"))
                for j in range(9):
                    W = vr(WF(ks,j),4); C = vr(CW(j),4)
                    ops = f"{W}, {vr(ONE,4)}" if mode == "qk" else f"{vr(ONE,4)}, {W}"
                    seq.append(('x', f"v_mfma_f32_16x16x32_bf16 {C}, {ops}, {C}"))
                seq.append(('x', f"@LAB {l}"))
            return seq
        return body
    P = 296
    def mkepi(mode):
        def epilogue():
            a("s_nop 7")
            a("s_barrier")
            a("s_mul_i32 s40, s26, 576")
            if mode == "qk":
                a("v_lshlrev_b32 v24, 4, v2")
                a("v_add_u32 v25, s40, v24")
                for j in range(9): a(f"ds_write_b128 v25, {vr(CW(j),4)} offset:{j*64}")
            else:
                a("v_lshlrev_b32 v24, 2, v3")
                a("v_add_u32 v25, s40, v24")
                for j in range(9): a(f"ds_write_b32 v25, v{CW(j)} offset:{j*64}")
            a("v_and_b32 v26, 3, v3")
            a("v_lshrrev_b32 v27, 2, v3")
            a("v_lshl_add_u32 v27, v27, 4, v3")
            a("v_lshlrev_b32 v27, 2, v27")
            for i in range(2):
                a(f"v_cmp_eq_u32 vcc, 1, v26"); a("s_nop 1")
                a(f"v_cndmask_b32 v{28+i}, v{S2(i)}, v{S2(i)+1}, vcc")
                a(f"v_cmp_eq_u32 vcc, 2, v26"); a("s_nop 1")
                a(f"v_cndmask_b32 v{28+i}, v{28+i}, v{S2(i)+2}, vcc")
                a(f"v_cmp_eq_u32 vcc, 3, v26"); a("s_nop 1")
                a(f"v_cndmask_b32 v{28+i}, v{28+i}, v{S2(i)+3}, vcc")
                a(f"ds_bpermute_b32 v{30+i}, v27, v{28+i}")
            a(f"s_mov_b32 s44, {f32hex(1.0/576)}")
            a(f"s_mov_b32 s45, {f32hex(1e-5)}")
            a("s_waitcnt lgkmcnt(0)")
            for i in range(2):
                a(f"v_mul_f32 v{28+i}, s44, v{S1(i)}")
                a(f"v_mul_f32 v{30+i}, s44, v{30+i}")
                a(f"v_fma_f32 v{30+i}, -v{28+i}, v{28+i}, v{30+i}")
                a(f"v_max_f32 v{30+i}, 0, v{30+i}")
                a(f"v_add_f32 v{30+i}, s45, v{30+i}")
                a(f"v_rsq_f32 v{32+i}, v{30+i}")
            a("s_nop 0")
            if mode == "qk":
                a(f"s_mov_b32 s43, {f32hex(QSCALE)}")
                a("s_cmp_eq_u32 s41, 0")
                a("s_cselect_b32 s43, s43, 1.0")
                for i in range(2): a(f"v_mul_f32 v{32+i}, s43, v{32+i}")
            for i in range(2): a(f"v_mul_f32 v{34+i}, v{28+i}, v{32+i}")
            a("s_barrier")
            if 'e1' in FL: stamp_mid(a, 0)
            a("s_and_b32 s44, s25, 3")
            a("s_lshl_b32 s44, s44, 3")
            a("s_lshl_b32 s27, s24, 7")
            a("s_lshl_b32 s30, s26, 5")
            a("s_add_u32 s27, s27, s30")
            a("s_mul_i32 s47, s26, 12288")
            a("s_add_u32 s47, s47, 4096")
            a("s_lshr_b32 s48, s27, 9")
            a(f"s_mul_i32 s48, s48, {CHUNK}")
            a("s_and_b32 s49, s27, 511")
            a(f"s_mul_i32 s50, s44, {HB}")
            a("s_add_u32 s48, s48, s50")
            if mode == "qk":
                for j in range(9):
                    a(f"ds_read_b128 {vr(40+4*j,4)}, v24 offset:{j*64}")
                    a(f"ds_read_b128 {vr(76+4*j,4)}, v24 offset:{576 + j*64}")
                a("s_waitcnt lgkmcnt(0)")
                for k in range(36): a(f"v_add_f32 v{40+k}, v{40+k}, v{76+k}")
                for j in range(9):
                    a(f"ds_read_b128 {vr(76+4*j,4)}, v24 offset:{2*576 + j*64}")
                    a(f"ds_read_b128 {vr(184+4*j,4)}, v24 offset:{3*576 + j*64}")
                a("s_waitcnt lgkmcnt(0)")
                for k in range(36):
                    a(f"v_add_f32 v{76+k}, v{76+k}, v{184+k}")
                    a(f"v_add_f32 v{40+k}, v{40+k}, v{76+k}")
                a(f"v_mul_u32_u24 v36, {P}, v3")
                a("v_lshl_add_u32 v36, v2, 3, v36")
                a("v_add_u32 v36, s47, v36")
                for i in range(2):
                    for j in range(9):
                        c = ACC(i,j)
                        for r in range(4):
                            a(f"v_mul_f32 v{96+r}, v{40+4*j+r}, v{34+i}")
                            a(f"v_fma_f32 v{96+r}, v{c+r}, v{32+i}, -v{96+r}")
                        a(f"v_cvt_pk_bf16_f32 v{c}, v96, v97")
                        a(f"v_cvt_pk_bf16_f32 v{c+1}, v98, v99")
                        a(f"ds_write_b64 v36, {vr(c,2)} offset:{i*16*P + 32*j}")
                lq = a.newlabel("isq")
                a("s_waitcnt lgkmcnt(0)")
                if 'e2' in FL: stamp_mid(a, 0)
                a("s_cmp_eq_u32 s41, 0")
                a(f"s_cbranch_scc1 {lq}")
                a("v_and_b32 v37, 31, v1")
                a("v_lshrrev_b32 v38, 5, v1")
                a(f"v_mul_u32_u24 v39, {P}, v37")
                a("v_add_u32 v39, s47, v39")
                a("v_lshl_add_u32 v40, v38, 4, v39")
                a("v_lshlrev_b32 v41, 4, v1")
                a("s_lshr_b32 s50, s49, 5")
                a("s_lshl_b32 s50, s50, 10")
                a("s_add_u32 s50, s50, s48")
                for h in range(8):
                    b = 48 + 4*h
                    a(f"ds_read2_b32 {vr(b,2)}, v40 offset0:{9*h} offset1:{9*h+1}")
                    a(f"ds_read2_b32 {vr(b+2,2)}, v40 offset0:{9*h+2} offset1:{9*h+3}")
                a("v_mul_u32_u24 v42, 36, v38")
                a("v_add_u32 v42, v42, v39")
                for p in range(4): a(f"ds_read_b32 v{80+2*p}, v42 offset:{72*p + 32}")
                for p in range(4): a(f"v_mov_b32 v{81+2*p}, 0x00003f80")
                a(f"s_mov_b32 s51, {HB}")
                a("v_mul_lo_u32 v43, v38, s51")
                a("v_lshl_add_u32 v43, v37, 3, v43")
                a("s_lshl_b32 s51, s49, 3")
                a("s_add_u32 s51, s51, s48")
                a("s_add_u32 s51, s51, 16384")
                a("s_waitcnt lgkmcnt(0)")
                for h in range(8):
                    a(f"buffer_store_dwordx4 {vr(48+4*h,4)}, v41, s[20:23], s50 offen")
                    if h < 7: a(f"s_add_u32 s50, s50, {HB}")
                for p in range(4):
                    a(f"buffer_store_dwordx2 {vr(80+2*p,2)}, v43, s[20:23], s51 offen")
                    if p < 3: a(f"s_add_u32 s51, s51, {2*HB}")
                a(f"s_branch {a.name}_done")
                a.lab(lq)
                for n in range(3):
                    a(f"v_add_u32 v37, {64*n}, v1")
                    a("v_cmp_le_u32 vcc, 96, v37"); a("s_nop 1")
                    a("v_cndmask_b32 v38, 0, 1, vcc")
                    a("v_mul_u32_u24 v39, 96, v38")
                    a("v_sub_u32 v37, v37, v39")
                    a("v_mul_u32_u24 v39, 171, v37")
                    a("v_lshrrev_b32 v39, 9, v39")
                    a("v_mul_u32_u24 v40, 3, v39")
                    a("v_sub_u32 v40, v37, v40")
                    a(f"v_mul_u32_u24 v41, {P}, v39")
                    a("v_mul_u32_u24 v42, 36, v38")
                    a("v_add_u32 v41, v41, v42")
                    a("v_lshl_add_u32 v41, v40, 4, v41")
                    a(f"v_add_u32 v{44+n}, s47, v41")
                    a("v_mul_u32_u24 v41, 48, v39")
                    a("v_lshl_add_u32 v41, v40, 4, v41")
                    a("s_mov_b32 s51, 98304")
                    a("v_mul_lo_u32 v42, v38, s51")
                    a(f"v_add_u32 v{100+n}, v41, v42")
                for p in range(4):
                    for n in range(3):
                        b = 48 + (p*3+n)*4
                        a(f"ds_read2_b32 {vr(b,2)}, v{44+n} offset0:{18*p} offset1:{18*p+1}")
                        a(f"ds_read2_b32 {vr(b+2,2)}, v{44+n} offset0:{18*p+2} offset1:{18*p+3}")
                a("s_lshl_b32 s50, s44, 11")
                a("s_add_u32 s50, s50, s27")
                a("s_mul_i32 s50, s50, 48")
                a("s_waitcnt lgkmcnt(0)")
                if 'e3' in FL: stamp_mid(a, 0)
                for p in range(4):
                    for n in range(3):
                        a(f"buffer_store_dwordx4 {vr(48+(p*3+n)*4,4)}, v{100+n}, s[16:19], s50 offen")
                    if p < 3: a(f"s_add_u32 s50, s50, {2*98304}")
                a(f"s_branch {a.name}_done")
            else:
                for j in range(9):
                    for w in range(4): a(f"ds_read_b32 v{184+4*j+w}, v24 offset:{w*576 + j*64}")
                a("s_waitcnt lgkmcnt(0)")
                for j in range(9):
                    b = 184 + 4*j
                    a(f"v_add_f32 v{b}, v{b}, v{b+1}"); a(f"v_add_f32 v{b+2}, v{b+2}, v{b+3}")
                    a(f"v_add_f32 v{40+j}, v{b}, v{b+2}")
                a("s_lshl_b32 s45, s26, 8")
                a("s_add_u32 s45, s45, 2304")
                a("v_lshl_add_u32 v96, v3, 2, s45")
                for i in range(2):
                    a(f"ds_write_b32 v96, v{32+i} offset:{i*64}")
                    a(f"ds_write_b32 v96, v{34+i} offset:{128 + i*64}")
                a("v_lshl_add_u32 v97, v2, 4, s45")
                a("v_lshrrev_b32 v98, 2, v1")
                a("v_mul_u32_u24 v98, 1216, v98")
                a("v_and_b32 v99, 3, v1")
                a("v_mul_u32_u24 v99, 304, v99")
                a("v_add3_u32 v98, v98, v99, s47")
                a("v_cmp_gt_u32 vcc, 32, v1")
                a("s_and_saveexec_b64 s[52:53], vcc")
                a(f"ds_write_b128 v98, {vr(ONE,4)} offset:288")
                a("s_mov_b64 exec, s[52:53]")
                a("s_waitcnt lgkmcnt(0)")
                for i in range(2):
                    a(f"ds_read_b128 {vr(52+8*i,4)}, v97 offset:{i*64}")
                    a(f"ds_read_b128 {vr(56+8*i,4)}, v97 offset:{128+i*64}")
                a("v_and_b32 v98, 1, v2")
                a("v_mul_u32_u24 v98, 304, v98")
                a("v_lshrrev_b32 v99, 1, v2")
                a("v_lshl_add_u32 v98, v99, 3, v98")
                a("v_add_u32 v98, s47, v98")
                a("s_waitcnt lgkmcnt(0)")
                for j in range(9):
                    a(f"v_add_u32 v106, {16*j}, v3")
                    a("v_mul_u32_u24 v107, 3641, v106")
                    a("v_lshrrev_b32 v107, 16, v107")
                    a("v_mul_u32_u24 v108, 18, v107")
                    a("v_sub_u32 v108, v106, v108")
                    a("v_mul_u32_u24 v107, 1216, v107")
                    a("v_lshl_add_u32 v107, v108, 4, v107")
                    a("v_add_u32 v107, v107, v98")
                    for i in range(2):
                        c = ACC(i,j)
                        for r in range(4):
                            a(f"v_mul_f32 v{100+r}, v{40+j}, v{56+8*i+r}")
                            a(f"v_fma_f32 v{100+r}, v{c+r}, v{52+8*i+r}, -v{100+r}")
                        a(f"v_cvt_pk_bf16_f32 v{c}, v100, v101")
                        a(f"v_cvt_pk_bf16_f32 v{c+1}, v102, v103")
                        a(f"ds_write_b64 v107, {vr(c,2)} offset:{i*608}")
                a("v_lshl_add_u32 v96, v1, 4, s47")
                a("s_waitcnt lgkmcnt(0)")
                for n in range(10): a(f"ds_read_b128 {vr(40+4*n,4)}, v96 offset:{n*1024}")
                a("s_lshr_b32 s50, s49, 4")
                a("s_mul_i32 s50, s50, 608")
                a("s_add_u32 s50, s50, s48")
                a("s_add_u32 s50, s50, 20480")
                a(f"s_mov_b32 s51, {HB-1216}")
                for n in range(10):
                    a(f"v_add_u32 v100, {64*n}, v1")
                    a("v_mul_u32_u24 v101, 863, v100")
                    a("v_lshrrev_b32 v101, 16, v101")
                    a("v_mul_lo_u32 v101, v101, s51")
                    a(f"v_lshl_add_u32 v{84+n}, v100, 4, v101")
                a("s_waitcnt lgkmcnt(0)")
                for n in range(10):
                    if n == 9: a("s_and_saveexec_b64 s[52:53], vcc")
                    a(f"buffer_store_dwordx4 {vr(40+4*n,4)}, v{84+n}, s[20:23], s50 offen")
                a("s_mov_b64 exec, s[52:53]")
        return epilogue
    skeleton2(a, R, STG, NST, 9, loader_setup, dma, cons_setup, [("s_cmp_eq_u32 s41, 2", mkbody("qk"), mkepi("qk")), (None, mkbody("v"), mkepi("v"))], (8, 3))
    return a.text(), descriptor(a.name, 256, 0), f"; @launch kernel={a.name} grid=(192,1,1) block=(512,1,1) lds={R*STG}"


def k3():
    a = Asm("oproj_kernel"); header(a)
    R = 6; OB = 8192; STG = 20480; NST = 9
    ACC = lambda i, j: 72 + (i*3 + j)*4
    OF = lambda ks, i: 24 + (ks*2 + i)*4
    WF = lambda ks, j: 40 + (ks*3 + j)*4
    XR = lambda i, j: 96 + (i*3 + j)*2
    common_entry(a, 192, [(4, 0), (6, 16), (28, 80)])
    a("s_and_b32 s24, s2, 7")
    a("s_mul_i32 s24, s24, 24")
    a("s_lshr_b32 s25, s2, 3")
    a("s_add_u32 s24, s24, s25")
    a("s_mul_i32 s25, s24, 10923")
    a("s_lshr_b32 s25, s25, 16")
    a("s_mul_i32 s30, s25, 6")
    a("s_sub_u32 s24, s24, s30")
    a("s_waitcnt lgkmcnt(0)")
    srd_from_arg(a, 8, 0, S*D*2, 4)
    srd_from_arg(a, 12, 16, D*D*2, 6)
    srd_ws(a, 16, 28, WS_O, SZ_SD)
    srd_ws(a, 20, 28, WS_H, SZ_SD)
    srd_ws(a, 44, 28, WS_ST, SZ_ST)
    stamp_begin(a)
    def loader_setup():
        a("s_lshl_b32 s30, s26, 2")
        a("v_add_u32 v10, s30, v2")
        a("v_and_b32 v10, 7, v10")
        a("v_and_b32 v11, 7, v1")
        a("v_xor_b32 v10, v10, v11")
        a("v_lshrrev_b32 v11, 3, v1")
        a("s_lshl_b32 s30, s25, 6")
        a("s_lshl_b32 s31, s26, 3")
        a("s_add_u32 s30, s30, s31")
        a("v_add_u32 v11, s30, v11")
        a("v_mul_u32_u24 v11, 1152, v11")
        a("v_lshl_add_u32 v5, v10, 4, v11")
        a("s_mul_i32 s30, s26, 192")
        a("s_mul_i32 s31, s24, 192")
        for m in range(3):
            a("v_add_u32 v20, s30, v1")
            if m: a(f"v_add_u32 v20, {64*m}, v20")
            a("v_mul_u32_u24 v21, 43691, v20")
            a("v_lshrrev_b32 v21, 19, v21")
            a("v_mul_u32_u24 v22, 12, v21")
            a("v_sub_u32 v22, v20, v22")
            a("v_lshrrev_b32 v23, 2, v21")
            a("v_and_b32 v23, 2, v23")
            a("v_xor_b32 v22, v22, v23")
            a("v_mul_u32_u24 v21, 1152, v21")
            a("v_lshl_add_u32 v21, v22, 4, v21")
            a(f"v_add_u32 v{6+m}, s31, v21")
        a("s_lshl_b32 s46, s26, 10")
        a("s_mul_i32 s45, s26, 3072")
        a(f"s_add_u32 s45, s45, {OB}")
        a("s_mov_b32 s35, 0"); a("s_mov_b32 s36, 0")
    def dma():
        a("s_add_u32 s37, s34, s46")
        for m in range(2):
            a(f"s_add_u32 m0, s37, {m*4096}")
            a(f"s_add_u32 s38, s35, {m*32*1152}")
            a("buffer_load_dwordx4 v5, s[16:19], s38 offen lds")
        a("s_add_u32 s37, s34, s45")
        for m in range(3):
            a(f"s_add_u32 m0, s37, {m*1024}")
            a("s_nop 0")
            a(f"buffer_load_dwordx4 v{6+m}, s[12:15], s36 offen lds")
        a("s_add_u32 s35, s35, 128")
        a(f"s_add_u32 s36, s36, {64*1152}")
    def cons_setup():
        a("s_lshr_b32 s41, s26, 1")
        a("s_and_b32 s42, s26, 1")
        a("v_lshrrev_b32 v110, 1, v3")
        a("v_xor_b32 v111, v2, v110")
        a("s_lshl_b32 s30, s41, 5")
        a("v_add_u32 v112, s30, v3")
        a("v_lshlrev_b32 v112, 7, v112")
        a("v_lshl_add_u32 v6, v111, 4, v112")
        a("v_xor_b32 v111, 4, v111")
        a("v_lshl_add_u32 v7, v111, 4, v112")
        a("v_lshrrev_b32 v110, 2, v3")
        a("v_and_b32 v111, 3, v3")
        a("v_lshl_add_u32 v112, v2, 3, v110")
        a("v_mul_u32_u24 v112, 192, v112")
        a("v_and_b32 v113, 1, v111")
        a("v_lshl_add_u32 v112, v113, 3, v112")
        a(f"v_add_u32 v112, {OB}, v112")
        a("v_lshrrev_b32 v113, 1, v111")
        a("s_mul_i32 s30, s42, 6")
        a("v_add_u32 v113, s30, v113")
        a("v_and_b32 v114, 1, v2")
        a("v_lshlrev_b32 v114, 1, v114")
        for j in range(3):
            a(f"v_add_u32 v115, {2*j}, v113")
            a("v_xor_b32 v115, v115, v114")
            a(f"v_lshl_add_u32 v{8+j}, v115, 4, v112")
        for r in range(72, 96): a(f"v_mov_b32 v{r}, 0")
        a("s_lshl_b32 s27, s25, 6")
        a("s_lshl_b32 s30, s41, 5")
        a("s_add_u32 s27, s27, s30")
        a("v_add_u32 v110, s27, v3")
        a("v_mul_u32_u24 v111, 1152, v110")
        a("v_lshl_add_u32 v111, v2, 3, v111")
        a("s_mul_i32 s30, s24, 192")
        a("s_mul_i32 s31, s42, 96")
        a("s_add_u32 s30, s30, s31")
        a("v_add_u32 v111, s30, v111")
        a("s_mov_b32 s43, 18432")
        for i in range(2):
            for j in range(3):
                a(f"buffer_load_dwordx2 {vr(XR(i,j),2)}, v111, s[8:11], {'s43' if i else '0'} offen offset:{32*j}")
        a("v_mul_u32_u24 v110, 192, v110")
        a("v_lshl_add_u32 v110, v2, 3, v110")
        a(f"s_mul_i32 s30, s24, {2048*192}")
        a("s_add_u32 s30, s30, s31")
        a("v_add_u32 v108, s30, v110")
    def rd(ks, rel):
        b = 16 if rel else 11
        L = []
        for i in range(2):
            L.append(('r', (f"O{ks}{i}", rel), f"ds_read_b128 {vr(OF(ks,i),4)}, v{b+ks} offset:{i*2048}"))
        for j in range(3):
            for hh in range(2):
                L.append(('r', (f"W{ks}{j}{hh}", rel), f"ds_read_b64_tr_b16 {vr(WF(ks,j)+2*hh,2)}, v{b+2+j} offset:{ks*6144 + hh*768}"))
        return L
    def body():
        seq = []
        for ks in range(2):
            if ks == 1: seq.append(('x', '@BAR'))
            r = rd(1-ks, ks)
            ms = []
            for j in range(3):
                for i in range(2):
                    C = vr(ACC(i,j),4)
                    ms.append(('m', [f"O{ks}{i}", f"W{ks}{j}0", f"W{ks}{j}1"], f"v_mfma_f32_16x16x32_bf16 {C}, {vr(WF(ks,j),4)}, {vr(OF(ks,i),4)}, {C}"))
            k = 0
            for idx, m in enumerate(ms):
                seq.append(m)
                n = 2 if idx < 2 else 1
                seq += r[k:k+n]; k += n
        return seq
    def epilogue():
        a("s_waitcnt vmcnt(0)")
        a("s_nop 7")
        for r in range(24, 28): a(f"v_mov_b32 v{r}, 0")
        for i in range(2):
            for j in range(3):
                c = ACC(i,j); x = XR(i,j)
                a(f"v_lshlrev_b32 v40, 16, v{x}")
                a(f"v_and_b32 v41, 0xffff0000, v{x}")
                a(f"v_lshlrev_b32 v42, 16, v{x+1}")
                a(f"v_and_b32 v43, 0xffff0000, v{x+1}")
                for r in range(4): a(f"v_add_f32 v{40+r}, v{40+r}, v{c+r}")
                a(f"v_cvt_pk_bf16_f32 v{x}, v40, v41")
                a(f"v_cvt_pk_bf16_f32 v{x+1}, v42, v43")
                a(f"buffer_store_dwordx2 {vr(x,2)}, v108, s[20:23], 0 offen offset:{i*3072 + 32*j}")
                a(f"v_lshlrev_b32 v40, 16, v{x}")
                a(f"v_and_b32 v41, 0xffff0000, v{x}")
                a(f"v_lshlrev_b32 v42, 16, v{x+1}")
                a(f"v_and_b32 v43, 0xffff0000, v{x+1}")
                for r in range(4):
                    a(f"v_add_f32 v{24+i}, v{24+i}, v{40+r}")
                    a(f"v_fmac_f32 v{26+i}, v{40+r}, v{40+r}")
        a("v_xor_b32 v30, 16, v1"); a("v_lshlrev_b32 v30, 2, v30")
        a("v_xor_b32 v31, 32, v1"); a("v_lshlrev_b32 v31, 2, v31")
        for addr in ("v30", "v31"):
            for r in range(4): a(f"ds_bpermute_b32 v{32+r}, {addr}, v{24+r}")
            a("s_waitcnt lgkmcnt(0)")
            for r in range(4): a(f"v_add_f32 v{24+r}, v{24+r}, v{32+r}")
        X = R*STG
        a("s_lshl_b32 s30, s26, 8")
        a(f"s_add_u32 s30, s30, {X}")
        a("v_lshl_add_u32 v36, v3, 3, s30")
        for i in range(2):
            a(f"v_mov_b32 v{40+2*i}, v{24+i}"); a(f"v_mov_b32 v{41+2*i}, v{26+i}")
            a(f"ds_write_b64 v36, {vr(40+2*i,2)} offset:{i*128}")
        a("s_waitcnt lgkmcnt(0)")
        a("s_barrier")
        a("s_cmp_eq_u32 s42, 0")
        a(f"s_cbranch_scc0 {a.name}_done")
        for i in range(2): a(f"ds_read_b64 {vr(44+2*i,2)}, v36 offset:{256 + i*128}")
        a("s_lshl_b32 s30, s24, 11")
        a("s_add_u32 s30, s30, s27")
        a("v_add_u32 v37, s30, v3")
        a("v_lshlrev_b32 v37, 3, v37")
        a("v_cmp_gt_u32 vcc, 16, v1")
        a("s_waitcnt lgkmcnt(0)")
        for r in range(4): a(f"v_add_f32 v{40+r}, v{40+r}, v{44+r}")
        a("s_and_saveexec_b64 s[52:53], vcc")
        for i in range(2): a(f"buffer_store_dwordx2 {vr(40+2*i,2)}, v37, s[44:47], 0 offen offset:{i*128}")
        a("s_mov_b64 exec, s[52:53]")
    skeleton(a, R, STG, NST, 5, loader_setup, dma, cons_setup, body, (6, 5), epilogue)
    return a.text(), descriptor(a.name, 120, 0), f"; @launch kernel={a.name} grid=(192,1,1) block=(512,1,1) lds={R*STG + 1024}"


def k3b():
    a = Asm("ln_kernel"); header(a)
    a("s_cmp_ge_u32 s2, 576")
    a(f"s_cbranch_scc1 {a.name}_end")
    a("s_load_dwordx2 s[28:29], s[0:1], 80")
    a("s_lshl_b32 s3, s2, 8")
    a("v_add_u32 v1, s3, v0")
    a("v_lshlrev_b32 v2, 4, v1")
    a("s_mul_i32 s4, s2, 683")
    a("s_lshr_b32 s4, s4, 16")
    a("s_mul_i32 s4, s4, 24576")
    a("v_subrev_u32 v3, s4, v1")
    a("v_mul_u32_u24 v3, 43691, v3")
    a("v_lshrrev_b32 v3, 19, v3")
    a("v_lshlrev_b32 v3, 3, v3")
    a("s_waitcnt lgkmcnt(0)")
    srd_ws(a, 8, 28, WS_H, SZ_SD)
    srd_ws(a, 12, 28, WS_G, SZ_SD)
    srd_ws(a, 16, 28, WS_ST, SZ_ST)
    a("buffer_load_dwordx4 v[4:7], v2, s[8:11], 0 offen")
    for p in range(6):
        a(f"s_mov_b32 s20, {p*16384}")
        a(f"buffer_load_dwordx2 {vr(8+2*p,2)}, v3, s[16:19], s20 offen")
    a(f"s_mov_b32 s41, {f32hex(1.0/576)}")
    a(f"s_mov_b32 s42, {f32hex(1e-5)}")
    a("s_waitcnt vmcnt(0)")
    b = 8
    for c in range(2):
        a(f"v_add_f32 v{b+c}, v{b+c}, v{b+2+c}")
        a(f"v_add_f32 v{b+4+c}, v{b+4+c}, v{b+6+c}")
        a(f"v_add_f32 v{b+8+c}, v{b+8+c}, v{b+10+c}")
        a(f"v_add_f32 v{b+c}, v{b+c}, v{b+4+c}")
        a(f"v_add_f32 v{b+c}, v{b+c}, v{b+8+c}")
    a(f"v_mul_f32 v{b}, s41, v{b}")
    a(f"v_mul_f32 v{b+1}, s41, v{b+1}")
    a(f"v_fma_f32 v{b+1}, -v{b}, v{b}, v{b+1}")
    a(f"v_max_f32 v{b+1}, 0, v{b+1}")
    a(f"v_add_f32 v{b+2}, s42, v{b+1}")
    a(f"v_rcp_f32 v{b+3}, v{b+2}")
    a(f"v_rsq_f32 v{b+4}, v{b+2}")
    a("s_nop 0")
    a(f"v_mul_f32 v{b+3}, v{b+3}, v{b+1}")
    a(f"v_add_f32 v{b+3}, s42, v{b+3}")
    a(f"v_rsq_f32 v{b+3}, v{b+3}")
    a("s_nop 0")
    a(f"v_mul_f32 v{b+6}, v{b+3}, v{b+4}")
    a(f"v_mul_f32 v{b+7}, v{b+6}, v{b}")
    for r in range(4):
        a(f"v_lshlrev_b32 v20, 16, v{4+r}")
        a(f"v_and_b32 v21, 0xffff0000, v{4+r}")
        a(f"v_fma_f32 v20, v20, v14, -v15")
        a(f"v_fma_f32 v21, v21, v14, -v15")
        a(f"v_cvt_pk_bf16_f32 v{4+r}, v20, v21")
    a("buffer_store_dwordx4 v[4:7], v2, s[12:15], 0 offen")
    a.lab(f"{a.name}_end")
    a("s_endpgm")
    return a.text(), descriptor(a.name, 24, 0), f"; @launch kernel={a.name} grid=(576,1,1) block=(256,1,1) lds=0"


def build(kernels):
    hdr = "; generated by gen.py\n"
    texts, descs, launches = [], [], []
    for k in kernels:
        t, d, l = k()
        texts.append(t); descs.append(d); launches.append(l)
    if 'dup3' in FL: launches.append(launches[2])
    if 'dup45' in FL: launches = launches[:4] + [launches[3], launches[4], launches[4], launches[5]]
    out = hdr + "\n".join(launches) + "\n"
    out += '.amdgcn_target "amdgcn-amd-amdhsa--gfx950"\n.text\n'
    out += "\n".join(texts)
    out += '.section .rodata,"a"\n' + "\n".join(descs)
    return out

if __name__ == "__main__":
    ks = [k1, k2, k3, k3b, k4, k5, k6]
    out = build(ks)
    open(sys.argv[1] if len(sys.argv) > 1 else "out.s", "w").write(out)
```

```python
import sys, math, os
FL = os.environ.get('FLAGS', '').split(',')

S, D, F, H, DH = 2048, 576, 4608, 32, 18
WS_Q  = 0x0        ; SZ_Q  = 32*2048*48
WS_KV = 0x300000   ; HB = 159744 ; SZ_KV = 32*HB + 8192
WS_O  = 0x800000   ; SZ_SD = 2048*576*2
WS_H  = 0xA80000
WS_G  = 0xD00000
WS_ST = 0xF80000   ; SZ_ST = 6*2048*8
WS_U  = 0x1000000  ; SZ_U = 576*4608*2
WS_P  = 0x1800000  ; SZ_P = 4*2048*576*4
CHUNK = 39936
LOG2E = 1.4426950408889634
QSCALE = (18 ** -0.5) * LOG2E

import struct
def f32hex(x):
    return "0x%08x" % struct.unpack("<I", struct.pack("<f", x))[0]

class Asm:
    def __init__(s, name):
        s.name = name; s.t = []; s.nl = 0
    def __call__(s, line):
        if s.name in ('mlp1_kernel', 'mlp2_kernel'):
            if 'gnomfma' in FL and line.startswith('v_mfma'): return
            if 'gnords' in FL and line.startswith('ds_read'): return
            if 'gnodma' in FL and line.startswith('buffer_load') and line.endswith('lds'): return
            if 'gnobar' in FL and line.startswith('s_barrier'): return
            if 'gnopk' in FL and (line.startswith('v_pk_fma') or line.startswith('v_cvt_pk_bf16_f32 v3') or line.startswith('v_cvt_pk_bf16_f32 v4') or line.startswith('v_cvt_pk_bf16_f32 v5') or line.startswith('v_cvt_pk_bf16_f32 v6') or line.startswith('v_cvt_pk_bf16_f32 v7') or line.startswith('v_lshlrev_b32 v28') or line.startswith('v_and_b32 v29') or line.startswith('v_cvt_pk_bf16_f32 v8') or line.startswith('v_cvt_pk_bf16_f32 v9') or line.startswith('v_cvt_pk_bf16_f32 v10') or line.startswith('v_cvt_pk_bf16_f32 v11')): return
            if 'gnowr' in FL and line.startswith('ds_write_b128'): return
            if 'gnohl' in FL and line.startswith('buffer_load_dwordx4 v['): return
        if s.name == 'qkv_kernel':
            if 'k1nostore' in FL and line.startswith('buffer_store'): return
            if 'k1nomfma' in FL and line.startswith('v_mfma'): return
            if 'k1nodot' in FL and line.startswith('v_dot2c'): return
            if 'k1notr' in FL and line.startswith('ds_read_b64_tr'): return
            if 'k1noa' in FL and line.startswith('buffer_load_dwordx4 v['): return
            if 'k1nodma' in FL and line.startswith('buffer_load') and line.endswith('lds'): return
            if 'k1nobar' in FL and line.startswith('s_barrier'): return
        s.t.append("    " + line)
    def lab(s, l):
        s.t.append(l + ":")
    def newlabel(s, p="L"):
        s.nl += 1
        return f"{s.name}_{p}{s.nl}"
    def text(s):
        return "\n".join(s.t) + "\n"

def vr(b, n):  return f"v[{b}:{b+n-1}]"
def ar(b, n):  return f"a[{b}:{b+n-1}]"
def sr(b, n):  return f"s[{b}:{b+n-1}]"

def srd_from_arg(a, sreg, argoff, size, tmp):
    a(f"s_mov_b32 s{sreg}, s{tmp}")
    a(f"s_mov_b32 s{sreg+1}, s{tmp+1}")
    a(f"s_mov_b32 s{sreg+2}, {size}")
    a(f"s_mov_b32 s{sreg+3}, 0x00020000")

def srd_ws(a, sreg, wsreg, off, size):
    a(f"s_add_u32 s{sreg}, s{wsreg}, {off}")
    a(f"s_addc_u32 s{sreg+1}, s{wsreg+1}, 0")
    a(f"s_mov_b32 s{sreg+2}, {size}")
    a(f"s_mov_b32 s{sreg+3}, 0x00020000")

def stamp_begin(a, wsreg=28):
    if 'stamp_' + a.name[:4] in FL:
        srd_ws(a, 80, wsreg, 0x3000000, 0x100000)
        a("s_memtime s[84:85]"); a("s_memrealtime s[86:87]")
def stamp_mid(a, k):
    if 'stamp_' + a.name[:4] in FL:
        a(f"s_memtime s[{88+2*k}:{89+2*k}]")
def stamp_end(a, nwaves, wavereg=26):
    if 'stamp_' + a.name[:4] in FL:
        a("s_memtime s[92:93]"); a("s_memrealtime s[94:95]"); a("s_waitcnt lgkmcnt(0)")
        a("s_sub_u32 s88, s88, s84"); a("s_sub_u32 s92, s92, s84"); a("s_sub_u32 s94, s94, s86"); a("s_sub_u32 s90, s90, s84")
        a("v_mov_b32 v16, s88"); a("v_mov_b32 v17, s92"); a("v_mov_b32 v18, s94"); a("v_mov_b32 v19, s90")
        a(f"s_mul_i32 s70, s2, {nwaves}"); a(f"s_add_u32 s70, s70, s{wavereg}"); a("s_lshl_b32 s70, s70, 4")
        a("v_mov_b32 v20, s70")
        a("buffer_store_dwordx4 v[16:19], v20, s[80:83], 0 offen")

def prefetch(a, srd, nlines, nshare, share_sgpr, addr_fn, vt=250, wave_sgpr=26, nwaves=4, dst=255):
    if 'pf' not in FL: return
    per = (nlines + nshare - 1)//nshare
    nt = (per + 64*nwaves - 1)//(64*nwaves)
    a(f"s_lshl_b32 s60, s{wave_sgpr}, 6")
    for t in range(nt):
        a(f"v_add_u32 v{vt}, s60, v1")
        if t: a(f"v_add_u32 v{vt}, {t*nwaves*64}, v{vt}")
        if nshare > 1:
            a(f"v_mul_u32_u24 v{vt}, {nshare}, v{vt}")
            a(f"v_add_u32 v{vt}, s{share_sgpr}, v{vt}")
        addr_fn(vt, vt+1)
        a(f"buffer_load_dword v{dst}, v{vt+1}, s[{srd}:{srd+3}], 0 offen")

def header(a):
    a.t.append(f".globl {a.name}\n.p2align 8\n.type {a.name},@function\n{a.name}:")

def descriptor(name, vgpr, agpr, sgpr=96):
    acc = (vgpr + 3) // 4 * 4
    return f""".p2align 6
.amdhsa_kernel {name}
  .amdhsa_next_free_vgpr {acc + agpr if agpr else vgpr}
  .amdhsa_next_free_sgpr {sgpr}
  .amdhsa_accum_offset {acc}
  .amdhsa_group_segment_fixed_size 0
  .amdhsa_kernarg_size 88
  .amdhsa_user_sgpr_count 2
  .amdhsa_user_sgpr_kernarg_segment_ptr 1
  .amdhsa_system_sgpr_workgroup_id_x 1
.end_amdhsa_kernel
"""

def interleave(main, *fill):
    out = []
    n = len(main)
    pos = [0]*len(fill)
    for idx, m in enumerate(main):
        out.append(m)
        for fi, f in enumerate(fill):
            tgt = (idx+1)*len(f)//n
            while pos[fi] < tgt:
                out.append(f[pos[fi]]); pos[fi] += 1
    return out

def k2():
    a = Asm("attn_kernel"); header(a)
    Q1, Q2 = 8, 12
    KF1 = lambda b: 16 + 8*b
    KF2 = lambda b: 20 + 8*b
    VF = lambda b, t: 32 + 8*b + 4*t
    SS = lambda b: 48 + 16*b
    PP = lambda b: 80 + 8*b
    E = 96; O = 112
    a("s_cmp_ge_u32 s2, 256")
    a(f"s_cbranch_scc1 {a.name}_end")
    a("s_load_dwordx2 s[28:29], s[0:1], 80")
    a("s_load_dwordx2 s[4:5], s[0:1], 32")
    a("s_load_dwordx2 s[6:7], s[0:1], 48")
    a("s_and_b32 s24, s2, 7")
    a("s_lshl_b32 s24, s24, 2")
    a("s_lshr_b32 s25, s2, 3")
    a("s_and_b32 s25, s25, 3")
    a("s_add_u32 s24, s24, s25")
    a("s_lshr_b32 s25, s2, 5")
    a("v_and_b32 v1, 63, v0")
    a("v_lshrrev_b32 v2, 5, v1")
    a("v_and_b32 v3, 31, v1")
    a("v_lshrrev_b32 v4, 6, v0")
    a("s_nop 1")
    a("v_readfirstlane_b32 s26, v4")
    a("s_waitcnt lgkmcnt(0)")
    srd_ws(a, 8, 28, WS_Q, SZ_Q)
    srd_ws(a, 12, 28, WS_KV, SZ_KV)
    srd_ws(a, 16, 28, WS_O, SZ_SD)
    srd_from_arg(a, 44, 32, S*F*2, 4)
    srd_from_arg(a, 48, 48, S*F*2, 6)
    if 'stamp' in FL:
        srd_ws(a, 20, 28, 0x3000000, 0x100000)
        a("s_memtime s[60:61]"); a("s_memrealtime s[62:63]")
    a("s_lshl_b32 s27, s25, 8")
    a("s_lshl_b32 s30, s26, 5")
    a("s_add_u32 s27, s27, s30")
    a("s_lshl_b32 s30, s24, 11")
    a("s_add_u32 s30, s30, s27")
    a("v_add_u32 v128, s30, v3")
    a("v_mul_u32_u24 v128, 48, v128")
    a("v_lshl_add_u32 v129, v2, 4, v128")
    a(f"buffer_load_dwordx4 {vr(Q1,4)}, v129, s[8:11], 0 offen")
    a(f"buffer_load_dword v{Q2}, v128, s[8:11], 0 offen offset:32")
    a(f"s_mul_i32 s30, s24, {HB}")
    a("s_lshl_b32 s31, s26, 10")
    a("s_add_u32 s30, s30, s31")
    a("v_lshl_add_u32 v4, v1, 4, s30")
    for n in range(20):
        a(f"s_add_u32 m0, s31, {n*8192}")
        a(f"s_mov_b32 s32, {n*8192}")
        a(f"buffer_load_dwordx4 v4, s[12:15], s32 offen lds")
    a("v_lshlrev_b32 v5, 4, v1")
    a("v_lshlrev_b32 v6, 3, v3")
    a("v_add_u32 v6, 16384, v6")
    a("v_min_u32 v7, 18, v3")
    a("v_lshlrev_b32 v7, 4, v7")
    a("v_mul_u32_u24 v130, 304, v2")
    a("v_add_u32 v7, v7, v130")
    a("v_add_u32 v7, 20480, v7")
    a("v_mov_b32 v131, v5"); a("v_mov_b32 v132, v6"); a("v_mov_b32 v133, v7")
    for r in list(range(KF2(0)+2, KF2(0)+4)) + list(range(KF2(1)+2, KF2(1)+4)) + list(range(32, 48)) + list(range(80, 96)) + list(range(O, O+16)) + [Q2+1, Q2+2, Q2+3]:
        a(f"v_mov_b32 v{r}, 0")
    a("v_cmp_gt_u32 s[34:35], 32, v1")
    a("s_and_b32 s52, s2, 7")
    a("s_lshr_b32 s53, s2, 3")
    a("s_lshl_b32 s53, s53, 3")
    a("s_add_u32 s53, s53, s26")
    a("s_mul_i32 s56, s53, 9")
    a("s_lshr_b32 s56, s56, 1")
    a("s_lshr_b32 s57, s52, 1")
    a("s_mul_i32 s57, s57, 1152")
    a("s_add_u32 s56, s56, s57")
    a("s_lshl_b32 s56, s56, 12")
    a("s_and_b32 s57, s52, 1")
    a("s_lshl_b32 s57, s57, 11")
    a("s_add_u32 s56, s56, s57")
    a("v_lshl_add_u32 v138, v1, 7, s56")
    a("v_mul_u32_u24 v139, 57, v1")
    a("v_lshrrev_b32 v139, 9, v139")
    a("v_mul_u32_u24 v140, 9, v139")
    a("v_sub_u32 v140, v1, v140")
    a("s_lshl_b32 s56, s53, 3")
    a("v_add_u32 v139, s56, v139")
    a("v_mul_u32_u24 v139, 9216, v139")
    a("v_lshl_add_u32 v139, v140, 7, v139")
    a("s_mul_i32 s56, s52, 1152")
    a("v_add_u32 v139, s56, v139")
    a("s_mov_b64 s[58:59], 0xffff")
    a("s_mov_b64 s[60:61], 0x7ffffff")
    a("s_waitcnt vmcnt(15)")
    a(f"v_cndmask_b32 v{Q2}, 0, v{Q2}, s[34:35]")
    a("s_barrier")
    if 'stamp' in FL: a("s_memtime s[64:65]")
    def kread(t, b):
        off = (t // 16)*CHUNK; tt = t % 16
        return [f"ds_read_b128 {vr(KF1(b),4)}, v5 offset:{off + tt*1024}",
                f"ds_read_b64 {vr(KF2(b),2)}, v6 offset:{off + tt*256}"]
    def vread(t, b):
        return [f"ds_read_b128 {vr(VF(b,0),4)}, v7 offset:{t*1216}",
                f"ds_read_b128 {vr(VF(b,1),4)}, v7 offset:{t*1216 + 608}"]
    def qk(b):
        return [f"v_mfma_f32_32x32x16_bf16 {vr(SS(b),16)}, {vr(KF1(b),4)}, {vr(Q1,4)}, 0",
                f"v_mfma_f32_32x32x16_bf16 {vr(SS(b),16)}, {vr(KF2(b),4)}, {vr(Q2,4)}, {vr(SS(b),16)}"]
    def pv(b):
        return [f"v_mfma_f32_32x32x16_bf16 {vr(O,16)}, {vr(VF(b,0),4)}, {vr(PP(b),4)}, {vr(O,16)}",
                f"v_mfma_f32_32x32x16_bf16 {vr(O,16)}, {vr(VF(b,1),4)}, {vr(PP(b)+4,4)}, {vr(O,16)}"]
    for x in kread(0, 0) + kread(1, 1): a(x)
    a("s_waitcnt lgkmcnt(0)")
    for x in qk(0): a(x)
    a("s_nop 7"); a("s_nop 7")
    a(f"v_max_f32 v134, v{SS(0)}, v{SS(0)+1}")
    for r in range(2, 16): a(f"v_max_f32 v134, v134, v{SS(0)+r}")
    a("v_mov_b32 v135, v134")
    a("s_nop 1")
    a("v_permlane32_swap_b32 v134, v135")
    a("s_nop 1")
    a("v_max_f32 v134, v134, v135")
    a("v_sub_f32 v134, 0, v134")
    a("v_cvt_pk_bf16_f32 v134, v134, 0")
    a("s_nop 0")
    a(f"v_cndmask_b32 v{Q2+1}, 0, v134, s[34:35]")
    a("s_nop 1")
    for x in qk(0): a(x)
    a("s_mov_b32 s33, 0")
    if 'aprio' in FL:
        l = a.newlabel("pr")
        a("s_cmp_ge_u32 s26, 4")
        a(f"s_cbranch_scc0 {l}")
        a("s_setprio 1")
        a.lab(l)
    a("s_nop 7"); a("s_nop 3")
    a.lab(f"{a.name}_loop")
    for t in range(16):
        b = t % 2; nb = 1 - b
        if t == 14:
            l = a.newlabel("nb")
            a("s_cmp_eq_u32 s33, 0")
            a(f"s_cbranch_scc0 {l}")
            a("s_waitcnt vmcnt(0)")
            a("s_barrier")
            a.lab(l)
        a("s_waitcnt lgkmcnt(0)")
        e = [f"v_exp_f32 v{E+r}, v{SS(b)+r}" for r in range(16)]
        c = [f"v_cvt_pk_bf16_f32 v{PP(b)+r}, v{E+2*r}, v{E+2*r+1}" for r in range(8)]
        m1 = qk(nb); m2 = pv(nb)
        kr = kread(t+2, b); vrd = vread(t, b)
        if t in (1, 4, 7, 10, 13) and 'noapf' not in FL:
            l = a.newlabel("pf")
            a("s_sub_u32 s62, s33, 1")
            a("s_cmp_gt_u32 s62, 1")
            a(f"s_cbranch_scc1 {l}")
            if t in (4, 10):
                a("s_mov_b64 exec, s[60:61]")
                a("buffer_load_dword v141, v139, s[44:47], 0 offen")
                a("s_mov_b64 exec, -1")
                a(f"v_add_u32 v139, {3*9216}, v139")
            else:
                a("s_mov_b64 exec, s[58:59]")
                a("buffer_load_dword v141, v138, s[48:51], 0 offen")
                a("s_mov_b64 exec, -1")
                a("v_add_u32 v138, 4096, v138")
            a.lab(l)
        if 'aord2' in FL:
            seq = [m1[0], kr[0]] + e[0:3] + [kr[1]] + e[3:5] + [m1[1], vrd[0]] + e[5:8] + [c[0], vrd[1], c[1]] + e[8:9] + [m2[0]] + e[9:12] + [c[2], c[3]] + e[12:13] + [m2[1]] + e[13:16] + [c[4], c[5], c[6], c[7]]
        elif 'aord3' in FL:
            seq = [kr[0], kr[1], vrd[0], vrd[1], m1[0]] + e[0:5] + [m1[1]] + e[5:8] + [c[0], c[1], c[2], m2[0]] + e[8:13] + [m2[1]] + e[13:16] + [c[3], c[4], c[5], c[6], c[7]]
        else:
            seq = [m1[0], kr[0], kr[1]] + e[0:4] + [vrd[0], m1[1], vrd[1]] + e[4:8] + [c[0], c[1], m2[0]] + e[8:12] + [c[2], c[3], m2[1]] + e[12:16] + [c[4], c[5], c[6], c[7]]
        for x in seq: a(x)
    a(f"v_add_u32 v5, {CHUNK}, v5"); a(f"v_add_u32 v6, {CHUNK}, v6"); a(f"v_add_u32 v7, {CHUNK}, v7")
    a("s_add_u32 s33, s33, 1")
    a("s_cmp_lt_u32 s33, 4")
    a(f"s_cbranch_scc1 {a.name}_loop")
    a("s_waitcnt lgkmcnt(0)")
    for x in pv(1): a(x)
    if 'stamp' in FL:
        a("s_memtime s[66:67]"); a("s_memrealtime s[68:69]"); a("s_waitcnt lgkmcnt(0)")
        a("s_sub_u32 s64, s64, s60"); a("s_sub_u32 s66, s66, s60"); a("s_sub_u32 s68, s68, s62")
        a("v_mov_b32 v140, s64"); a("v_mov_b32 v141, s66"); a("v_mov_b32 v142, s68"); a("v_mov_b32 v143, s60")
        a("s_lshl_b32 s70, s2, 3"); a("s_add_u32 s70, s70, s26"); a("s_lshl_b32 s70, s70, 4")
        a("v_mov_b32 v139, s70")
        a("buffer_store_dwordx4 v[140:143], v139, s[20:23], 0 offen")
    a.lab(f"{a.name}_fin")
    a("s_nop 7"); a("s_nop 7")
    a(f"v_mov_b32 v134, v{O+10}")
    a(f"v_mov_b32 v135, v{O+10}")
    a("s_nop 1")
    a("v_permlane32_swap_b32 v134, v135")
    a(f"s_mov_b32 s36, {f32hex(2.0**40)}")
    a("s_nop 0")
    a("v_cmp_nlt_f32 vcc, v134, s36") if False else a("v_cmp_ngt_f32 vcc, s36, v134")
    a("s_cmp_eq_u32 s33, 99")
    a(f"s_cbranch_scc1 {a.name}_store")
    a(f"s_cbranch_vccnz {a.name}_slow")
    a.lab(f"{a.name}_store")
    a("v_rcp_f32 v134, v134")
    a("s_nop 0")
    for r in range(10): a(f"v_mul_f32 v{O+r}, v{O+r}, v134")
    for r in range(5): a(f"v_cvt_pk_bf16_f32 v{E+r}, v{O+2*r}, v{O+2*r+1}")
    a("v_add_u32 v128, s27, v3")
    a("v_mul_u32_u24 v128, 1152, v128")
    a("v_lshl_add_u32 v128, v2, 3, v128")
    a("s_mul_i32 s30, s24, 36")
    a(f"buffer_store_dwordx2 {vr(E,2)}, v128, s[16:19], s30 offen")
    a(f"buffer_store_dwordx2 {vr(E+2,2)}, v128, s[16:19], s30 offen offset:16")
    a("s_and_saveexec_b64 s[38:39], s[34:35]")
    a(f"buffer_store_dword v{E+4}, v128, s[16:19], s30 offen offset:32")
    a("s_endpgm")
    a.lab(f"{a.name}_slow")
    a("v_mov_b32 v5, v131"); a("v_mov_b32 v6, v132"); a("v_mov_b32 v7, v133")
    a(f"v_mov_b32 v{Q2+1}, 0")
    for r in range(16): a(f"v_mov_b32 v{O+r}, 0")
    a("v_mov_b32 v136, 0xff800000")
    a("s_mov_b32 s33, 0")
    a.lab(f"{a.name}_sl1")
    a("s_mov_b32 s37, 0")
    a.lab(f"{a.name}_sl2")
    for x in kread(0, 0) + vread(0, 0): a(x)
    a("s_waitcnt lgkmcnt(0)")
    for x in qk(0): a(x)
    a("s_nop 7"); a("s_nop 7")
    a(f"v_max_f32 v134, v{SS(0)}, v{SS(0)+1}")
    for r in range(2, 16): a(f"v_max_f32 v134, v134, v{SS(0)+r}")
    a("v_mov_b32 v135, v134")
    a("s_nop 1")
    a("v_permlane32_swap_b32 v134, v135")
    a("s_nop 1")
    a("v_max_f32 v134, v134, v135")
    a("v_max_f32 v134, v134, v136")
    a("v_sub_f32 v135, v136, v134")
    a("v_exp_f32 v135, v135")
    a("v_mov_b32 v136, v134")
    for r in range(16): a(f"v_sub_f32 v{E+r}, v{SS(0)+r}, v134")
    for r in range(16): a(f"v_exp_f32 v{E+r}, v{E+r}")
    for r in range(16): a(f"v_mul_f32 v{O+r}, v{O+r}, v135")
    for r in range(8): a(f"v_cvt_pk_bf16_f32 v{PP(0)+r}, v{E+2*r}, v{E+2*r+1}")
    a("s_nop 1")
    for x in pv(0): a(x)
    a("s_nop 7"); a("s_nop 7")
    a("v_add_u32 v5, 1024, v5"); a("v_add_u32 v6, 256, v6"); a("v_add_u32 v7, 1216, v7")
    a("s_add_u32 s37, s37, 1")
    a("s_cmp_lt_u32 s37, 16")
    a(f"s_cbranch_scc1 {a.name}_sl2")
    a(f"v_add_u32 v5, {CHUNK-16*1024}, v5"); a(f"v_add_u32 v6, {CHUNK-16*256}, v6"); a(f"v_add_u32 v7, {CHUNK-16*1216}, v7")
    a("s_add_u32 s33, s33, 1")
    a("s_cmp_lt_u32 s33, 4")
    a(f"s_cbranch_scc1 {a.name}_sl1")
    a("s_mov_b32 s33, 99")
    a(f"s_branch {a.name}_fin")
    a.lab(f"{a.name}_end")
    a("s_endpgm")
    return a.text(), descriptor(a.name, 144, 0), f"; @launch kernel={a.name} grid=(256,1,1) block=(512,1,1) lds=163840"

def swap23(a, p, t1, t2):
    a(f"v_and_b32 v{t1}, 0x33, v{p}")
    a(f"v_and_b32 v{t2}, 4, v{p}")
    a(f"v_lshlrev_b32 v{t2}, 1, v{t2}")
    a(f"v_or_b32 v{t1}, v{t1}, v{t2}")
    a(f"v_and_b32 v{t2}, 8, v{p}")
    a(f"v_lshrrev_b32 v{t2}, 1, v{t2}")
    a(f"v_or_b32 v{t1}, v{t1}, v{t2}")

def sched_waits(seq):
    issued = []
    out = []
    known = 0
    for it in range(2):
        for item in seq:
            if item[0] == 'r':
                name, rel = item[1]
                issued.append((name, it + rel))
                if it == 1: out.append(item[2])
            elif item[0] == 'm':
                if it == 1:
                    idx = max(i for i, (n, t) in enumerate(issued) if t == it and n in item[1])
                    assert len([1 for (n, t) in issued if t == it and n in item[1]]) == len(item[1]), item
                    if idx + 1 > known:
                        cnt = min(len(issued) - (idx + 1), 15)
                        out.append(f"s_waitcnt lgkmcnt({cnt})")
                        known = idx + 1
                    out.append(item[2])
            else:
                if it == 1: out.append(item[1])
    return out

def skeleton(a, R, STG, NST, NLD, loader_setup, dma, cons_setup, body, nbase, epilogue, custom_loader=None):
    skeleton2(a, R, STG, NST, NLD, loader_setup, dma, cons_setup, [(None, body, epilogue)], nbase, custom_loader)

def skeleton2(a, R, STG, NST, NLD, loader_setup, dma, cons_setup, variants, nbase, custom_loader=None):
    a("s_cmp_ge_u32 s26, 4")
    a(f"s_cbranch_scc0 {a.name}_cons")
    a("s_sub_u32 s26, s26, 4")
    if custom_loader:
        a("s_cmp_ge_u32 s26, 4")
        a(f"s_cbranch_scc0 {a.name}_std")
        a("s_sub_u32 s26, s26, 4")
        custom_loader()
        a("s_endpgm")
        a.lab(f"{a.name}_std")
    std_loader(a, R, STG, NST, NLD, loader_setup, dma)
    cons_part(a, R, STG, NST, cons_setup, variants, nbase)

def std_loader(a, R, STG, NST, NLD, loader_setup, dma):
    loader_setup()
    a("s_mov_b32 s34, 0")
    def dma_adv():
        dma()
        a(f"s_add_u32 s34, s34, {STG}")
        a(f"s_cmp_eq_u32 s34, {R*STG}")
        a("s_cselect_b32 s34, 0, s34")
    for st in range(R-1): dma_adv()
    a(f"s_waitcnt vmcnt({(R-2)*NLD})")
    a("s_barrier")
    a("s_mov_b32 s40, 0")
    a.lab(f"{a.name}_lloop")
    a(f"s_waitcnt vmcnt({(R-3)*NLD})")
    a("s_barrier")
    dma_adv()
    a("s_add_u32 s40, s40, 1")
    a(f"s_cmp_lt_u32 s40, {NST-R+1}")
    a(f"s_cbranch_scc1 {a.name}_lloop")
    for k in range(R-1):
        a(f"s_waitcnt vmcnt({max(R-3-k,0)*NLD})")
        a("s_barrier")
    a("s_endpgm")

def cons_part(a, R, STG, NST, cons_setup, variants, nbase):
    a.lab(f"{a.name}_cons")
    cons_setup()
    nb0, n = nbase
    for r in range(n):
        a(f"v_mov_b32 v{nb0+n+r}, v{nb0+r}")
        a(f"v_mov_b32 v{nb0+2*n+r}, v{nb0+r}")
    a("s_mov_b32 s39, 0")
    a("s_mov_b32 s40, 0")
    a("s_barrier")
    stamp_mid(a, 0)
    for vi, (cmp, body, epilogue) in enumerate(variants):
        if vi: a.lab(f"{a.name}_var{vi}")
        if cmp:
            a(cmp); a(f"s_cbranch_scc1 {a.name}_var{vi+1}")
        seq = body()
        for item in seq:
            if item[0] == 'r' and item[1][1] == 1: a(item[2])
        a.lab(f"{a.name}_loop{vi}")
        a(f"s_add_u32 s39, s39, {STG}")
        a(f"s_cmp_eq_u32 s39, {R*STG}")
        a("s_cselect_b32 s39, 0, s39")
        for r in range(n):
            a(f"v_mov_b32 v{nb0+n+r}, v{nb0+2*n+r}")
            a(f"v_add_u32 v{nb0+2*n+r}, s39, v{nb0+r}")
        for x in sched_waits(seq):
            if x == '@BAR': a("s_barrier")
            elif x.startswith('@LAB '): a.lab(x[5:])
            else: a(x)
        a("s_add_u32 s40, s40, 1")
        a(f"s_cmp_lt_u32 s40, {NST}")
        a(f"s_cbranch_scc1 {a.name}_loop{vi}")
        a("s_waitcnt lgkmcnt(0)")
        stamp_mid(a, 1)
        epilogue()
    a.lab(f"{a.name}_done")
    stamp_end(a, 8)
    a.lab(f"{a.name}_end")
    a("s_endpgm")

def common_entry(a, nwg, args):
    a(f"s_cmp_ge_u32 s2, {nwg}")
    a(f"s_cbranch_scc1 {a.name}_end")
    for reg, off in args: a(f"s_load_dwordx2 s[{reg}:{reg+1}], s[0:1], {off}")
    a("v_and_b32 v1, 63, v0")
    a("v_lshrrev_b32 v2, 4, v1")
    a("v_and_b32 v3, 15, v1")
    a("v_lshrrev_b32 v4, 6, v0")
    a("s_nop 1")
    a("v_readfirstlane_b32 s26, v4")

def k4():
    a = Asm("mlp1_kernel"); header(a)
    R = 5; STG = 28672; NST = 32
    ACC = lambda b: 96 + 16*b
    WF = lambda ks: 24 + ks*4
    GF = lambda ks, b: 40 + (ks*3 + b)*4
    common_entry(a, 216, [(4, 32), (6, 40), (28, 80)])
    a("s_and_b32 s24, s2, 7")
    a("s_mul_i32 s24, s24, 27")
    a("s_lshr_b32 s25, s2, 3")
    a("s_add_u32 s24, s24, s25")
    a("s_mul_i32 s25, s24, 10923")
    a("s_lshr_b32 s25, s25, 16")
    a("s_mul_i32 s30, s25, 6")
    a("s_sub_u32 s24, s24, s30")
    a("s_waitcnt lgkmcnt(0)")
    srd_from_arg(a, 8, 32, S*F*2, 4)
    srd_from_arg(a, 12, 40, F*2, 6)
    srd_ws(a, 16, 28, WS_G, SZ_SD)
    srd_ws(a, 20, 28, WS_U, SZ_U)
    stamp_begin(a)
    def loader_setup():
        a("s_lshl_b32 s30, s26, 4")
        a("v_add_u32 v10, s30, v2")
        a("v_mul_u32_u24 v10, 9216, v10")
        a("v_lshlrev_b32 v11, 2, v2")
        a("v_xor_b32 v11, v11, v3")
        a("v_lshl_add_u32 v10, v11, 4, v10")
        a("s_lshl_b32 s30, s25, 8")
        a("v_add_u32 v5, s30, v10")
        a("s_mul_i32 s30, s26, 3072")
        a(f"s_mul_i32 s31, s24, {2048*192}")
        a("s_add_u32 s30, s30, s31")
        a("v_lshl_add_u32 v6, v1, 4, s30")
        a("s_lshl_b32 s32, s26, 12")
        a("s_mul_i32 s33, s26, 3072")
        a("s_add_u32 s33, s33, 16384")
        a("s_mov_b32 s35, 0"); a("s_mov_b32 s36, 0")
    def dma():
        a("s_add_u32 s37, s34, s32")
        for m in range(4):
            a(f"s_add_u32 m0, s37, {m*1024}")
            a(f"s_add_u32 s38, s35, {m*36864}")
            a("buffer_load_dwordx4 v5, s[8:11], s38 offen lds")
        a("s_add_u32 m0, s34, s33")
        a("s_nop 0")
        for m in range(3):
            a(f"buffer_load_dwordx4 v6, s[16:19], s36 offen offset:{m*1024} lds")
        a(f"s_add_u32 s35, s35, {64*9216}")
        a(f"s_add_u32 s36, s36, {64*192}")
    def cons_setup():
        a("v_lshrrev_b32 v150, 2, v3")
        a("v_and_b32 v151, 3, v3")
        a("v_lshrrev_b32 v152, 1, v2")
        a("v_and_b32 v153, 1, v2")
        a("v_lshl_add_u32 v154, v152, 3, v150")
        a("v_lshrrev_b32 v155, 1, v151")
        a("v_lshl_add_u32 v155, v153, 1, v155")
        a("s_lshl_b32 s30, s26, 2")
        a("v_add_u32 v155, s30, v155")
        a("v_lshlrev_b32 v156, 2, v150")
        a("v_xor_b32 v155, v155, v156")
        a("v_lshlrev_b32 v155, 4, v155")
        a("v_lshl_add_u32 v155, v154, 8, v155")
        a("v_and_b32 v156, 1, v151")
        a("v_lshl_add_u32 v10, v156, 3, v155")
        a("v_mul_u32_u24 v155, 192, v154")
        a("v_lshl_add_u32 v155, v153, 5, v155")
        a("v_lshl_add_u32 v155, v151, 3, v155")
        a("v_add_u32 v11, 16384, v155")
        for r in range(96, 144): a(f"v_mov_b32 v{r}, 0")
    def rd(ks, rel):
        wb, gb = ("v14", "v15") if rel else ("v12", "v13")
        L = []
        for hh in range(2):
            L.append(('r', (f"W{ks}{hh}", rel), f"ds_read_b64_tr_b16 {vr(WF(ks)+2*hh,2)}, {wb} offset:{ks*4096 + hh*1024}"))
        for b in range(3):
            for hh in range(2):
                L.append(('r', (f"G{ks}{b}{hh}", rel), f"ds_read_b64_tr_b16 {vr(GF(ks,b)+2*hh,2)}, {gb} offset:{ks*3072 + hh*768 + 64*b}"))
        return L
    def body():
        seq = []
        for ks in range(4):
            if ks == 2: seq.append(('x', '@BAR'))
            r = rd((ks+2) % 4, 1 if ks >= 2 else 0)
            for b in range(3):
                seq.append(('m', [f"W{ks}0", f"W{ks}1", f"G{ks}{b}0", f"G{ks}{b}1"],
                            f"v_mfma_f32_32x32x16_bf16 {vr(ACC(b),16)}, {vr(WF(ks),4)}, {vr(GF(ks,b),4)}, {vr(ACC(b),16)}"))
                seq += r[3*b:3*b+3]
        return seq
    def epilogue():
        a("v_lshrrev_b32 v4, 5, v1")
        a("s_lshl_b32 s30, s25, 8")
        a("s_lshl_b32 s31, s26, 6")
        a("s_add_u32 s30, s30, s31")
        a("v_lshl_add_u32 v150, v4, 3, s30")
        for qd in range(4): a(f"buffer_load_dwordx2 {vr(24+2*qd,2)}, v150, s[12:15], 0 offen offset:{16*qd}")
        a("v_and_b32 v151, 31, v1")
        a("s_mul_i32 s31, s24, 96")
        a("v_add_u32 v151, s31, v151")
        a("v_lshlrev_b32 v151, 7, v151")
        a("v_lshl_add_u32 v151, v4, 3, v151")
        a("s_lshr_b32 s31, s26, 1")
        a("s_lshl_b32 s30, s25, 1")
        a("s_add_u32 s31, s31, s30")
        a("s_mul_i32 s31, s31, 73728")
        a("s_and_b32 s30, s26, 1")
        a("s_lshl_b32 s30, s30, 6")
        a("s_add_u32 s31, s31, s30")
        a("v_add_u32 v16, s31, v151")
        a("s_waitcnt vmcnt(0)")
        for qd in range(4):
            for p in range(2):
                a(f"v_lshlrev_b32 v{32+4*qd+2*p}, 16, v{24+2*qd+p}")
                a(f"v_and_b32 v{33+4*qd+2*p}, 0xffff0000, v{24+2*qd+p}")
        c0 = -2.0*math.sqrt(2.0/math.pi)*LOG2E
        a(f"s_mov_b32 s41, {f32hex(c0*0.044715)}")
        a(f"v_mov_b32 v17, {f32hex(c0)}")
        for b in range(3):
            for qd in range(4):
                c = ACC(b) + 4*qd
                for r in range(4): a(f"v_add_f32 v{c+r}, v{c+r}, v{32+4*qd+r}")
                for r in range(4): a(f"v_mul_f32 v{150+r}, v{c+r}, v{c+r}")
                for r in range(4): a(f"v_fma_f32 v{150+r}, v{150+r}, s41, v17")
                for r in range(4): a(f"v_mul_f32 v{150+r}, v{150+r}, v{c+r}")
                for r in range(4): a(f"v_exp_f32 v{150+r}, v{150+r}")
                for r in range(4): a(f"v_add_f32 v{150+r}, 1.0, v{150+r}")
                for r in range(4): a(f"v_rcp_f32 v{150+r}, v{150+r}")
                for r in range(4): a(f"v_mul_f32 v{c+r}, v{c+r}, v{150+r}")
                a(f"v_cvt_pk_bf16_f32 v{c}, v{c}, v{c+1}")
                a(f"v_cvt_pk_bf16_f32 v{c+1}, v{c+2}, v{c+3}")
                a(f"buffer_store_dwordx2 {vr(c,2)}, v16, s[20:23], 0 offen offset:{b*4096 - (4096 if b==1 else 0)*0 + 16*qd}" if b == 0 else
                  f"buffer_store_dwordx2 {vr(c,2)}, v16, s[20:23], s{41+b} offen offset:{16*qd}")
            if b < 2: a(f"s_mov_b32 s{42+b}, {(b+1)*4096}")
    skeleton(a, R, STG, NST, 7, loader_setup, dma, cons_setup, body, (10, 2), epilogue)
    return a.text(), descriptor(a.name, 168, 0), f"; @launch kernel={a.name} grid=(216,1,1) block=(512,1,1) lds={R*STG}"

def k5():
    a = Asm("mlp2_kernel"); header(a)
    R = 4; STG = 34816; NST = 18; UB = 18432
    ACC = lambda j, t: 112 + (j*2 + t)*4
    UF = lambda buf, j: 24 + (buf*9 + j)*4
    WF = lambda buf, t: 96 + (buf*2 + t)*4
    common_entry(a, 256, [(4, 48), (28, 80), (6, 56), (64, 64), (66, 72)])
    a("s_and_b32 s24, s2, 7")
    a("s_lshl_b32 s24, s24, 5")
    a("s_lshr_b32 s25, s2, 3")
    a("s_add_u32 s27, s24, s25")
    a("s_and_b32 s24, s27, 3")
    a("s_lshr_b32 s25, s27, 2")
    a("s_and_b32 s25, s25, 15")
    a("s_lshr_b32 s27, s27, 6")
    a("s_waitcnt lgkmcnt(0)")
    srd_from_arg(a, 8, 48, F*S*2, 4)
    srd_ws(a, 16, 28, WS_U, SZ_U)
    srd_ws(a, 20, 28, WS_P, SZ_P)
    srd_from_arg(a, 12, 56, S*2, 6)
    srd_ws(a, 44, 28, WS_H, SZ_SD)
    srd_from_arg(a, 56, 72, 256, 66)
    srd_from_arg(a, 60, 64, S*D*2, 64)
    stamp_begin(a)
    def loader_setup():
        a("s_lshl_b32 s30, s26, 2")
        a("v_add_u32 v10, s30, v2")
        a("v_and_b32 v10, 7, v10")
        a("v_and_b32 v11, 7, v1")
        a("v_xor_b32 v10, v10, v11")
        a("v_lshrrev_b32 v11, 3, v1")
        a("v_lshlrev_b32 v11, 7, v11")
        a("v_lshl_add_u32 v5, v10, 4, v11")
        a("s_and_b32 s30, s26, 1")
        a("s_add_u32 s45, s30, 16")
        a("s_lshl_b32 s45, s45, 10")
        a("s_lshl_b32 s46, s26, 10")
        a("s_lshl_b32 s30, s26, 4")
        a("v_add_u32 v10, s30, v2")
        a("v_lshlrev_b32 v10, 12, v10")
        a("s_lshl_b32 s30, s25, 8")
        a("v_add_u32 v10, s30, v10")
        a("v_lshlrev_b32 v11, 1, v2")
        a("v_xor_b32 v11, v11, v3")
        a("v_lshl_add_u32 v6, v11, 4, v10")
        a("v_xor_b32 v11, 8, v11")
        a("v_lshl_add_u32 v7, v11, 4, v10")
        a("s_lshl_b32 s32, s26, 12")
        a(f"s_add_u32 s32, s32, {UB}")
        a(f"s_mul_i32 s35, s27, {18*73728}")
        a(f"s_mul_i32 s30, s24, {UB}")
        a("s_add_u32 s35, s35, s30")
        a(f"s_mul_i32 s36, s27, {1152*4096}")
    def dma():
        a("s_add_u32 s37, s34, s46")
        a("s_add_u32 s47, s35, s46")
        for m in range(4):
            a(f"s_add_u32 m0, s37, {m*4096}")
            a(f"s_add_u32 s38, s47, {m*4096}")
            a("buffer_load_dwordx4 v5, s[16:19], s38 offen lds")
        a("s_add_u32 m0, s34, s45")
        a("s_add_u32 s38, s35, s45")
        a("buffer_load_dwordx4 v5, s[16:19], s38 offen lds")
        a("s_add_u32 s37, s34, s32")
        for m in range(4):
            a(f"s_add_u32 m0, s37, {m*1024}")
            a(f"s_add_u32 s38, s36, {m*4*4096}")
            a(f"buffer_load_dwordx4 v{6 + (m>>1)}, s[8:11], s38 offen lds")
        a("s_add_u32 s35, s35, 73728")
        a(f"s_add_u32 s36, s36, {64*4096}")
    def cons_setup():
        a("v_lshrrev_b32 v200, 1, v3")
        a("v_xor_b32 v201, v2, v200")
        a("v_lshlrev_b32 v202, 7, v3")
        a("v_lshl_add_u32 v8, v201, 4, v202")
        a("v_xor_b32 v201, 4, v201")
        a("v_lshl_add_u32 v9, v201, 4, v202")
        a("v_lshrrev_b32 v200, 2, v3")
        a("v_and_b32 v201, 3, v3")
        a("v_lshl_add_u32 v202, v2, 3, v200")
        a("v_and_b32 v203, 1, v2")
        a("v_lshl_add_u32 v203, v203, 2, v200")
        a("v_lshlrev_b32 v203, 1, v203")
        a("v_lshrrev_b32 v204, 1, v201")
        a("s_lshl_b32 s30, s26, 2")
        a("v_add_u32 v204, s30, v204")
        a("v_xor_b32 v205, v204, v203")
        a("v_lshlrev_b32 v205, 4, v205")
        a("v_lshl_add_u32 v205, v202, 8, v205")
        a("v_and_b32 v206, 1, v201")
        a("v_lshl_add_u32 v205, v206, 3, v205")
        a(f"v_add_u32 v10, {UB}, v205")
        a("v_xor_b32 v11, 32, v10")
        for r in range(112, 184): a(f"v_mov_b32 v{r}, 0")
    def rd(ks, rel):
        b = 16 if rel else 12
        L = []
        for t in range(2):
            for hh in range(2):
                L.append(('r', (f"W{ks}{t}{hh}", rel), f"ds_read_b64_tr_b16 {vr(WF(ks,t)+2*hh,2)}, v{b+2+t} offset:{ks*8192 + hh*1024}"))
        for j in range(9):
            L.append(('r', (f"U{ks}{j}", rel), f"ds_read_b128 {vr(UF(ks,j),4)}, v{b+ks} offset:{j*2048}"))
        return L
    def body():
        seq = []
        for ks in range(2):
            if ks == 1: seq.append(('x', '@BAR'))
            r = rd(1-ks, ks)
            k = 0
            for j in range(9):
                for t in range(2):
                    C = vr(ACC(j,t),4)
                    seq.append(('m', [f"U{ks}{j}", f"W{ks}{t}0", f"W{ks}{t}1"], f"v_mfma_f32_16x16x32_bf16 {C}, {vr(UF(ks,j),4)}, {vr(WF(ks,t),4)}, {C}"))
                    if k < len(r): seq.append(r[k]); k += 1
        return seq
    HR = lambda j, t: 184 + (j*2 + t)*2
    def epilogue():
        a("s_lshl_b32 s30, s25, 7")
        a("s_lshl_b32 s31, s26, 5")
        a("s_add_u32 s30, s30, s31")
        a("v_add_u32 v20, s30, v3")
        a("v_mul_u32_u24 v21, 192, v20")
        a("v_lshl_add_u32 v21, v2, 3, v21")
        a("v_lshlrev_b32 v22, 1, v20")
        a("buffer_load_ushort v220, v22, s[12:15], 0 offen")
        a("buffer_load_ushort v221, v22, s[12:15], 0 offen offset:32")
        a("s_mul_i32 s48, s24, 9")
        for j in range(9):
            a(f"s_add_u32 s49, s48, {j}")
            a("s_mul_i32 s50, s49, 43")
            a("s_lshr_b32 s50, s50, 8")
            a("s_mul_i32 s51, s50, 6")
            a("s_sub_u32 s49, s49, s51")
            a("s_lshl_b32 s49, s49, 5")
            a(f"s_mul_i32 s50, s50, {2048*192}")
            a("s_add_u32 s49, s49, s50")
            for t in range(2):
                a(f"buffer_load_dwordx2 {vr(HR(j,t),2)}, v21, s[44:47], s49 offen offset:{t*3072}")
        a("s_lshl_b32 s30, s25, 2")
        a("s_add_u32 s30, s30, s24")
        a("s_lshl_b32 s31, s30, 2")
        a("s_add_u32 s31, s31, s26")
        a("s_mul_i32 s31, s31, 9216")
        a("v_lshl_add_u32 v23, v1, 4, s31")
        a(f"s_mul_i32 s52, s27, {64*4*9216}")
        for j in range(9):
            b = 24 + 4*j
            for t in range(2):
                c = ACC(j,t)
                a(f"v_cvt_pk_bf16_f32 v{b+2*t}, v{c}, v{c+1}")
                a(f"v_cvt_pk_bf16_f32 v{b+2*t+1}, v{c+2}, v{c+3}")
            if j < 4: a(f"buffer_store_dwordx4 {vr(b,4)}, v23, s[20:23], s52 offen offset:{j*1024} sc1")
            else:
                if j == 4: a("s_add_u32 s53, s52, 4096")
                if j == 8: a("s_add_u32 s53, s53, 4096")
                a(f"buffer_store_dwordx4 {vr(b,4)}, v23, s[20:23], s53 offen offset:{(j%4)*1024} sc1")
        a("s_waitcnt vmcnt(0)")
        a("s_barrier")
        lw = a.newlabel("w0")
        a("s_cmp_eq_u32 s26, 0")
        a(f"s_cbranch_scc0 {lw}")
        a("v_mov_b32 v24, 1")
        a("s_lshl_b32 s30, s30, 2")
        a("v_mov_b32 v25, s30")
        a("s_mov_b64 exec, 1")
        a("buffer_atomic_add v24, v25, s[48:51], 0 offen sc0") if False else None
        a("buffer_atomic_add v24, v25, s[56:59], 0 offen sc0")
        a("s_waitcnt vmcnt(0)")
        a("v_mov_b32 v25, 0")
        a("ds_write_b32 v25, v24")
        a("s_waitcnt lgkmcnt(0)")
        a("s_mov_b64 exec, -1")
        a.lab(lw)
        a("s_barrier")
        a("v_mov_b32 v25, 0")
        a("ds_read_b32 v24, v25")
        a("s_waitcnt lgkmcnt(0)")
        a("v_readfirstlane_b32 s30, v24")
        a("s_cmp_eq_u32 s30, 3")
        a(f"s_cbranch_scc0 {a.name}_done")
        for o in range(1, 4):
            a(f"s_add_u32 s30, s27, {o}")
            a("s_and_b32 s30, s30, 3")
            a(f"s_mul_i32 s52, s30, {64*4*9216}")
            base = [24, 60, 222][o-1]
            for j in range(9):
                if j == 4 or j == 8: a("s_add_u32 s52, s52, 4096")
                a(f"buffer_load_dwordx4 {vr(base+4*j,4) if o < 3 or j < 8 else vr(96,4)}, v23, s[20:23], s52 offen offset:{(j%4)*1024} sc1")
        a("v_mul_u32_u24 v21, 1152, v20")
        a("v_lshl_add_u32 v21, v2, 3, v21")
        a("s_mul_i32 s30, s24, 288")
        a("v_add_u32 v21, s30, v21")
        a("s_mov_b32 s31, 18432")
        a("s_waitcnt vmcnt(0)")
        a("v_lshlrev_b32 v220, 16, v220"); a("v_lshlrev_b32 v221, 16, v221")
        a("v_mov_b32 v100, 0x00003f80"); a("v_mov_b32 v101, 0x3f800000")
        for j in range(9):
            for t in range(2):
                c = ACC(j,t)
                srcs = [24+4*j+2*t, 60+4*j+2*t, (222+4*j+2*t) if j < 8 else (96+2*t), HR(j,t)]
                for r in range(4): a(f"v_add_f32 v{c+r}, v{c+r}, v{220+t}")
                for sreg in srcs:
                    for r in range(4): a(f"v_dot2c_f32_bf16 v{c+r}, v{sreg + r//2}, v{100 + r%2}")
                a("s_nop 1")
                a(f"v_cvt_pk_bf16_f32 v{c}, v{c}, v{c+1}")
                a(f"v_cvt_pk_bf16_f32 v{c+1}, v{c+2}, v{c+3}")
                a(f"buffer_store_dwordx2 {vr(c,2)}, v21, s[60:63], {'s31' if t else '0'} offen offset:{32*j}")
    skeleton(a, R, STG, NST, 9, loader_setup, dma, cons_setup, body, (8, 4), epilogue)
    return a.text(), descriptor(a.name, 256, 0), f"; @launch kernel={a.name} grid=(256,1,1) block=(512,1,1) lds={R*STG}"

def k6():
    a = Asm("final_kernel"); header(a)
    a("s_cmp_ge_u32 s2, 576")
    a(f"s_cbranch_scc1 {a.name}_end")
    a("s_load_dwordx2 s[4:5], s[0:1], 56")
    a("s_load_dwordx2 s[6:7], s[0:1], 64")
    a("s_load_dwordx2 s[28:29], s[0:1], 80")
    a("s_lshl_b32 s3, s2, 8")
    a("v_add_u32 v1, s3, v0")
    a("v_lshlrev_b32 v2, 4, v1")
    a("v_lshlrev_b32 v3, 5, v1")
    a("v_mul_u32_u24 v4, 58255, v1") if False else None
    a("s_mov_b32 s30, 0x38e38e4")
    a("v_mul_hi_u32 v4, v1, s30")
    a("v_mul_u32_u24 v12, 72, v4")
    a("v_sub_u32 v12, v1, v12")
    a("v_mul_u32_u24 v13, 43691, v12")
    a("v_lshrrev_b32 v13, 19, v13")
    a("v_mul_u32_u24 v14, 12, v13")
    a("v_sub_u32 v12, v12, v14")
    a("s_mov_b32 s31, 393216")
    a("v_mul_lo_u32 v13, v13, s31")
    a("v_mul_u32_u24 v14, 192, v4")
    a("v_add_u32 v13, v13, v14")
    a("v_lshl_add_u32 v12, v12, 4, v13")
    a("v_lshlrev_b32 v4, 1, v4")
    a("s_waitcnt lgkmcnt(0)")
    srd_from_arg(a, 8, 56, S*2, 4)
    srd_from_arg(a, 12, 64, S*D*2, 6)
    srd_ws(a, 16, 28, WS_H, SZ_SD)
    srd_ws(a, 20, 28, WS_P, SZ_P)
    a("buffer_load_ushort v5, v4, s[8:11], 0 offen")
    a("buffer_load_dwordx4 v[8:11], v12, s[16:19], 0 offen")
    for p in range(4):
        a(f"s_mov_b32 s{32+p}, {p*S*D*4}")
        a(f"buffer_load_dwordx4 {vr(16+8*p,4)}, v3, s[20:23], s{32+p} offen")
        a(f"buffer_load_dwordx4 {vr(20+8*p,4)}, v3, s[20:23], s{32+p} offen offset:16")
    a("s_waitcnt vmcnt(0)")
    a("v_lshlrev_b32 v5, 16, v5")
    for r in range(8):
        a(f"v_add_f32 v{16+r}, v{16+r}, v{24+r}")
        a(f"v_add_f32 v{32+r}, v{32+r}, v{40+r}")
        a(f"v_add_f32 v{16+r}, v{16+r}, v{32+r}")
        a(f"v_add_f32 v{16+r}, v{16+r}, v5")
    for r in range(4):
        a(f"v_lshlrev_b32 v6, 16, v{8+r}")
        a(f"v_and_b32 v7, 0xffff0000, v{8+r}")
        a(f"v_add_f32 v6, v6, v{16+2*r}")
        a(f"v_add_f32 v7, v7, v{17+2*r}")
        a(f"v_cvt_pk_bf16_f32 v{8+r}, v6, v7")
    a("buffer_store_dwordx4 v[8:11], v2, s[12:15], 0 offen")
    a.lab(f"{a.name}_end")
    a("s_endpgm")
    return a.text(), descriptor(a.name, 48, 0), f"; @launch kernel={a.name} grid=(576,1,1) block=(256,1,1) lds=0"

def k1():
    a = Asm("qkv_kernel"); header(a)
    R = 4; XB = 16384; STG = 34816; NST = 9
    ACC = lambda i, j: 112 + (i*9 + j)*4
    XF = lambda ks, i: 24 + (ks*2 + i)*4
    WF = lambda ks, j: 40 + (ks*9 + j)*4
    CW = lambda j: 184 + 4*j
    S1 = lambda i: 220 + 4*i
    S2 = lambda i: 228 + 4*i
    ONE = 236
    T = 240
    common_entry(a, 192, [(4, 0), (6, 8), (28, 80)])
    a("s_mul_i32 s24, s2, 5462")
    a("s_lshr_b32 s24, s24, 16")
    a("s_mul_i32 s25, s24, 12")
    a("s_sub_u32 s25, s2, s25")
    a("s_lshr_b32 s41, s25, 2")
    a("s_waitcnt lgkmcnt(0)")
    srd_from_arg(a, 8, 0, S*D*2, 4)
    srd_from_arg(a, 12, 8, D*3*D*2, 6)
    srd_ws(a, 16, 28, WS_Q, SZ_Q)
    srd_ws(a, 20, 28, WS_KV, SZ_KV)
    stamp_begin(a)
    def loader_setup():
        a("s_lshl_b32 s30, s26, 2")
        a("v_add_u32 v10, s30, v2")
        a("v_and_b32 v10, 7, v10")
        a("v_and_b32 v11, 7, v1")
        a("v_xor_b32 v10, v10, v11")
        a("v_lshrrev_b32 v11, 3, v1")
        a("s_lshl_b32 s30, s24, 7")
        a("s_lshl_b32 s31, s26, 3")
        a("s_add_u32 s30, s30, s31")
        a("v_add_u32 v11, s30, v11")
        a("v_mul_u32_u24 v11, 1152, v11")
        a("v_lshl_add_u32 v5, v10, 4, v11")
        a("s_lshl_b32 s32, s26, 6")
        a("s_and_b32 s33, s26, 1")
        a("s_add_u32 s33, s33, 16")
        a("s_lshl_b32 s30, s33, 6")
        a("s_mul_i32 s31, s25, 288")
        for n in range(5):
            if n < 4:
                a(f"v_add_u32 v20, s32, v1")
                if n: a(f"v_add_u32 v20, {n*256}, v20")
            else:
                a(f"v_add_u32 v20, s30, v1")
            a("v_mul_u32_u24 v21, 3641, v20")
            a("v_lshrrev_b32 v21, 16, v21")
            a("v_mul_u32_u24 v22, 18, v21")
            a("v_sub_u32 v22, v20, v22")
            swap23(a, 21, 23, 24)
            a("v_mul_u32_u24 v23, 3456, v23")
            a("v_lshl_add_u32 v23, v22, 4, v23")
            a(f"v_add_u32 v{6+n}, s31, v23")
        a("s_lshl_b32 s46, s26, 10")
        a("s_lshl_b32 s45, s33, 10")
        a(f"s_add_u32 s45, s45, {XB}")
        a("s_mov_b32 s35, 0"); a("s_mov_b32 s36, 0")
    def dma():
        a("s_add_u32 s37, s34, s46")
        for m in range(4):
            a(f"s_add_u32 m0, s37, {m*4096}")
            a(f"s_add_u32 s38, s35, {m*32*1152}")
            a("buffer_load_dwordx4 v5, s[8:11], s38 offen lds")
        for n in range(5):
            if n < 4: a(f"s_add_u32 m0, s37, {XB + n*4096}")
            else:     a("s_add_u32 m0, s34, s45")
            a("s_nop 0")
            a(f"buffer_load_dwordx4 v{6+n}, s[12:15], s36 offen lds")
        a("s_add_u32 s35, s35, 128")
        a(f"s_add_u32 s36, s36, {64*3456}")
    def cons_setup():
        a("v_lshrrev_b32 v240, 1, v3")
        a("v_xor_b32 v241, v2, v240")
        a("s_lshl_b32 s30, s26, 5")
        a("v_add_u32 v242, s30, v3")
        a("v_lshlrev_b32 v242, 7, v242")
        a("v_lshl_add_u32 v8, v241, 4, v242")
        a("v_xor_b32 v241, 4, v241")
        a("v_lshl_add_u32 v9, v241, 4, v242")
        a("v_lshrrev_b32 v240, 1, v2")
        a("v_and_b32 v241, 1, v2")
        a("v_lshlrev_b32 v240, 4, v240")
        a("v_lshl_add_u32 v240, v241, 2, v240")
        a("v_lshrrev_b32 v241, 2, v3")
        a("v_add_u32 v240, v240, v241")
        a("v_mul_u32_u24 v240, 288, v240")
        a("v_and_b32 v241, 3, v3")
        a("v_lshl_add_u32 v10, v241, 3, v240")
        a(f"v_add_u32 v10, {XB}, v10")
        for r in range(112, 236): a(f"v_mov_b32 v{r}, 0")
        for r in range(236, 240): a(f"v_mov_b32 v{r}, 0x3f803f80")
        a("s_mov_b32 s42, 0")
    def mkbody(mode):
        def rd(ks, rel):
            b = 14 if rel else 11
            L = []
            for i in range(2):
                L.append(('r', (f"X{ks}{i}", rel), f"ds_read_b128 {vr(XF(ks,i),4)}, v{b+ks} offset:{i*2048}"))
            for j in range(9):
                for hh in range(2):
                    L.append(('r', (f"W{ks}{j}{hh}", rel), f"ds_read_b64_tr_b16 {vr(WF(ks,j)+2*hh,2)}, v{b+2} offset:{ks*32*288 + hh*8*288 + 32*j}"))
            return L
        def body():
            seq = []
            for ks in range(2):
                if ks == 1: seq.append(('x', '@BAR'))
                r = rd(1-ks, ks)
                ms = []
                for i in range(2):
                    X = vr(XF(ks,i),4)
                    ms.append(('m', [f"X{ks}{i}"], f"v_mfma_f32_16x16x32_bf16 {vr(S1(i),4)}, {vr(ONE,4)}, {X}, {vr(S1(i),4)}"))
                    ms.append(('m', [f"X{ks}{i}"], f"v_mfma_f32_16x16x32_bf16 {vr(S2(i),4)}, {X}, {X}, {vr(S2(i),4)}"))
                for j in range(9):
                    for i in range(2):
                        W = vr(WF(ks,j),4); X = vr(XF(ks,i),4); C = vr(ACC(i,j),4)
                        ops = f"{W}, {X}" if mode == "qk" else f"{X}, {W}"
                        ms.append(('m', [f"X{ks}{i}", f"W{ks}{j}0", f"W{ks}{j}1"], f"v_mfma_f32_16x16x32_bf16 {C}, {ops}, {C}"))
                k = 0
                for m in ms:
                    seq.append(m)
                    if k < len(r): seq.append(r[k]); k += 1
                l = a.newlabel("cw")
                seq.append(('x', "s_and_b32 s43, s42, 3"))
                seq.append(('x', "s_add_u32 s42, s42, 1"))
                seq.append(('x', "s_cmp_eq_u32 s43, s26"))
                seq.append(('x', f"s_cbranch_scc0 {l}"))
                for j in range(9):
                    W = vr(WF(ks,j),4); C = vr(CW(j),4)
                    ops = f"{W}, {vr(ONE,4)}" if mode == "qk" else f"{vr(ONE,4)}, {W}"
                    seq.append(('x', f"v_mfma_f32_16x16x32_bf16 {C}, {ops}, {C}"))
                seq.append(('x', f"@LAB {l}"))
            return seq
        return body
    P = 296
    def mkepi(mode):
        def epilogue():
            a("s_nop 7")
            a("s_barrier")
            a("s_mul_i32 s40, s26, 576")
            if mode == "qk":
                a("v_lshlrev_b32 v24, 4, v2")
                a("v_add_u32 v25, s40, v24")
                for j in range(9): a(f"ds_write_b128 v25, {vr(CW(j),4)} offset:{j*64}")
            else:
                a("v_lshlrev_b32 v24, 2, v3")
                a("v_add_u32 v25, s40, v24")
                for j in range(9): a(f"ds_write_b32 v25, v{CW(j)} offset:{j*64}")
            a("v_and_b32 v26, 3, v3")
            a("v_lshrrev_b32 v27, 2, v3")
            a("v_lshl_add_u32 v27, v27, 4, v3")
            a("v_lshlrev_b32 v27, 2, v27")
            for i in range(2):
                a(f"v_cmp_eq_u32 vcc, 1, v26"); a("s_nop 1")
                a(f"v_cndmask_b32 v{28+i}, v{S2(i)}, v{S2(i)+1}, vcc")
                a(f"v_cmp_eq_u32 vcc, 2, v26"); a("s_nop 1")
                a(f"v_cndmask_b32 v{28+i}, v{28+i}, v{S2(i)+2}, vcc")
                a(f"v_cmp_eq_u32 vcc, 3, v26"); a("s_nop 1")
                a(f"v_cndmask_b32 v{28+i}, v{28+i}, v{S2(i)+3}, vcc")
                a(f"ds_bpermute_b32 v{30+i}, v27, v{28+i}")
            a(f"s_mov_b32 s44, {f32hex(1.0/576)}")
            a(f"s_mov_b32 s45, {f32hex(1e-5)}")
            a("s_waitcnt lgkmcnt(0)")
            for i in range(2):
                a(f"v_mul_f32 v{28+i}, s44, v{S1(i)}")
                a(f"v_mul_f32 v{30+i}, s44, v{30+i}")
                a(f"v_fma_f32 v{30+i}, -v{28+i}, v{28+i}, v{30+i}")
                a(f"v_max_f32 v{30+i}, 0, v{30+i}")
                a(f"v_add_f32 v{30+i}, s45, v{30+i}")
                a(f"v_rsq_f32 v{32+i}, v{30+i}")
            a("s_nop 0")
            if mode == "qk":
                a(f"s_mov_b32 s43, {f32hex(QSCALE)}")
                a("s_cmp_eq_u32 s41, 0")
                a("s_cselect_b32 s43, s43, 1.0")
                for i in range(2): a(f"v_mul_f32 v{32+i}, s43, v{32+i}")
            for i in range(2): a(f"v_mul_f32 v{34+i}, v{28+i}, v{32+i}")
            a("s_barrier")
            if 'e1' in FL: stamp_mid(a, 0)
            a("s_and_b32 s44, s25, 3")
            a("s_lshl_b32 s44, s44, 3")
            a("s_lshl_b32 s27, s24, 7")
            a("s_lshl_b32 s30, s26, 5")
            a("s_add_u32 s27, s27, s30")
            a("s_mul_i32 s47, s26, 12288")
            a("s_add_u32 s47, s47, 4096")
            a("s_lshr_b32 s48, s27, 9")
            a(f"s_mul_i32 s48, s48, {CHUNK}")
            a("s_and_b32 s49, s27, 511")
            a(f"s_mul_i32 s50, s44, {HB}")
            a("s_add_u32 s48, s48, s50")
            if mode == "qk":
                for j in range(9):
                    a(f"ds_read_b128 {vr(40+4*j,4)}, v24 offset:{j*64}")
                    a(f"ds_read_b128 {vr(76+4*j,4)}, v24 offset:{576 + j*64}")
                a("s_waitcnt lgkmcnt(0)")
                for k in range(36): a(f"v_add_f32 v{40+k}, v{40+k}, v{76+k}")
                for j in range(9):
                    a(f"ds_read_b128 {vr(76+4*j,4)}, v24 offset:{2*576 + j*64}")
                    a(f"ds_read_b128 {vr(184+4*j,4)}, v24 offset:{3*576 + j*64}")
                a("s_waitcnt lgkmcnt(0)")
                for k in range(36):
                    a(f"v_add_f32 v{76+k}, v{76+k}, v{184+k}")
                    a(f"v_add_f32 v{40+k}, v{40+k}, v{76+k}")
                a(f"v_mul_u32_u24 v36, {P}, v3")
                a("v_lshl_add_u32 v36, v2, 3, v36")
                a("v_add_u32 v36, s47, v36")
                for i in range(2):
                    for j in range(9):
                        c = ACC(i,j)
                        for r in range(4): a(f"v_mul_f32 v{96+r}, v{40+4*j+r}, v{34+i}")
                        for r in range(4): a(f"v_fma_f32 v{96+r}, v{c+r}, v{32+i}, -v{96+r}")
                        a(f"v_cvt_pk_bf16_f32 v{c}, v96, v97")
                        a(f"v_cvt_pk_bf16_f32 v{c+1}, v98, v99")
                        a(f"ds_write_b64 v36, {vr(c,2)} offset:{i*16*P + 32*j}")
                lq = a.newlabel("isq")
                a("s_waitcnt lgkmcnt(0)")
                if 'e2' in FL: stamp_mid(a, 0)
                a("s_cmp_eq_u32 s41, 0")
                a(f"s_cbranch_scc1 {lq}")
                a("v_and_b32 v37, 31, v1")
                a("v_lshrrev_b32 v38, 5, v1")
                a(f"v_mul_u32_u24 v39, {P}, v37")
                a("v_add_u32 v39, s47, v39")
                a("v_lshl_add_u32 v40, v38, 4, v39")
                a("v_lshlrev_b32 v41, 4, v1")
                a("s_lshr_b32 s50, s49, 5")
                a("s_lshl_b32 s50, s50, 10")
                a("s_add_u32 s50, s50, s48")
                for h in range(8):
                    b = 48 + 4*h
                    a(f"ds_read2_b32 {vr(b,2)}, v40 offset0:{9*h} offset1:{9*h+1}")
                    a(f"ds_read2_b32 {vr(b+2,2)}, v40 offset0:{9*h+2} offset1:{9*h+3}")
                a("v_mul_u32_u24 v42, 36, v38")
                a("v_add_u32 v42, v42, v39")
                for p in range(4): a(f"ds_read_b32 v{80+2*p}, v42 offset:{72*p + 32}")
                for p in range(4): a(f"v_mov_b32 v{81+2*p}, 0x00003f80")
                a(f"s_mov_b32 s51, {HB}")
                a("v_mul_lo_u32 v43, v38, s51")
                a("v_lshl_add_u32 v43, v37, 3, v43")
                a("s_lshl_b32 s51, s49, 3")
                a("s_add_u32 s51, s51, s48")
                a("s_add_u32 s51, s51, 16384")
                a("s_waitcnt lgkmcnt(0)")
                for h in range(8):
                    a(f"buffer_store_dwordx4 {vr(48+4*h,4)}, v41, s[20:23], s50 offen")
                    if h < 7: a(f"s_add_u32 s50, s50, {HB}")
                for p in range(4):
                    a(f"buffer_store_dwordx2 {vr(80+2*p,2)}, v43, s[20:23], s51 offen")
                    if p < 3: a(f"s_add_u32 s51, s51, {2*HB}")
                a(f"s_branch {a.name}_done")
                a.lab(lq)
                for n in range(3):
                    a(f"v_add_u32 v37, {64*n}, v1")
                    a("v_cmp_le_u32 vcc, 96, v37"); a("s_nop 1")
                    a("v_cndmask_b32 v38, 0, 1, vcc")
                    a("v_mul_u32_u24 v39, 96, v38")
                    a("v_sub_u32 v37, v37, v39")
                    a("v_mul_u32_u24 v39, 171, v37")
                    a("v_lshrrev_b32 v39, 9, v39")
                    a("v_mul_u32_u24 v40, 3, v39")
                    a("v_sub_u32 v40, v37, v40")
                    a(f"v_mul_u32_u24 v41, {P}, v39")
                    a("v_mul_u32_u24 v42, 36, v38")
                    a("v_add_u32 v41, v41, v42")
                    a("v_lshl_add_u32 v41, v40, 4, v41")
                    a(f"v_add_u32 v{44+n}, s47, v41")
                    a("v_mul_u32_u24 v41, 48, v39")
                    a("v_lshl_add_u32 v41, v40, 4, v41")
                    a("s_mov_b32 s51, 98304")
                    a("v_mul_lo_u32 v42, v38, s51")
                    a(f"v_add_u32 v{100+n}, v41, v42")
                for p in range(4):
                    for n in range(3):
                        b = 48 + (p*3+n)*4
                        a(f"ds_read2_b32 {vr(b,2)}, v{44+n} offset0:{18*p} offset1:{18*p+1}")
                        a(f"ds_read2_b32 {vr(b+2,2)}, v{44+n} offset0:{18*p+2} offset1:{18*p+3}")
                a("s_lshl_b32 s50, s44, 11")
                a("s_add_u32 s50, s50, s27")
                a("s_mul_i32 s50, s50, 48")
                a("s_waitcnt lgkmcnt(0)")
                if 'e3' in FL: stamp_mid(a, 0)
                for p in range(4):
                    for n in range(3):
                        a(f"buffer_store_dwordx4 {vr(48+(p*3+n)*4,4)}, v{100+n}, s[16:19], s50 offen")
                    if p < 3: a(f"s_add_u32 s50, s50, {2*98304}")
                a(f"s_branch {a.name}_done")
            else:
                for j in range(9):
                    for w in range(4): a(f"ds_read_b32 v{184+4*j+w}, v24 offset:{w*576 + j*64}")
                a("s_waitcnt lgkmcnt(0)")
                for j in range(9):
                    b = 184 + 4*j
                    a(f"v_add_f32 v{b}, v{b}, v{b+1}"); a(f"v_add_f32 v{b+2}, v{b+2}, v{b+3}")
                    a(f"v_add_f32 v{40+j}, v{b}, v{b+2}")
                a("s_lshl_b32 s45, s26, 8")
                a("s_add_u32 s45, s45, 2304")
                a("v_lshl_add_u32 v96, v3, 2, s45")
                for i in range(2):
                    a(f"ds_write_b32 v96, v{32+i} offset:{i*64}")
                    a(f"ds_write_b32 v96, v{34+i} offset:{128 + i*64}")
                a("v_lshl_add_u32 v97, v2, 4, s45")
                a("v_lshrrev_b32 v98, 2, v1")
                a("v_mul_u32_u24 v98, 1216, v98")
                a("v_and_b32 v99, 3, v1")
                a("v_mul_u32_u24 v99, 304, v99")
                a("v_add3_u32 v98, v98, v99, s47")
                a("v_cmp_gt_u32 vcc, 32, v1")
                a("s_and_saveexec_b64 s[52:53], vcc")
                a(f"ds_write_b128 v98, {vr(ONE,4)} offset:288")
                a("s_mov_b64 exec, s[52:53]")
                a("s_waitcnt lgkmcnt(0)")
                for i in range(2):
                    a(f"ds_read_b128 {vr(52+8*i,4)}, v97 offset:{i*64}")
                    a(f"ds_read_b128 {vr(56+8*i,4)}, v97 offset:{128+i*64}")
                a("v_and_b32 v98, 1, v2")
                a("v_mul_u32_u24 v98, 304, v98")
                a("v_lshrrev_b32 v99, 1, v2")
                a("v_lshl_add_u32 v98, v99, 3, v98")
                a("v_add_u32 v98, s47, v98")
                a("s_waitcnt lgkmcnt(0)")
                for j in range(9):
                    a(f"v_add_u32 v106, {16*j}, v3")
                    a("v_mul_u32_u24 v107, 3641, v106")
                    a("v_lshrrev_b32 v107, 16, v107")
                    a("v_mul_u32_u24 v108, 18, v107")
                    a("v_sub_u32 v108, v106, v108")
                    a("v_mul_u32_u24 v107, 1216, v107")
                    a("v_lshl_add_u32 v107, v108, 4, v107")
                    a("v_add_u32 v107, v107, v98")
                    for i in range(2):
                        c = ACC(i,j)
                        for r in range(4): a(f"v_mul_f32 v{100+r}, v{40+j}, v{56+8*i+r}")
                        for r in range(4): a(f"v_fma_f32 v{100+r}, v{c+r}, v{52+8*i+r}, -v{100+r}")
                        a(f"v_cvt_pk_bf16_f32 v{c}, v100, v101")
                        a(f"v_cvt_pk_bf16_f32 v{c+1}, v102, v103")
                        a(f"ds_write_b64 v107, {vr(c,2)} offset:{i*608}")
                a("v_lshl_add_u32 v96, v1, 4, s47")
                a("s_waitcnt lgkmcnt(0)")
                for n in range(10): a(f"ds_read_b128 {vr(40+4*n,4)}, v96 offset:{n*1024}")
                a("s_lshr_b32 s50, s49, 4")
                a("s_mul_i32 s50, s50, 608")
                a("s_add_u32 s50, s50, s48")
                a("s_add_u32 s50, s50, 20480")
                a(f"s_mov_b32 s51, {HB-1216}")
                for n in range(10):
                    a(f"v_add_u32 v100, {64*n}, v1")
                    a("v_mul_u32_u24 v101, 863, v100")
                    a("v_lshrrev_b32 v101, 16, v101")
                    a("v_mul_lo_u32 v101, v101, s51")
                    a(f"v_lshl_add_u32 v{84+n}, v100, 4, v101")
                a("s_waitcnt lgkmcnt(0)")
                for n in range(10):
                    if n == 9: a("s_and_saveexec_b64 s[52:53], vcc")
                    a(f"buffer_store_dwordx4 {vr(40+4*n,4)}, v{84+n}, s[20:23], s50 offen")
                a("s_mov_b64 exec, s[52:53]")
        return epilogue
    skeleton2(a, R, STG, NST, 9, loader_setup, dma, cons_setup, [("s_cmp_eq_u32 s41, 2", mkbody("qk"), mkepi("qk")), (None, mkbody("v"), mkepi("v"))], (8, 3))
    return a.text(), descriptor(a.name, 256, 0), f"; @launch kernel={a.name} grid=(192,1,1) block=(512,1,1) lds={R*STG}"


def k3():
    a = Asm("oproj_kernel"); header(a)
    R = 6; OB = 8192; STG = 20480; NST = 9
    ACC = lambda i, j: 72 + (i*3 + j)*4
    OF = lambda ks, i: 24 + (ks*2 + i)*4
    WF = lambda ks, j: 40 + (ks*3 + j)*4
    XR = lambda i, j: 96 + (i*3 + j)*2
    common_entry(a, 192, [(4, 0), (6, 16), (28, 80)])
    a("s_and_b32 s24, s2, 7")
    a("s_mul_i32 s24, s24, 24")
    a("s_lshr_b32 s25, s2, 3")
    a("s_add_u32 s24, s24, s25")
    a("s_mul_i32 s25, s24, 10923")
    a("s_lshr_b32 s25, s25, 16")
    a("s_mul_i32 s30, s25, 6")
    a("s_sub_u32 s24, s24, s30")
    a("s_waitcnt lgkmcnt(0)")
    srd_from_arg(a, 8, 0, S*D*2, 4)
    srd_from_arg(a, 12, 16, D*D*2, 6)
    srd_ws(a, 16, 28, WS_O, SZ_SD)
    srd_ws(a, 20, 28, WS_H, SZ_SD)
    srd_ws(a, 44, 28, WS_ST, SZ_ST)
    stamp_begin(a)
    def loader_setup():
        a("s_lshl_b32 s30, s26, 2")
        a("v_add_u32 v10, s30, v2")
        a("v_and_b32 v10, 7, v10")
        a("v_and_b32 v11, 7, v1")
        a("v_xor_b32 v10, v10, v11")
        a("v_lshrrev_b32 v11, 3, v1")
        a("s_lshl_b32 s30, s25, 6")
        a("s_lshl_b32 s31, s26, 3")
        a("s_add_u32 s30, s30, s31")
        a("v_add_u32 v11, s30, v11")
        a("v_mul_u32_u24 v11, 1152, v11")
        a("v_lshl_add_u32 v5, v10, 4, v11")
        a("s_mul_i32 s30, s26, 192")
        a("s_mul_i32 s31, s24, 192")
        for m in range(3):
            a("v_add_u32 v20, s30, v1")
            if m: a(f"v_add_u32 v20, {64*m}, v20")
            a("v_mul_u32_u24 v21, 43691, v20")
            a("v_lshrrev_b32 v21, 19, v21")
            a("v_mul_u32_u24 v22, 12, v21")
            a("v_sub_u32 v22, v20, v22")
            a("v_lshrrev_b32 v23, 2, v21")
            a("v_and_b32 v23, 2, v23")
            a("v_xor_b32 v22, v22, v23")
            a("v_mul_u32_u24 v21, 1152, v21")
            a("v_lshl_add_u32 v21, v22, 4, v21")
            a(f"v_add_u32 v{6+m}, s31, v21")
        a("s_lshl_b32 s46, s26, 10")
        a("s_mul_i32 s45, s26, 3072")
        a(f"s_add_u32 s45, s45, {OB}")
        a("s_mov_b32 s35, 0"); a("s_mov_b32 s36, 0")
    def dma():
        a("s_add_u32 s37, s34, s46")
        for m in range(2):
            a(f"s_add_u32 m0, s37, {m*4096}")
            a(f"s_add_u32 s38, s35, {m*32*1152}")
            a("buffer_load_dwordx4 v5, s[16:19], s38 offen lds")
        a("s_add_u32 s37, s34, s45")
        for m in range(3):
            a(f"s_add_u32 m0, s37, {m*1024}")
            a("s_nop 0")
            a(f"buffer_load_dwordx4 v{6+m}, s[12:15], s36 offen lds")
        a("s_add_u32 s35, s35, 128")
        a(f"s_add_u32 s36, s36, {64*1152}")
    def cons_setup():
        a("s_lshr_b32 s41, s26, 1")
        a("s_and_b32 s42, s26, 1")
        a("v_lshrrev_b32 v110, 1, v3")
        a("v_xor_b32 v111, v2, v110")
        a("s_lshl_b32 s30, s41, 5")
        a("v_add_u32 v112, s30, v3")
        a("v_lshlrev_b32 v112, 7, v112")
        a("v_lshl_add_u32 v6, v111, 4, v112")
        a("v_xor_b32 v111, 4, v111")
        a("v_lshl_add_u32 v7, v111, 4, v112")
        a("v_lshrrev_b32 v110, 2, v3")
        a("v_and_b32 v111, 3, v3")
        a("v_lshl_add_u32 v112, v2, 3, v110")
        a("v_mul_u32_u24 v112, 192, v112")
        a("v_and_b32 v113, 1, v111")
        a("v_lshl_add_u32 v112, v113, 3, v112")
        a(f"v_add_u32 v112, {OB}, v112")
        a("v_lshrrev_b32 v113, 1, v111")
        a("s_mul_i32 s30, s42, 6")
        a("v_add_u32 v113, s30, v113")
        a("v_and_b32 v114, 1, v2")
        a("v_lshlrev_b32 v114, 1, v114")
        for j in range(3):
            a(f"v_add_u32 v115, {2*j}, v113")
            a("v_xor_b32 v115, v115, v114")
            a(f"v_lshl_add_u32 v{8+j}, v115, 4, v112")
        for r in range(72, 96): a(f"v_mov_b32 v{r}, 0")
        a("s_lshl_b32 s27, s25, 6")
        a("s_lshl_b32 s30, s41, 5")
        a("s_add_u32 s27, s27, s30")
        a("v_add_u32 v110, s27, v3")
        a("v_mul_u32_u24 v111, 1152, v110")
        a("v_lshl_add_u32 v111, v2, 3, v111")
        a("s_mul_i32 s30, s24, 192")
        a("s_mul_i32 s31, s42, 96")
        a("s_add_u32 s30, s30, s31")
        a("v_add_u32 v111, s30, v111")
        a("s_mov_b32 s43, 18432")
        for i in range(2):
            for j in range(3):
                a(f"buffer_load_dwordx2 {vr(XR(i,j),2)}, v111, s[8:11], {'s43' if i else '0'} offen offset:{32*j}")
        a("v_mul_u32_u24 v110, 192, v110")
        a("v_lshl_add_u32 v110, v2, 3, v110")
        a(f"s_mul_i32 s30, s24, {2048*192}")
        a("s_add_u32 s30, s30, s31")
        a("v_add_u32 v108, s30, v110")
    def rd(ks, rel):
        b = 16 if rel else 11
        L = []
        for i in range(2):
            L.append(('r', (f"O{ks}{i}", rel), f"ds_read_b128 {vr(OF(ks,i),4)}, v{b+ks} offset:{i*2048}"))
        for j in range(3):
            for hh in range(2):
                L.append(('r', (f"W{ks}{j}{hh}", rel), f"ds_read_b64_tr_b16 {vr(WF(ks,j)+2*hh,2)}, v{b+2+j} offset:{ks*6144 + hh*768}"))
        return L
    def body():
        seq = []
        for ks in range(2):
            if ks == 1: seq.append(('x', '@BAR'))
            r = rd(1-ks, ks)
            ms = []
            for j in range(3):
                for i in range(2):
                    C = vr(ACC(i,j),4)
                    ms.append(('m', [f"O{ks}{i}", f"W{ks}{j}0", f"W{ks}{j}1"], f"v_mfma_f32_16x16x32_bf16 {C}, {vr(WF(ks,j),4)}, {vr(OF(ks,i),4)}, {C}"))
            k = 0
            for idx, m in enumerate(ms):
                seq.append(m)
                n = 2 if idx < 2 else 1
                seq += r[k:k+n]; k += n
        return seq
    def epilogue():
        a("s_waitcnt vmcnt(0)")
        a("s_nop 7")
        for r in range(24, 28): a(f"v_mov_b32 v{r}, 0")
        for i in range(2):
            for j in range(3):
                c = ACC(i,j); x = XR(i,j)
                a(f"v_lshlrev_b32 v40, 16, v{x}")
                a(f"v_and_b32 v41, 0xffff0000, v{x}")
                a(f"v_lshlrev_b32 v42, 16, v{x+1}")
                a(f"v_and_b32 v43, 0xffff0000, v{x+1}")
                for r in range(4): a(f"v_add_f32 v{40+r}, v{40+r}, v{c+r}")
                a(f"v_cvt_pk_bf16_f32 v{x}, v40, v41")
                a(f"v_cvt_pk_bf16_f32 v{x+1}, v42, v43")
                a(f"buffer_store_dwordx2 {vr(x,2)}, v108, s[20:23], 0 offen offset:{i*3072 + 32*j}")
                a(f"v_lshlrev_b32 v40, 16, v{x}")
                a(f"v_and_b32 v41, 0xffff0000, v{x}")
                a(f"v_lshlrev_b32 v42, 16, v{x+1}")
                a(f"v_and_b32 v43, 0xffff0000, v{x+1}")
                for r in range(4):
                    a(f"v_add_f32 v{24+i}, v{24+i}, v{40+r}")
                    a(f"v_fmac_f32 v{26+i}, v{40+r}, v{40+r}")
        a("v_xor_b32 v30, 16, v1"); a("v_lshlrev_b32 v30, 2, v30")
        a("v_xor_b32 v31, 32, v1"); a("v_lshlrev_b32 v31, 2, v31")
        for addr in ("v30", "v31"):
            for r in range(4): a(f"ds_bpermute_b32 v{32+r}, {addr}, v{24+r}")
            a("s_waitcnt lgkmcnt(0)")
            for r in range(4): a(f"v_add_f32 v{24+r}, v{24+r}, v{32+r}")
        X = R*STG
        a("s_lshl_b32 s30, s26, 8")
        a(f"s_add_u32 s30, s30, {X}")
        a("v_lshl_add_u32 v36, v3, 3, s30")
        for i in range(2):
            a(f"v_mov_b32 v{40+2*i}, v{24+i}"); a(f"v_mov_b32 v{41+2*i}, v{26+i}")
            a(f"ds_write_b64 v36, {vr(40+2*i,2)} offset:{i*128}")
        a("s_waitcnt lgkmcnt(0)")
        a("s_barrier")
        a("s_cmp_eq_u32 s42, 0")
        a(f"s_cbranch_scc0 {a.name}_done")
        for i in range(2): a(f"ds_read_b64 {vr(44+2*i,2)}, v36 offset:{256 + i*128}")
        a("s_lshl_b32 s30, s24, 11")
        a("s_add_u32 s30, s30, s27")
        a("v_add_u32 v37, s30, v3")
        a("v_lshlrev_b32 v37, 3, v37")
        a("v_cmp_gt_u32 vcc, 16, v1")
        a("s_waitcnt lgkmcnt(0)")
        for r in range(4): a(f"v_add_f32 v{40+r}, v{40+r}, v{44+r}")
        a("s_and_saveexec_b64 s[52:53], vcc")
        for i in range(2): a(f"buffer_store_dwordx2 {vr(40+2*i,2)}, v37, s[44:47], 0 offen offset:{i*128}")
        a("s_mov_b64 exec, s[52:53]")
    skeleton(a, R, STG, NST, 5, loader_setup, dma, cons_setup, body, (6, 5), epilogue)
    return a.text(), descriptor(a.name, 120, 0), f"; @launch kernel={a.name} grid=(192,1,1) block=(512,1,1) lds={R*STG + 1024}"


def k3b():
    a = Asm("ln_kernel"); header(a)
    a("s_cmp_ge_u32 s2, 576")
    a(f"s_cbranch_scc1 {a.name}_end")
    a("s_load_dwordx2 s[28:29], s[0:1], 80")
    a("s_lshl_b32 s3, s2, 8")
    a("v_add_u32 v1, s3, v0")
    a("v_lshlrev_b32 v2, 4, v1")
    a("s_mul_i32 s4, s2, 683")
    a("s_lshr_b32 s4, s4, 16")
    a("s_mul_i32 s4, s4, 24576")
    a("v_subrev_u32 v3, s4, v1")
    a("v_mul_u32_u24 v3, 43691, v3")
    a("v_lshrrev_b32 v3, 19, v3")
    a("v_lshlrev_b32 v3, 3, v3")
    a("s_waitcnt lgkmcnt(0)")
    srd_ws(a, 8, 28, WS_H, SZ_SD)
    srd_ws(a, 12, 28, WS_G, SZ_SD)
    srd_ws(a, 16, 28, WS_ST, SZ_ST)
    a("buffer_load_dwordx4 v[4:7], v2, s[8:11], 0 offen")
    for p in range(6):
        a(f"s_mov_b32 s20, {p*16384}")
        a(f"buffer_load_dwordx2 {vr(8+2*p,2)}, v3, s[16:19], s20 offen")
    a(f"s_mov_b32 s41, {f32hex(1.0/576)}")
    a(f"s_mov_b32 s42, {f32hex(1e-5)}")
    a("s_waitcnt vmcnt(0)")
    b = 8
    for c in range(2):
        a(f"v_add_f32 v{b+c}, v{b+c}, v{b+2+c}")
        a(f"v_add_f32 v{b+4+c}, v{b+4+c}, v{b+6+c}")
        a(f"v_add_f32 v{b+8+c}, v{b+8+c}, v{b+10+c}")
        a(f"v_add_f32 v{b+c}, v{b+c}, v{b+4+c}")
        a(f"v_add_f32 v{b+c}, v{b+c}, v{b+8+c}")
    a(f"v_mul_f32 v{b}, s41, v{b}")
    a(f"v_mul_f32 v{b+1}, s41, v{b+1}")
    a(f"v_fma_f32 v{b+1}, -v{b}, v{b}, v{b+1}")
    a(f"v_max_f32 v{b+1}, 0, v{b+1}")
    a(f"v_add_f32 v{b+2}, s42, v{b+1}")
    a(f"v_rcp_f32 v{b+3}, v{b+2}")
    a(f"v_rsq_f32 v{b+4}, v{b+2}")
    a("s_nop 0")
    a(f"v_mul_f32 v{b+3}, v{b+3}, v{b+1}")
    a(f"v_add_f32 v{b+3}, s42, v{b+3}")
    a(f"v_rsq_f32 v{b+3}, v{b+3}")
    a("s_nop 0")
    a(f"v_mul_f32 v{b+6}, v{b+3}, v{b+4}")
    a(f"v_mul_f32 v{b+7}, v{b+6}, v{b}")
    for r in range(4):
        a(f"v_lshlrev_b32 v20, 16, v{4+r}")
        a(f"v_and_b32 v21, 0xffff0000, v{4+r}")
        a(f"v_fma_f32 v20, v20, v14, -v15")
        a(f"v_fma_f32 v21, v21, v14, -v15")
        a(f"v_cvt_pk_bf16_f32 v{4+r}, v20, v21")
    a("buffer_store_dwordx4 v[4:7], v2, s[12:15], 0 offen")
    a.lab(f"{a.name}_end")
    a("s_endpgm")
    return a.text(), descriptor(a.name, 24, 0), f"; @launch kernel={a.name} grid=(576,1,1) block=(256,1,1) lds=0"


def build(kernels):
    hdr = "; generated by gen.py\n"
    texts, descs, launches = [], [], []
    for k in kernels:
        t, d, l = k()
        texts.append(t); descs.append(d); launches.append(l)
    if 'dup3' in FL: launches.append(launches[2])
    if 'dup45' in FL: launches = launches[:4] + [launches[3], launches[4], launches[4], launches[5]]
    out = hdr + "\n".join(launches) + "\n"
    out += '.amdgcn_target "amdgcn-amd-amdhsa--gfx950"\n.text\n'
    out += "\n".join(texts)
    out += '.section .rodata,"a"\n' + "\n".join(descs)
    return out

if __name__ == "__main__":
    ks = [k1, k2, k3, k3b, k4, k5]
    out = build(ks)
    open(sys.argv[1] if len(sys.argv) > 1 else "out.s", "w").write(out)
```

```python
import sys, math, os
FL = os.environ.get('FLAGS', '').split(',')

S, D, F, H, DH = 2048, 576, 4608, 32, 18
WS_Q  = 0x0        ; SZ_Q  = 32*2048*48
WS_KV = 0x300000   ; HB = 159744 ; SZ_KV = 32*HB + 8192
WS_O  = 0x800000   ; SZ_SD = 2048*576*2
WS_H  = 0xA80000
WS_G  = 0xD00000
WS_ST = 0xF80000   ; SZ_ST = 6*2048*8
WS_U  = 0x1000000  ; SZ_U = 576*4608*2
WS_P  = 0x1800000  ; SZ_P = 4*2048*576*4
CHUNK = 39936
LOG2E = 1.4426950408889634
QSCALE = (18 ** -0.5) * LOG2E

import struct
def f32hex(x):
    return "0x%08x" % struct.unpack("<I", struct.pack("<f", x))[0]

class Asm:
    def __init__(s, name):
        s.name = name; s.t = []; s.nl = 0
    def __call__(s, line):
        if s.name in ('mlp1_kernel', 'mlp2_kernel'):
            if 'gnomfma' in FL and line.startswith('v_mfma'): return
            if 'gnords' in FL and line.startswith('ds_read'): return
            if 'gnodma' in FL and line.startswith('buffer_load') and line.endswith('lds'): return
            if 'gnobar' in FL and line.startswith('s_barrier'): return
            if 'gnopk' in FL and (line.startswith('v_pk_fma') or line.startswith('v_cvt_pk_bf16_f32 v3') or line.startswith('v_cvt_pk_bf16_f32 v4') or line.startswith('v_cvt_pk_bf16_f32 v5') or line.startswith('v_cvt_pk_bf16_f32 v6') or line.startswith('v_cvt_pk_bf16_f32 v7') or line.startswith('v_lshlrev_b32 v28') or line.startswith('v_and_b32 v29') or line.startswith('v_cvt_pk_bf16_f32 v8') or line.startswith('v_cvt_pk_bf16_f32 v9') or line.startswith('v_cvt_pk_bf16_f32 v10') or line.startswith('v_cvt_pk_bf16_f32 v11')): return
            if 'gnowr' in FL and line.startswith('ds_write_b128'): return
            if 'gnohl' in FL and line.startswith('buffer_load_dwordx4 v['): return
        if s.name == 'qkv_kernel':
            if 'k1nostore' in FL and line.startswith('buffer_store'): return
            if 'k1nomfma' in FL and line.startswith('v_mfma'): return
            if 'k1nodot' in FL and line.startswith('v_dot2c'): return
            if 'k1notr' in FL and line.startswith('ds_read_b64_tr'): return
            if 'k1noa' in FL and line.startswith('buffer_load_dwordx4 v['): return
            if 'k1nodma' in FL and line.startswith('buffer_load') and line.endswith('lds'): return
            if 'k1nobar' in FL and line.startswith('s_barrier'): return
        s.t.append("    " + line)
    def lab(s, l):
        s.t.append(l + ":")
    def newlabel(s, p="L"):
        s.nl += 1
        return f"{s.name}_{p}{s.nl}"
    def text(s):
        return "\n".join(s.t) + "\n"

def vr(b, n):  return f"v[{b}:{b+n-1}]"
def ar(b, n):  return f"a[{b}:{b+n-1}]"
def sr(b, n):  return f"s[{b}:{b+n-1}]"

def srd_from_arg(a, sreg, argoff, size, tmp):
    a(f"s_mov_b32 s{sreg}, s{tmp}")
    a(f"s_mov_b32 s{sreg+1}, s{tmp+1}")
    a(f"s_mov_b32 s{sreg+2}, {size}")
    a(f"s_mov_b32 s{sreg+3}, 0x00020000")

def srd_ws(a, sreg, wsreg, off, size):
    a(f"s_add_u32 s{sreg}, s{wsreg}, {off}")
    a(f"s_addc_u32 s{sreg+1}, s{wsreg+1}, 0")
    a(f"s_mov_b32 s{sreg+2}, {size}")
    a(f"s_mov_b32 s{sreg+3}, 0x00020000")

def stamp_begin(a, wsreg=28):
    if 'stamp_' + a.name[:4] in FL:
        srd_ws(a, 80, wsreg, 0x3000000, 0x100000)
        a("s_memtime s[84:85]"); a("s_memrealtime s[86:87]")
def stamp_mid(a, k):
    if 'stamp_' + a.name[:4] in FL:
        a(f"s_memtime s[{88+2*k}:{89+2*k}]")
def stamp_end(a, nwaves, wavereg=26):
    if 'stamp_' + a.name[:4] in FL:
        a("s_memtime s[92:93]"); a("s_memrealtime s[94:95]"); a("s_waitcnt lgkmcnt(0)")
        a("s_sub_u32 s88, s88, s84"); a("s_sub_u32 s92, s92, s84"); a("s_sub_u32 s94, s94, s86"); a("s_sub_u32 s90, s90, s84")
        a("v_mov_b32 v16, s88"); a("v_mov_b32 v17, s92"); a("v_mov_b32 v18, s94"); a("v_mov_b32 v19, s90")
        a(f"s_mul_i32 s70, s2, {nwaves}"); a(f"s_add_u32 s70, s70, s{wavereg}"); a("s_lshl_b32 s70, s70, 4")
        a("v_mov_b32 v20, s70")
        a("buffer_store_dwordx4 v[16:19], v20, s[80:83], 0 offen")

def prefetch(a, srd, nlines, nshare, share_sgpr, addr_fn, vt=250, wave_sgpr=26, nwaves=4, dst=255):
    if 'pf' not in FL: return
    per = (nlines + nshare - 1)//nshare
    nt = (per + 64*nwaves - 1)//(64*nwaves)
    a(f"s_lshl_b32 s60, s{wave_sgpr}, 6")
    for t in range(nt):
        a(f"v_add_u32 v{vt}, s60, v1")
        if t: a(f"v_add_u32 v{vt}, {t*nwaves*64}, v{vt}")
        if nshare > 1:
            a(f"v_mul_u32_u24 v{vt}, {nshare}, v{vt}")
            a(f"v_add_u32 v{vt}, s{share_sgpr}, v{vt}")
        addr_fn(vt, vt+1)
        a(f"buffer_load_dword v{dst}, v{vt+1}, s[{srd}:{srd+3}], 0 offen")

def header(a):
    a.t.append(f".globl {a.name}\n.p2align 8\n.type {a.name},@function\n{a.name}:")

def descriptor(name, vgpr, agpr, sgpr=96):
    acc = (vgpr + 3) // 4 * 4
    return f""".p2align 6
.amdhsa_kernel {name}
  .amdhsa_next_free_vgpr {acc + agpr if agpr else vgpr}
  .amdhsa_next_free_sgpr {sgpr}
  .amdhsa_accum_offset {acc}
  .amdhsa_group_segment_fixed_size 0
  .amdhsa_kernarg_size 88
  .amdhsa_user_sgpr_count 2
  .amdhsa_user_sgpr_kernarg_segment_ptr 1
  .amdhsa_system_sgpr_workgroup_id_x 1
.end_amdhsa_kernel
"""

def interleave(main, *fill):
    out = []
    n = len(main)
    pos = [0]*len(fill)
    for idx, m in enumerate(main):
        out.append(m)
        for fi, f in enumerate(fill):
            tgt = (idx+1)*len(f)//n
            while pos[fi] < tgt:
                out.append(f[pos[fi]]); pos[fi] += 1
    return out

def k2():
    a = Asm("attn_kernel"); header(a)
    Q1, Q2 = 8, 12
    KF1 = lambda b: 16 + 8*b
    KF2 = lambda b: 20 + 8*b
    VF = lambda b, t: 32 + 8*b + 4*t
    SS = lambda b: 48 + 16*b
    PP = lambda b: 80 + 8*b
    E = 96; O = 112
    a("s_cmp_ge_u32 s2, 256")
    a(f"s_cbranch_scc1 {a.name}_end")
    a("s_load_dwordx2 s[28:29], s[0:1], 80")
    a("s_load_dwordx2 s[4:5], s[0:1], 32")
    a("s_load_dwordx2 s[6:7], s[0:1], 48")
    a("s_and_b32 s24, s2, 7")
    a("s_lshl_b32 s24, s24, 2")
    a("s_lshr_b32 s25, s2, 3")
    a("s_and_b32 s25, s25, 3")
    a("s_add_u32 s24, s24, s25")
    a("s_lshr_b32 s25, s2, 5")
    a("v_and_b32 v1, 63, v0")
    a("v_lshrrev_b32 v2, 5, v1")
    a("v_and_b32 v3, 31, v1")
    a("v_lshrrev_b32 v4, 6, v0")
    a("s_nop 1")
    a("v_readfirstlane_b32 s26, v4")
    a("s_waitcnt lgkmcnt(0)")
    srd_ws(a, 8, 28, WS_Q, SZ_Q)
    srd_ws(a, 12, 28, WS_KV, SZ_KV)
    srd_ws(a, 16, 28, WS_O, SZ_SD)
    srd_from_arg(a, 44, 32, S*F*2, 4)
    srd_from_arg(a, 48, 48, S*F*2, 6)
    if 'stamp' in FL:
        srd_ws(a, 20, 28, 0x3000000, 0x100000)
        a("s_memtime s[72:73]"); a("s_memrealtime s[74:75]")
    lpf = f"{a.name}_nopf"
    NPF = 4
    a("s_cmp_ge_u32 s26, 8")
    a(f"s_cbranch_scc0 {lpf}")
    a("s_and_b32 s52, s2, 7")
    a("s_lshr_b32 s53, s2, 3")
    a("s_mul_i32 s53, s53, 576")
    a("s_sub_u32 s54, s26, 8")
    a(f"s_mul_i32 s54, s54, {576//NPF}")
    a("s_add_u32 s53, s53, s54")
    a("s_lshr_b32 s56, s52, 1")
    a(f"s_mul_i32 s56, s56, {1152*4096}")
    a("s_and_b32 s57, s52, 1")
    a("s_lshl_b32 s57, s57, 11")
    a("s_add_u32 s56, s56, s57")
    a("s_mul_i32 s57, s52, 1152")
    a("s_barrier")
    if 'apfearly' not in FL: a("s_barrier")
    LPI = 48
    a("s_mov_b32 exec_hi, 0xffff")
    for n in range((576//NPF)//LPI if 'noapf' not in FL else 0):
        a("v_add_u32 v5, s53, v1")
        if n: a(f"v_add_u32 v5, {LPI*n}, v5")
        a("v_mul_u32_u24 v6, 58255, v5")
        a("v_lshrrev_b32 v6, 19, v6")
        a("v_mul_u32_u24 v7, 9, v6")
        a("v_sub_u32 v7, v5, v7")
        a("v_mul_u32_u24 v6, 9216, v6")
        a("v_lshl_add_u32 v6, v7, 7, v6")
        a("buffer_load_dword v8, v6, s[44:47], s57 offen")
    for n in range((576//NPF)//LPI if 'noapf' not in FL else 0):
        a("v_add_u32 v5, s53, v1")
        if n: a(f"v_add_u32 v5, {LPI*n}, v5")
        a("v_lshrrev_b32 v6, 4, v5")
        a("v_lshlrev_b32 v6, 12, v6")
        a("v_and_b32 v7, 15, v5")
        a("v_lshl_add_u32 v6, v7, 7, v6")
        a("buffer_load_dword v9, v6, s[48:51], s56 offen")
    a("s_endpgm")
    a.lab(lpf)
    a("s_lshl_b32 s27, s25, 8")
    a("s_lshl_b32 s30, s26, 5")
    a("s_add_u32 s27, s27, s30")
    a("s_lshl_b32 s30, s24, 11")
    a("s_add_u32 s30, s30, s27")
    a("v_add_u32 v128, s30, v3")
    a("v_mul_u32_u24 v128, 48, v128")
    a("v_lshl_add_u32 v129, v2, 4, v128")
    a(f"buffer_load_dwordx4 {vr(Q1,4)}, v129, s[8:11], 0 offen")
    a(f"buffer_load_dword v{Q2}, v128, s[8:11], 0 offen offset:32")
    a(f"s_mul_i32 s30, s24, {HB}")
    a("s_lshl_b32 s31, s26, 10")
    a("s_add_u32 s30, s30, s31")
    a("v_lshl_add_u32 v4, v1, 4, s30")
    for n in range(20):
        a(f"s_add_u32 m0, s31, {n*8192}")
        a(f"s_mov_b32 s32, {n*8192}")
        a(f"buffer_load_dwordx4 v4, s[12:15], s32 offen lds")
    a("v_lshlrev_b32 v5, 4, v1")
    a("v_lshlrev_b32 v6, 3, v3")
    a("v_add_u32 v6, 16384, v6")
    a("v_min_u32 v7, 18, v3")
    a("v_lshlrev_b32 v7, 4, v7")
    a("v_mul_u32_u24 v130, 304, v2")
    a("v_add_u32 v7, v7, v130")
    a("v_add_u32 v7, 20480, v7")
    a("v_mov_b32 v131, v5"); a("v_mov_b32 v132, v6"); a("v_mov_b32 v133, v7")
    for r in list(range(KF2(0)+2, KF2(0)+4)) + list(range(KF2(1)+2, KF2(1)+4)) + list(range(32, 48)) + list(range(80, 96)) + list(range(O, O+16)) + [Q2+1, Q2+2, Q2+3]:
        a(f"v_mov_b32 v{r}, 0")
    a("v_cmp_gt_u32 s[34:35], 32, v1")
    a("s_waitcnt vmcnt(15)")
    a(f"v_cndmask_b32 v{Q2}, 0, v{Q2}, s[34:35]")
    a("s_barrier")
    if 'stamp' in FL: a("s_memtime s[64:65]")
    def kread(t, b):
        off = (t // 16)*CHUNK; tt = t % 16
        return [f"ds_read_b128 {vr(KF1(b),4)}, v5 offset:{off + tt*1024}",
                f"ds_read_b64 {vr(KF2(b),2)}, v6 offset:{off + tt*256}"]
    def vread(t, b):
        return [f"ds_read_b128 {vr(VF(b,0),4)}, v7 offset:{t*1216}",
                f"ds_read_b128 {vr(VF(b,1),4)}, v7 offset:{t*1216 + 608}"]
    def qk(b):
        return [f"v_mfma_f32_32x32x16_bf16 {vr(SS(b),16)}, {vr(KF1(b),4)}, {vr(Q1,4)}, 0",
                f"v_mfma_f32_32x32x16_bf16 {vr(SS(b),16)}, {vr(KF2(b),4)}, {vr(Q2,4)}, {vr(SS(b),16)}"]
    def pv(b):
        return [f"v_mfma_f32_32x32x16_bf16 {vr(O,16)}, {vr(VF(b,0),4)}, {vr(PP(b),4)}, {vr(O,16)}",
                f"v_mfma_f32_32x32x16_bf16 {vr(O,16)}, {vr(VF(b,1),4)}, {vr(PP(b)+4,4)}, {vr(O,16)}"]
    for x in kread(0, 0) + kread(1, 1): a(x)
    a("s_waitcnt lgkmcnt(0)")
    for x in qk(0): a(x)
    a("s_nop 7"); a("s_nop 7")
    a(f"v_max_f32 v134, v{SS(0)}, v{SS(0)+1}")
    for r in range(2, 16): a(f"v_max_f32 v134, v134, v{SS(0)+r}")
    a("v_mov_b32 v135, v134")
    a("s_nop 1")
    a("v_permlane32_swap_b32 v134, v135")
    a("s_nop 1")
    a("v_max_f32 v134, v134, v135")
    a("v_sub_f32 v134, 0, v134")
    a("v_cvt_pk_bf16_f32 v134, v134, 0")
    a("s_nop 0")
    a(f"v_cndmask_b32 v{Q2+1}, 0, v134, s[34:35]")
    a("s_nop 1")
    for x in qk(0): a(x)
    a("s_mov_b32 s33, 0")
    if 'aprio' in FL:
        l = a.newlabel("pr")
        a("s_cmp_ge_u32 s26, 4")
        a(f"s_cbranch_scc0 {l}")
        a("s_setprio 1")
        a.lab(l)
    a("s_nop 7"); a("s_nop 3")
    a.lab(f"{a.name}_loop")
    for t in range(16):
        b = t % 2; nb = 1 - b
        if t == 14:
            l = a.newlabel("nb")
            a("s_cmp_eq_u32 s33, 0")
            a(f"s_cbranch_scc0 {l}")
            a("s_waitcnt vmcnt(0)")
            a("s_barrier")
            a.lab(l)
        a("s_waitcnt lgkmcnt(0)")
        e = [f"v_exp_f32 v{E+r}, v{SS(b)+r}" for r in range(16)]
        c = [f"v_cvt_pk_bf16_f32 v{PP(b)+r}, v{E+2*r}, v{E+2*r+1}" for r in range(8)]
        m1 = qk(nb); m2 = pv(nb)
        kr = kread(t+2, b); vrd = vread(t, b)
        if 'aord2' in FL:
            seq = [m1[0], kr[0]] + e[0:3] + [kr[1]] + e[3:5] + [m1[1], vrd[0]] + e[5:8] + [c[0], vrd[1], c[1]] + e[8:9] + [m2[0]] + e[9:12] + [c[2], c[3]] + e[12:13] + [m2[1]] + e[13:16] + [c[4], c[5], c[6], c[7]]
        elif 'aord3' in FL:
            seq = [kr[0], kr[1], vrd[0], vrd[1], m1[0]] + e[0:5] + [m1[1]] + e[5:8] + [c[0], c[1], c[2], m2[0]] + e[8:13] + [m2[1]] + e[13:16] + [c[3], c[4], c[5], c[6], c[7]]
        else:
            seq = [m1[0], kr[0], kr[1]] + e[0:4] + [vrd[0], m1[1], vrd[1]] + e[4:8] + [c[0], c[1], m2[0]] + e[8:12] + [c[2], c[3], m2[1]] + e[12:16] + [c[4], c[5], c[6], c[7]]
        for x in seq: a(x)
    a(f"v_add_u32 v5, {CHUNK}, v5"); a(f"v_add_u32 v6, {CHUNK}, v6"); a(f"v_add_u32 v7, {CHUNK}, v7")
    a("s_add_u32 s33, s33, 1")
    a("s_cmp_lt_u32 s33, 4")
    a(f"s_cbranch_scc1 {a.name}_loop")
    a("s_waitcnt lgkmcnt(0)")
    for x in pv(1): a(x)
    if 'stamp' in FL:
        a("s_memtime s[66:67]"); a("s_memrealtime s[68:69]"); a("s_waitcnt lgkmcnt(0)")
        a("s_sub_u32 s64, s64, s72"); a("s_sub_u32 s66, s66, s72"); a("s_sub_u32 s68, s68, s74")
        a("v_mov_b32 v140, s64"); a("v_mov_b32 v141, s66"); a("v_mov_b32 v142, s68"); a("v_mov_b32 v143, s72")
        a("s_lshl_b32 s70, s2, 3"); a("s_add_u32 s70, s70, s26"); a("s_lshl_b32 s70, s70, 4")
        a("v_mov_b32 v139, s70")
        a("buffer_store_dwordx4 v[140:143], v139, s[20:23], 0 offen")
    a.lab(f"{a.name}_fin")
    a("s_nop 7"); a("s_nop 7")
    a(f"v_mov_b32 v134, v{O+10}")
    a(f"v_mov_b32 v135, v{O+10}")
    a("s_nop 1")
    a("v_permlane32_swap_b32 v134, v135")
    a(f"s_mov_b32 s36, {f32hex(2.0**40)}")
    a("s_nop 0")
    a("v_cmp_nlt_f32 vcc, v134, s36") if False else a("v_cmp_ngt_f32 vcc, s36, v134")
    a("s_cmp_eq_u32 s33, 99")
    a(f"s_cbranch_scc1 {a.name}_store")
    a(f"s_cbranch_vccnz {a.name}_slow")
    a.lab(f"{a.name}_store")
    a("v_rcp_f32 v134, v134")
    a("s_nop 0")
    for r in range(10): a(f"v_mul_f32 v{O+r}, v{O+r}, v134")
    for r in range(5): a(f"v_cvt_pk_bf16_f32 v{E+r}, v{O+2*r}, v{O+2*r+1}")
    a("v_add_u32 v128, s27, v3")
    a("v_mul_u32_u24 v128, 1152, v128")
    a("v_lshl_add_u32 v128, v2, 3, v128")
    a("s_mul_i32 s30, s24, 36")
    a(f"buffer_store_dwordx2 {vr(E,2)}, v128, s[16:19], s30 offen")
    a(f"buffer_store_dwordx2 {vr(E+2,2)}, v128, s[16:19], s30 offen offset:16")
    a("s_and_saveexec_b64 s[38:39], s[34:35]")
    a(f"buffer_store_dword v{E+4}, v128, s[16:19], s30 offen offset:32")
    a("s_endpgm")
    a.lab(f"{a.name}_slow")
    a("v_mov_b32 v5, v131"); a("v_mov_b32 v6, v132"); a("v_mov_b32 v7, v133")
    a(f"v_mov_b32 v{Q2+1}, 0")
    for r in range(16): a(f"v_mov_b32 v{O+r}, 0")
    a("v_mov_b32 v136, 0xff800000")
    a("s_mov_b32 s33, 0")
    a.lab(f"{a.name}_sl1")
    a("s_mov_b32 s37, 0")
    a.lab(f"{a.name}_sl2")
    for x in kread(0, 0) + vread(0, 0): a(x)
    a("s_waitcnt lgkmcnt(0)")
    for x in qk(0): a(x)
    a("s_nop 7"); a("s_nop 7")
    a(f"v_max_f32 v134, v{SS(0)}, v{SS(0)+1}")
    for r in range(2, 16): a(f"v_max_f32 v134, v134, v{SS(0)+r}")
    a("v_mov_b32 v135, v134")
    a("s_nop 1")
    a("v_permlane32_swap_b32 v134, v135")
    a("s_nop 1")
    a("v_max_f32 v134, v134, v135")
    a("v_max_f32 v134, v134, v136")
    a("v_sub_f32 v135, v136, v134")
    a("v_exp_f32 v135, v135")
    a("v_mov_b32 v136, v134")
    for r in range(16): a(f"v_sub_f32 v{E+r}, v{SS(0)+r}, v134")
    for r in range(16): a(f"v_exp_f32 v{E+r}, v{E+r}")
    for r in range(16): a(f"v_mul_f32 v{O+r}, v{O+r}, v135")
    for r in range(8): a(f"v_cvt_pk_bf16_f32 v{PP(0)+r}, v{E+2*r}, v{E+2*r+1}")
    a("s_nop 1")
    for x in pv(0): a(x)
    a("s_nop 7"); a("s_nop 7")
    a("v_add_u32 v5, 1024, v5"); a("v_add_u32 v6, 256, v6"); a("v_add_u32 v7, 1216, v7")
    a("s_add_u32 s37, s37, 1")
    a("s_cmp_lt_u32 s37, 16")
    a(f"s_cbranch_scc1 {a.name}_sl2")
    a(f"v_add_u32 v5, {CHUNK-16*1024}, v5"); a(f"v_add_u32 v6, {CHUNK-16*256}, v6"); a(f"v_add_u32 v7, {CHUNK-16*1216}, v7")
    a("s_add_u32 s33, s33, 1")
    a("s_cmp_lt_u32 s33, 4")
    a(f"s_cbranch_scc1 {a.name}_sl1")
    a("s_mov_b32 s33, 99")
    a(f"s_branch {a.name}_fin")
    a.lab(f"{a.name}_end")
    a("s_endpgm")
    return a.text(), descriptor(a.name, 144, 0), f"; @launch kernel={a.name} grid=(256,1,1) block=(768,1,1) lds=163840"

def swap23(a, p, t1, t2):
    a(f"v_and_b32 v{t1}, 0x33, v{p}")
    a(f"v_and_b32 v{t2}, 4, v{p}")
    a(f"v_lshlrev_b32 v{t2}, 1, v{t2}")
    a(f"v_or_b32 v{t1}, v{t1}, v{t2}")
    a(f"v_and_b32 v{t2}, 8, v{p}")
    a(f"v_lshrrev_b32 v{t2}, 1, v{t2}")
    a(f"v_or_b32 v{t1}, v{t1}, v{t2}")

def sched_waits(seq):
    issued = []
    out = []
    known = 0
    for it in range(2):
        for item in seq:
            if item[0] == 'r':
                name, rel = item[1]
                issued.append((name, it + rel))
                if it == 1: out.append(item[2])
            elif item[0] == 'm':
                if it == 1:
                    idx = max(i for i, (n, t) in enumerate(issued) if t == it and n in item[1])
                    assert len([1 for (n, t) in issued if t == it and n in item[1]]) == len(item[1]), item
                    if idx + 1 > known:
                        cnt = min(len(issued) - (idx + 1), 15)
                        out.append(f"s_waitcnt lgkmcnt({cnt})")
                        known = idx + 1
                    out.append(item[2])
            else:
                if it == 1: out.append(item[1])
    return out

def skeleton(a, R, STG, NST, NLD, loader_setup, dma, cons_setup, body, nbase, epilogue, custom_loader=None):
    skeleton2(a, R, STG, NST, NLD, loader_setup, dma, cons_setup, [(None, body, epilogue)], nbase, custom_loader)

def skeleton2(a, R, STG, NST, NLD, loader_setup, dma, cons_setup, variants, nbase, custom_loader=None):
    a("s_cmp_ge_u32 s26, 4")
    a(f"s_cbranch_scc0 {a.name}_cons")
    a("s_sub_u32 s26, s26, 4")
    if custom_loader:
        a("s_cmp_ge_u32 s26, 4")
        a(f"s_cbranch_scc0 {a.name}_std")
        a("s_sub_u32 s26, s26, 4")
        custom_loader()
        a("s_endpgm")
        a.lab(f"{a.name}_std")
    std_loader(a, R, STG, NST, NLD, loader_setup, dma)
    cons_part(a, R, STG, NST, cons_setup, variants, nbase)

def std_loader(a, R, STG, NST, NLD, loader_setup, dma):
    loader_setup()
    a("s_mov_b32 s34, 0")
    def dma_adv():
        dma()
        a(f"s_add_u32 s34, s34, {STG}")
        a(f"s_cmp_eq_u32 s34, {R*STG}")
        a("s_cselect_b32 s34, 0, s34")
    for st in range(R-1): dma_adv()
    a(f"s_waitcnt vmcnt({(R-2)*NLD})")
    a("s_barrier")
    a("s_mov_b32 s40, 0")
    a.lab(f"{a.name}_lloop")
    a(f"s_waitcnt vmcnt({(R-3)*NLD})")
    a("s_barrier")
    dma_adv()
    a("s_add_u32 s40, s40, 1")
    a(f"s_cmp_lt_u32 s40, {NST-R+1}")
    a(f"s_cbranch_scc1 {a.name}_lloop")
    for k in range(R-1):
        a(f"s_waitcnt vmcnt({max(R-3-k,0)*NLD})")
        a("s_barrier")
    a("s_endpgm")

def cons_part(a, R, STG, NST, cons_setup, variants, nbase):
    a.lab(f"{a.name}_cons")
    cons_setup()
    nb0, n = nbase
    for r in range(n):
        a(f"v_mov_b32 v{nb0+n+r}, v{nb0+r}")
        a(f"v_mov_b32 v{nb0+2*n+r}, v{nb0+r}")
    a("s_mov_b32 s39, 0")
    a("s_mov_b32 s40, 0")
    a("s_barrier")
    stamp_mid(a, 0)
    for vi, (cmp, body, epilogue) in enumerate(variants):
        if vi: a.lab(f"{a.name}_var{vi}")
        if cmp:
            a(cmp); a(f"s_cbranch_scc1 {a.name}_var{vi+1}")
        seq = body()
        for item in seq:
            if item[0] == 'r' and item[1][1] == 1: a(item[2])
        a.lab(f"{a.name}_loop{vi}")
        a(f"s_add_u32 s39, s39, {STG}")
        a(f"s_cmp_eq_u32 s39, {R*STG}")
        a("s_cselect_b32 s39, 0, s39")
        for r in range(n):
            a(f"v_mov_b32 v{nb0+n+r}, v{nb0+2*n+r}")
            a(f"v_add_u32 v{nb0+2*n+r}, s39, v{nb0+r}")
        for x in sched_waits(seq):
            if x == '@BAR': a("s_barrier")
            elif x.startswith('@LAB '): a.lab(x[5:])
            else: a(x)
        a("s_add_u32 s40, s40, 1")
        a(f"s_cmp_lt_u32 s40, {NST}")
        a(f"s_cbranch_scc1 {a.name}_loop{vi}")
        a("s_waitcnt lgkmcnt(0)")
        stamp_mid(a, 1)
        epilogue()
    a.lab(f"{a.name}_done")
    stamp_end(a, 8)
    a.lab(f"{a.name}_end")
    a("s_endpgm")

def common_entry(a, nwg, args):
    a(f"s_cmp_ge_u32 s2, {nwg}")
    a(f"s_cbranch_scc1 {a.name}_end")
    for reg, off in args: a(f"s_load_dwordx2 s[{reg}:{reg+1}], s[0:1], {off}")
    a("v_and_b32 v1, 63, v0")
    a("v_lshrrev_b32 v2, 4, v1")
    a("v_and_b32 v3, 15, v1")
    a("v_lshrrev_b32 v4, 6, v0")
    a("s_nop 1")
    a("v_readfirstlane_b32 s26, v4")

def k4():
    a = Asm("mlp1_kernel"); header(a)
    R = 5; STG = 28672; NST = 32
    ACC = lambda b: 96 + 16*b
    WF = lambda ks: 24 + ks*4
    GF = lambda ks, b: 40 + (ks*3 + b)*4
    common_entry(a, 216, [(4, 32), (6, 40), (28, 80)])
    a("s_and_b32 s24, s2, 7")
    a("s_mul_i32 s24, s24, 27")
    a("s_lshr_b32 s25, s2, 3")
    a("s_add_u32 s24, s24, s25")
    a("s_mul_i32 s25, s24, 10923")
    a("s_lshr_b32 s25, s25, 16")
    a("s_mul_i32 s30, s25, 6")
    a("s_sub_u32 s24, s24, s30")
    a("s_waitcnt lgkmcnt(0)")
    srd_from_arg(a, 8, 32, S*F*2, 4)
    srd_from_arg(a, 12, 40, F*2, 6)
    srd_ws(a, 16, 28, WS_G, SZ_SD)
    srd_ws(a, 20, 28, WS_U, SZ_U)
    stamp_begin(a)
    def loader_setup():
        a("s_lshl_b32 s30, s26, 4")
        a("v_add_u32 v10, s30, v2")
        a("v_mul_u32_u24 v10, 9216, v10")
        a("v_lshlrev_b32 v11, 2, v2")
        a("v_xor_b32 v11, v11, v3")
        a("v_lshl_add_u32 v10, v11, 4, v10")
        a("s_lshl_b32 s30, s25, 8")
        a("v_add_u32 v5, s30, v10")
        a("s_mul_i32 s30, s26, 3072")
        a(f"s_mul_i32 s31, s24, {2048*192}")
        a("s_add_u32 s30, s30, s31")
        a("v_lshl_add_u32 v6, v1, 4, s30")
        a("s_lshl_b32 s32, s26, 12")
        a("s_mul_i32 s33, s26, 3072")
        a("s_add_u32 s33, s33, 16384")
        a("s_mov_b32 s35, 0"); a("s_mov_b32 s36, 0")
    def dma():
        a("s_add_u32 s37, s34, s32")
        for m in range(4):
            a(f"s_add_u32 m0, s37, {m*1024}")
            a(f"s_add_u32 s38, s35, {m*36864}")
            a("buffer_load_dwordx4 v5, s[8:11], s38 offen lds")
        a("s_add_u32 m0, s34, s33")
        a("s_nop 0")
        for m in range(3):
            a(f"buffer_load_dwordx4 v6, s[16:19], s36 offen offset:{m*1024} lds")
        a(f"s_add_u32 s35, s35, {64*9216}")
        a(f"s_add_u32 s36, s36, {64*192}")
    def cons_setup():
        a("v_lshrrev_b32 v150, 2, v3")
        a("v_and_b32 v151, 3, v3")
        a("v_lshrrev_b32 v152, 1, v2")
        a("v_and_b32 v153, 1, v2")
        a("v_lshl_add_u32 v154, v152, 3, v150")
        a("v_lshrrev_b32 v155, 1, v151")
        a("v_lshl_add_u32 v155, v153, 1, v155")
        a("s_lshl_b32 s30, s26, 2")
        a("v_add_u32 v155, s30, v155")
        a("v_lshlrev_b32 v156, 2, v150")
        a("v_xor_b32 v155, v155, v156")
        a("v_lshlrev_b32 v155, 4, v155")
        a("v_lshl_add_u32 v155, v154, 8, v155")
        a("v_and_b32 v156, 1, v151")
        a("v_lshl_add_u32 v10, v156, 3, v155")
        a("v_mul_u32_u24 v155, 192, v154")
        a("v_lshl_add_u32 v155, v153, 5, v155")
        a("v_lshl_add_u32 v155, v151, 3, v155")
        a("v_add_u32 v11, 16384, v155")
        for r in range(96, 144): a(f"v_mov_b32 v{r}, 0")
    def rd(ks, rel):
        wb, gb = ("v14", "v15") if rel else ("v12", "v13")
        L = []
        for hh in range(2):
            L.append(('r', (f"W{ks}{hh}", rel), f"ds_read_b64_tr_b16 {vr(WF(ks)+2*hh,2)}, {wb} offset:{ks*4096 + hh*1024}"))
        for b in range(3):
            for hh in range(2):
                L.append(('r', (f"G{ks}{b}{hh}", rel), f"ds_read_b64_tr_b16 {vr(GF(ks,b)+2*hh,2)}, {gb} offset:{ks*3072 + hh*768 + 64*b}"))
        return L
    def body():
        seq = []
        for ks in range(4):
            if ks == 2: seq.append(('x', '@BAR'))
            r = rd((ks+2) % 4, 1 if ks >= 2 else 0)
            for b in range(3):
                seq.append(('m', [f"W{ks}0", f"W{ks}1", f"G{ks}{b}0", f"G{ks}{b}1"],
                            f"v_mfma_f32_32x32x16_bf16 {vr(ACC(b),16)}, {vr(WF(ks),4)}, {vr(GF(ks,b),4)}, {vr(ACC(b),16)}"))
                seq += r[3*b:3*b+3]
        return seq
    def epilogue():
        a("v_lshrrev_b32 v4, 5, v1")
        a("s_lshl_b32 s30, s25, 8")
        a("s_lshl_b32 s31, s26, 6")
        a("s_add_u32 s30, s30, s31")
        a("v_lshl_add_u32 v150, v4, 3, s30")
        for qd in range(4): a(f"buffer_load_dwordx2 {vr(24+2*qd,2)}, v150, s[12:15], 0 offen offset:{16*qd}")
        a("v_and_b32 v151, 31, v1")
        a("s_mul_i32 s31, s24, 96")
        a("v_add_u32 v151, s31, v151")
        a("v_lshlrev_b32 v151, 7, v151")
        a("v_lshl_add_u32 v151, v4, 3, v151")
        a("s_lshr_b32 s31, s26, 1")
        a("s_lshl_b32 s30, s25, 1")
        a("s_add_u32 s31, s31, s30")
        a("s_mul_i32 s31, s31, 73728")
        a("s_and_b32 s30, s26, 1")
        a("s_lshl_b32 s30, s30, 6")
        a("s_add_u32 s31, s31, s30")
        a("v_add_u32 v16, s31, v151")
        a("s_waitcnt vmcnt(0)")
        for qd in range(4):
            for p in range(2):
                a(f"v_lshlrev_b32 v{32+4*qd+2*p}, 16, v{24+2*qd+p}")
                a(f"v_and_b32 v{33+4*qd+2*p}, 0xffff0000, v{24+2*qd+p}")
        c0 = -2.0*math.sqrt(2.0/math.pi)*LOG2E
        a(f"s_mov_b32 s41, {f32hex(c0*0.044715)}")
        a(f"v_mov_b32 v17, {f32hex(c0)}")
        for b in range(3):
            for qd in range(4):
                c = ACC(b) + 4*qd
                for r in range(4): a(f"v_add_f32 v{c+r}, v{c+r}, v{32+4*qd+r}")
                for r in range(4): a(f"v_mul_f32 v{150+r}, v{c+r}, v{c+r}")
                for r in range(4): a(f"v_fma_f32 v{150+r}, v{150+r}, s41, v17")
                for r in range(4): a(f"v_mul_f32 v{150+r}, v{150+r}, v{c+r}")
                for r in range(4): a(f"v_exp_f32 v{150+r}, v{150+r}")
                for r in range(4): a(f"v_add_f32 v{150+r}, 1.0, v{150+r}")
                for r in range(4): a(f"v_rcp_f32 v{150+r}, v{150+r}")
                for r in range(4): a(f"v_mul_f32 v{c+r}, v{c+r}, v{150+r}")
                a(f"v_cvt_pk_bf16_f32 v{c}, v{c}, v{c+1}")
                a(f"v_cvt_pk_bf16_f32 v{c+1}, v{c+2}, v{c+3}")
                a(f"buffer_store_dwordx2 {vr(c,2)}, v16, s[20:23], 0 offen offset:{b*4096 - (4096 if b==1 else 0)*0 + 16*qd}" if b == 0 else
                  f"buffer_store_dwordx2 {vr(c,2)}, v16, s[20:23], s{41+b} offen offset:{16*qd}")
            if b < 2: a(f"s_mov_b32 s{42+b}, {(b+1)*4096}")
    skeleton(a, R, STG, NST, 7, loader_setup, dma, cons_setup, body, (10, 2), epilogue)
    return a.text(), descriptor(a.name, 168, 0), f"; @launch kernel={a.name} grid=(216,1,1) block=(512,1,1) lds={R*STG}"

def k5():
    a = Asm("mlp2_kernel"); header(a)
    R = 4; STG = 34816; NST = 18; UB = 18432
    ACC = lambda j, t: 112 + (j*2 + t)*4
    UF = lambda buf, j: 24 + (buf*9 + j)*4
    WF = lambda buf, t: 96 + (buf*2 + t)*4
    common_entry(a, 256, [(4, 48), (28, 80)])
    a("s_and_b32 s24, s2, 7")
    a("s_lshl_b32 s24, s24, 5")
    a("s_lshr_b32 s25, s2, 3")
    a("s_add_u32 s27, s24, s25")
    a("s_and_b32 s24, s27, 3")
    a("s_lshr_b32 s25, s27, 2")
    a("s_and_b32 s25, s25, 15")
    a("s_lshr_b32 s27, s27, 6")
    a("s_waitcnt lgkmcnt(0)")
    srd_from_arg(a, 8, 48, F*S*2, 4)
    srd_ws(a, 16, 28, WS_U, SZ_U)
    srd_ws(a, 20, 28, WS_P, SZ_P)
    stamp_begin(a)
    def loader_setup():
        a("s_lshl_b32 s30, s26, 2")
        a("v_add_u32 v10, s30, v2")
        a("v_and_b32 v10, 7, v10")
        a("v_and_b32 v11, 7, v1")
        a("v_xor_b32 v10, v10, v11")
        a("v_lshrrev_b32 v11, 3, v1")
        a("v_lshlrev_b32 v11, 7, v11")
        a("v_lshl_add_u32 v5, v10, 4, v11")
        a("s_and_b32 s30, s26, 1")
        a("s_add_u32 s45, s30, 16")
        a("s_lshl_b32 s45, s45, 10")
        a("s_lshl_b32 s46, s26, 10")
        a("s_lshl_b32 s30, s26, 4")
        a("v_add_u32 v10, s30, v2")
        a("v_lshlrev_b32 v10, 12, v10")
        a("s_lshl_b32 s30, s25, 8")
        a("v_add_u32 v10, s30, v10")
        a("v_lshlrev_b32 v11, 1, v2")
        a("v_xor_b32 v11, v11, v3")
        a("v_lshl_add_u32 v6, v11, 4, v10")
        a("v_xor_b32 v11, 8, v11")
        a("v_lshl_add_u32 v7, v11, 4, v10")
        a("s_lshl_b32 s32, s26, 12")
        a(f"s_add_u32 s32, s32, {UB}")
        a(f"s_mul_i32 s35, s27, {18*73728}")
        a(f"s_mul_i32 s30, s24, {UB}")
        a("s_add_u32 s35, s35, s30")
        a(f"s_mul_i32 s36, s27, {1152*4096}")
    def dma():
        a("s_add_u32 s37, s34, s46")
        a("s_add_u32 s47, s35, s46")
        for m in range(4):
            a(f"s_add_u32 m0, s37, {m*4096}")
            a(f"s_add_u32 s38, s47, {m*4096}")
            a("buffer_load_dwordx4 v5, s[16:19], s38 offen lds")
        a("s_add_u32 m0, s34, s45")
        a("s_add_u32 s38, s35, s45")
        a("buffer_load_dwordx4 v5, s[16:19], s38 offen lds")
        a("s_add_u32 s37, s34, s32")
        for m in range(4):
            a(f"s_add_u32 m0, s37, {m*1024}")
            a(f"s_add_u32 s38, s36, {m*4*4096}")
            a(f"buffer_load_dwordx4 v{6 + (m>>1)}, s[8:11], s38 offen lds")
        a("s_add_u32 s35, s35, 73728")
        a(f"s_add_u32 s36, s36, {64*4096}")
    def cons_setup():
        a("v_lshrrev_b32 v200, 1, v3")
        a("v_xor_b32 v201, v2, v200")
        a("v_lshlrev_b32 v202, 7, v3")
        a("v_lshl_add_u32 v8, v201, 4, v202")
        a("v_xor_b32 v201, 4, v201")
        a("v_lshl_add_u32 v9, v201, 4, v202")
        a("v_lshrrev_b32 v200, 2, v3")
        a("v_and_b32 v201, 3, v3")
        a("v_lshl_add_u32 v202, v2, 3, v200")
        a("v_and_b32 v203, 1, v2")
        a("v_lshl_add_u32 v203, v203, 2, v200")
        a("v_lshlrev_b32 v203, 1, v203")
        a("v_lshrrev_b32 v204, 1, v201")
        a("s_lshl_b32 s30, s26, 2")
        a("v_add_u32 v204, s30, v204")
        a("v_xor_b32 v205, v204, v203")
        a("v_lshlrev_b32 v205, 4, v205")
        a("v_lshl_add_u32 v205, v202, 8, v205")
        a("v_and_b32 v206, 1, v201")
        a("v_lshl_add_u32 v205, v206, 3, v205")
        a(f"v_add_u32 v10, {UB}, v205")
        a("v_xor_b32 v11, 32, v10")
        for r in range(112, 184): a(f"v_mov_b32 v{r}, 0")
    def rd(ks, rel):
        b = 16 if rel else 12
        L = []
        for t in range(2):
            for hh in range(2):
                L.append(('r', (f"W{ks}{t}{hh}", rel), f"ds_read_b64_tr_b16 {vr(WF(ks,t)+2*hh,2)}, v{b+2+t} offset:{ks*8192 + hh*1024}"))
        for j in range(9):
            L.append(('r', (f"U{ks}{j}", rel), f"ds_read_b128 {vr(UF(ks,j),4)}, v{b+ks} offset:{j*2048}"))
        return L
    def body():
        seq = []
        for ks in range(2):
            if ks == 1: seq.append(('x', '@BAR'))
            r = rd(1-ks, ks)
            k = 0
            for j in range(9):
                for t in range(2):
                    C = vr(ACC(j,t),4)
                    seq.append(('m', [f"U{ks}{j}", f"W{ks}{t}0", f"W{ks}{t}1"], f"v_mfma_f32_16x16x32_bf16 {C}, {vr(UF(ks,j),4)}, {vr(WF(ks,t),4)}, {C}"))
                    if k < len(r): seq.append(r[k]); k += 1
        return seq
    def epilogue():
        a("s_lshl_b32 s30, s27, 11")
        a("s_lshl_b32 s31, s25, 7")
        a("s_add_u32 s30, s30, s31")
        a("s_lshl_b32 s31, s26, 5")
        a("s_add_u32 s30, s30, s31")
        a("v_add_u32 v200, s30, v3")
        a("v_mul_u32_u24 v200, 1152, v200")
        a("s_mul_i32 s31, s24, 288")
        a("v_lshl_add_u32 v200, v2, 3, v200")
        a("v_add_u32 v200, s31, v200")
        a(f"s_mov_b32 s31, {16*1152}")
        a("s_nop 3")
        for j in range(9):
            for t in range(2):
                c = ACC(j,t)
                a(f"v_cvt_pk_bf16_f32 v{c}, v{c}, v{c+1}")
                a(f"v_cvt_pk_bf16_f32 v{c+1}, v{c+2}, v{c+3}")
                a(f"buffer_store_dwordx2 {vr(c,2)}, v200, s[20:23], {'s31' if t else '0'} offen offset:{32*j}")
    skeleton(a, R, STG, NST, 9, loader_setup, dma, cons_setup, body, (8, 4), epilogue)
    return a.text(), descriptor(a.name, 208, 0), f"; @launch kernel={a.name} grid=(256,1,1) block=(512,1,1) lds={R*STG}"

def k6():
    a = Asm("final_kernel"); header(a)
    a("s_cmp_ge_u32 s2, 576")
    a(f"s_cbranch_scc1 {a.name}_end")
    a("s_load_dwordx2 s[4:5], s[0:1], 56")
    a("s_load_dwordx2 s[6:7], s[0:1], 64")
    a("s_load_dwordx2 s[28:29], s[0:1], 80")
    a("s_lshl_b32 s3, s2, 8")
    a("v_add_u32 v1, s3, v0")
    a("v_lshlrev_b32 v2, 4, v1")
    a("s_mov_b32 s30, 0x38e38e4")
    a("v_mul_hi_u32 v4, v1, s30")
    a("v_mul_u32_u24 v12, 72, v4")
    a("v_sub_u32 v12, v1, v12")
    a("v_mul_u32_u24 v13, 43691, v12")
    a("v_lshrrev_b32 v13, 19, v13")
    a("v_mul_u32_u24 v14, 12, v13")
    a("v_sub_u32 v12, v12, v14")
    a("s_mov_b32 s31, 393216")
    a("v_mul_lo_u32 v13, v13, s31")
    a("v_mul_u32_u24 v14, 192, v4")
    a("v_add_u32 v13, v13, v14")
    a("v_lshl_add_u32 v12, v12, 4, v13")
    a("v_lshlrev_b32 v4, 1, v4")
    a("s_waitcnt lgkmcnt(0)")
    srd_from_arg(a, 8, 56, S*2, 4)
    srd_from_arg(a, 12, 64, S*D*2, 6)
    srd_ws(a, 16, 28, WS_H, SZ_SD)
    srd_ws(a, 20, 28, WS_P, SZ_P)
    for p in range(4):
        a(f"s_mov_b32 s{32+p}, {p*S*D*2}")
        a(f"buffer_load_dwordx4 {vr(16+4*p,4)}, v2, s[20:23], s{32+p} offen")
    a("buffer_load_dwordx4 v[32:35], v12, s[16:19], 0 offen")
    a("buffer_load_ushort v5, v4, s[8:11], 0 offen")
    a("v_mov_b32 v10, 0x00003f80"); a("v_mov_b32 v11, 0x3f800000")
    a("s_waitcnt vmcnt(0)")
    for r in range(8): a(f"v_lshlrev_b32 v{40+r}, 16, v5")
    for sreg in (16, 20, 24, 28, 32):
        for r in range(8): a(f"v_dot2c_f32_bf16 v{40+r}, v{sreg + r//2}, v{10 + r%2}")
    a("s_nop 2")
    for r in range(4): a(f"v_cvt_pk_bf16_f32 v{8+r if False else 16+r}, v{40+2*r}, v{41+2*r}")
    a("buffer_store_dwordx4 v[16:19], v2, s[12:15], 0 offen")
    a.lab(f"{a.name}_end")
    a("s_endpgm")
    return a.text(), descriptor(a.name, 48, 0), f"; @launch kernel={a.name} grid=(576,1,1) block=(256,1,1) lds=0"

def k1():
    a = Asm("qkv_kernel"); header(a)
    R = 4; XB = 16384; STG = 34816; NST = 9
    ACC = lambda i, j: 112 + (i*9 + j)*4
    XF = lambda ks, i: 24 + (ks*2 + i)*4
    WF = lambda ks, j: 40 + (ks*9 + j)*4
    CW = lambda j: 184 + 4*j
    S1 = lambda i: 220 + 4*i
    S2 = lambda i: 228 + 4*i
    ONE = 236
    T = 240
    common_entry(a, 192, [(4, 0), (6, 8), (28, 80)])
    a("s_mul_i32 s24, s2, 5462")
    a("s_lshr_b32 s24, s24, 16")
    a("s_mul_i32 s25, s24, 12")
    a("s_sub_u32 s25, s2, s25")
    a("s_lshr_b32 s41, s25, 2")
    a("s_waitcnt lgkmcnt(0)")
    srd_from_arg(a, 8, 0, S*D*2, 4)
    srd_from_arg(a, 12, 8, D*3*D*2, 6)
    srd_ws(a, 16, 28, WS_Q, SZ_Q)
    srd_ws(a, 20, 28, WS_KV, SZ_KV)
    stamp_begin(a)
    def loader_setup():
        a("s_lshl_b32 s30, s26, 2")
        a("v_add_u32 v10, s30, v2")
        a("v_and_b32 v10, 7, v10")
        a("v_and_b32 v11, 7, v1")
        a("v_xor_b32 v10, v10, v11")
        a("v_lshrrev_b32 v11, 3, v1")
        a("s_lshl_b32 s30, s24, 7")
        a("s_lshl_b32 s31, s26, 3")
        a("s_add_u32 s30, s30, s31")
        a("v_add_u32 v11, s30, v11")
        a("v_mul_u32_u24 v11, 1152, v11")
        a("v_lshl_add_u32 v5, v10, 4, v11")
        a("s_lshl_b32 s32, s26, 6")
        a("s_and_b32 s33, s26, 1")
        a("s_add_u32 s33, s33, 16")
        a("s_lshl_b32 s30, s33, 6")
        a("s_mul_i32 s31, s25, 288")
        for n in range(5):
            if n < 4:
                a(f"v_add_u32 v20, s32, v1")
                if n: a(f"v_add_u32 v20, {n*256}, v20")
            else:
                a(f"v_add_u32 v20, s30, v1")
            a("v_mul_u32_u24 v21, 3641, v20")
            a("v_lshrrev_b32 v21, 16, v21")
            a("v_mul_u32_u24 v22, 18, v21")
            a("v_sub_u32 v22, v20, v22")
            swap23(a, 21, 23, 24)
            a("v_mul_u32_u24 v23, 3456, v23")
            a("v_lshl_add_u32 v23, v22, 4, v23")
            a(f"v_add_u32 v{6+n}, s31, v23")
        a("s_lshl_b32 s46, s26, 10")
        a("s_lshl_b32 s45, s33, 10")
        a(f"s_add_u32 s45, s45, {XB}")
        a("s_mov_b32 s35, 0"); a("s_mov_b32 s36, 0")
    def dma():
        a("s_add_u32 s37, s34, s46")
        for m in range(4):
            a(f"s_add_u32 m0, s37, {m*4096}")
            a(f"s_add_u32 s38, s35, {m*32*1152}")
            a("buffer_load_dwordx4 v5, s[8:11], s38 offen lds")
        for n in range(5):
            if n < 4: a(f"s_add_u32 m0, s37, {XB + n*4096}")
            else:     a("s_add_u32 m0, s34, s45")
            a("s_nop 0")
            a(f"buffer_load_dwordx4 v{6+n}, s[12:15], s36 offen lds")
        a("s_add_u32 s35, s35, 128")
        a(f"s_add_u32 s36, s36, {64*3456}")
    def cons_setup():
        a("v_lshrrev_b32 v240, 1, v3")
        a("v_xor_b32 v241, v2, v240")
        a("s_lshl_b32 s30, s26, 5")
        a("v_add_u32 v242, s30, v3")
        a("v_lshlrev_b32 v242, 7, v242")
        a("v_lshl_add_u32 v8, v241, 4, v242")
        a("v_xor_b32 v241, 4, v241")
        a("v_lshl_add_u32 v9, v241, 4, v242")
        a("v_lshrrev_b32 v240, 1, v2")
        a("v_and_b32 v241, 1, v2")
        a("v_lshlrev_b32 v240, 4, v240")
        a("v_lshl_add_u32 v240, v241, 2, v240")
        a("v_lshrrev_b32 v241, 2, v3")
        a("v_add_u32 v240, v240, v241")
        a("v_mul_u32_u24 v240, 288, v240")
        a("v_and_b32 v241, 3, v3")
        a("v_lshl_add_u32 v10, v241, 3, v240")
        a(f"v_add_u32 v10, {XB}, v10")
        for r in range(112, 236): a(f"v_mov_b32 v{r}, 0")
        for r in range(236, 240): a(f"v_mov_b32 v{r}, 0x3f803f80")
        a("s_mov_b32 s42, 0")
    def mkbody(mode):
        def rd(ks, rel):
            b = 14 if rel else 11
            L = []
            for i in range(2):
                L.append(('r', (f"X{ks}{i}", rel), f"ds_read_b128 {vr(XF(ks,i),4)}, v{b+ks} offset:{i*2048}"))
            for j in range(9):
                for hh in range(2):
                    L.append(('r', (f"W{ks}{j}{hh}", rel), f"ds_read_b64_tr_b16 {vr(WF(ks,j)+2*hh,2)}, v{b+2} offset:{ks*32*288 + hh*8*288 + 32*j}"))
            return L
        def body():
            seq = []
            for ks in range(2):
                if ks == 1: seq.append(('x', '@BAR'))
                r = rd(1-ks, ks)
                ms = []
                for i in range(2):
                    X = vr(XF(ks,i),4)
                    ms.append(('m', [f"X{ks}{i}"], f"v_mfma_f32_16x16x32_bf16 {vr(S1(i),4)}, {vr(ONE,4)}, {X}, {vr(S1(i),4)}"))
                    ms.append(('m', [f"X{ks}{i}"], f"v_mfma_f32_16x16x32_bf16 {vr(S2(i),4)}, {X}, {X}, {vr(S2(i),4)}"))
                for j in range(9):
                    for i in range(2):
                        W = vr(WF(ks,j),4); X = vr(XF(ks,i),4); C = vr(ACC(i,j),4)
                        ops = f"{W}, {X}" if mode == "qk" else f"{X}, {W}"
                        ms.append(('m', [f"X{ks}{i}", f"W{ks}{j}0", f"W{ks}{j}1"], f"v_mfma_f32_16x16x32_bf16 {C}, {ops}, {C}"))
                k = 0
                for m in ms:
                    seq.append(m)
                    if k < len(r): seq.append(r[k]); k += 1
                l = a.newlabel("cw")
                seq.append(('x', "s_and_b32 s43, s42, 3"))
                seq.append(('x', "s_add_u32 s42, s42, 1"))
                seq.append(('x', "s_cmp_eq_u32 s43, s26"))
                seq.append(('x', f"s_cbranch_scc0 {l}"))
                for j in range(9):
                    W = vr(WF(ks,j),4); C = vr(CW(j),4)
                    ops = f"{W}, {vr(ONE,4)}" if mode == "qk" else f"{vr(ONE,4)}, {W}"
                    seq.append(('x', f"v_mfma_f32_16x16x32_bf16 {C}, {ops}, {C}"))
                seq.append(('x', f"@LAB {l}"))
            return seq
        return body
    P = 296
    def mkepi(mode):
        def epilogue():
            a("s_nop 7")
            a("s_barrier")
            a("s_mul_i32 s40, s26, 576")
            if mode == "qk":
                a("v_lshlrev_b32 v24, 4, v2")
                a("v_add_u32 v25, s40, v24")
                for j in range(9): a(f"ds_write_b128 v25, {vr(CW(j),4)} offset:{j*64}")
            else:
                a("v_lshlrev_b32 v24, 2, v3")
                a("v_add_u32 v25, s40, v24")
                for j in range(9): a(f"ds_write_b32 v25, v{CW(j)} offset:{j*64}")
            a("v_and_b32 v26, 3, v3")
            a("v_lshrrev_b32 v27, 2, v3")
            a("v_lshl_add_u32 v27, v27, 4, v3")
            a("v_lshlrev_b32 v27, 2, v27")
            for i in range(2):
                a(f"v_cmp_eq_u32 vcc, 1, v26"); a("s_nop 1")
                a(f"v_cndmask_b32 v{28+i}, v{S2(i)}, v{S2(i)+1}, vcc")
                a(f"v_cmp_eq_u32 vcc, 2, v26"); a("s_nop 1")
                a(f"v_cndmask_b32 v{28+i}, v{28+i}, v{S2(i)+2}, vcc")
                a(f"v_cmp_eq_u32 vcc, 3, v26"); a("s_nop 1")
                a(f"v_cndmask_b32 v{28+i}, v{28+i}, v{S2(i)+3}, vcc")
                a(f"ds_bpermute_b32 v{30+i}, v27, v{28+i}")
            a(f"s_mov_b32 s44, {f32hex(1.0/576)}")
            a(f"s_mov_b32 s45, {f32hex(1e-5)}")
            a("s_waitcnt lgkmcnt(0)")
            for i in range(2):
                a(f"v_mul_f32 v{28+i}, s44, v{S1(i)}")
                a(f"v_mul_f32 v{30+i}, s44, v{30+i}")
                a(f"v_fma_f32 v{30+i}, -v{28+i}, v{28+i}, v{30+i}")
                a(f"v_max_f32 v{30+i}, 0, v{30+i}")
                a(f"v_add_f32 v{30+i}, s45, v{30+i}")
                a(f"v_rsq_f32 v{32+i}, v{30+i}")
            a("s_nop 0")
            if mode == "qk":
                a(f"s_mov_b32 s43, {f32hex(QSCALE)}")
                a("s_cmp_eq_u32 s41, 0")
                a("s_cselect_b32 s43, s43, 1.0")
                for i in range(2): a(f"v_mul_f32 v{32+i}, s43, v{32+i}")
            for i in range(2): a(f"v_mul_f32 v{34+i}, v{28+i}, v{32+i}")
            a("s_barrier")
            if 'e1' in FL: stamp_mid(a, 0)
            a("s_and_b32 s44, s25, 3")
            a("s_lshl_b32 s44, s44, 3")
            a("s_lshl_b32 s27, s24, 7")
            a("s_lshl_b32 s30, s26, 5")
            a("s_add_u32 s27, s27, s30")
            a("s_mul_i32 s47, s26, 12288")
            a("s_add_u32 s47, s47, 4096")
            a("s_lshr_b32 s48, s27, 9")
            a(f"s_mul_i32 s48, s48, {CHUNK}")
            a("s_and_b32 s49, s27, 511")
            a(f"s_mul_i32 s50, s44, {HB}")
            a("s_add_u32 s48, s48, s50")
            if mode == "qk":
                for j in range(9):
                    a(f"ds_read_b128 {vr(40+4*j,4)}, v24 offset:{j*64}")
                    a(f"ds_read_b128 {vr(76+4*j,4)}, v24 offset:{576 + j*64}")
                a("s_waitcnt lgkmcnt(0)")
                for k in range(36): a(f"v_add_f32 v{40+k}, v{40+k}, v{76+k}")
                for j in range(9):
                    a(f"ds_read_b128 {vr(76+4*j,4)}, v24 offset:{2*576 + j*64}")
                    a(f"ds_read_b128 {vr(184+4*j,4)}, v24 offset:{3*576 + j*64}")
                a("s_waitcnt lgkmcnt(0)")
                for k in range(36):
                    a(f"v_add_f32 v{76+k}, v{76+k}, v{184+k}")
                    a(f"v_add_f32 v{40+k}, v{40+k}, v{76+k}")
                a(f"v_mul_u32_u24 v36, {P}, v3")
                a("v_lshl_add_u32 v36, v2, 3, v36")
                a("v_add_u32 v36, s47, v36")
                for i in range(2):
                    for j in range(9):
                        c = ACC(i,j)
                        for r in range(4): a(f"v_mul_f32 v{96+r}, v{40+4*j+r}, v{34+i}")
                        for r in range(4): a(f"v_fma_f32 v{96+r}, v{c+r}, v{32+i}, -v{96+r}")
                        a(f"v_cvt_pk_bf16_f32 v{c}, v96, v97")
                        a(f"v_cvt_pk_bf16_f32 v{c+1}, v98, v99")
                        a(f"ds_write_b64 v36, {vr(c,2)} offset:{i*16*P + 32*j}")
                lq = a.newlabel("isq")
                a("s_waitcnt lgkmcnt(0)")
                if 'e2' in FL: stamp_mid(a, 0)
                a("s_cmp_eq_u32 s41, 0")
                a(f"s_cbranch_scc1 {lq}")
                a("v_and_b32 v37, 31, v1")
                a("v_lshrrev_b32 v38, 5, v1")
                a(f"v_mul_u32_u24 v39, {P}, v37")
                a("v_add_u32 v39, s47, v39")
                a("v_lshl_add_u32 v40, v38, 4, v39")
                a("v_lshlrev_b32 v41, 4, v1")
                a("s_lshr_b32 s50, s49, 5")
                a("s_lshl_b32 s50, s50, 10")
                a("s_add_u32 s50, s50, s48")
                for h in range(8):
                    b = 48 + 4*h
                    a(f"ds_read2_b32 {vr(b,2)}, v40 offset0:{9*h} offset1:{9*h+1}")
                    a(f"ds_read2_b32 {vr(b+2,2)}, v40 offset0:{9*h+2} offset1:{9*h+3}")
                a("v_mul_u32_u24 v42, 36, v38")
                a("v_add_u32 v42, v42, v39")
                for p in range(4): a(f"ds_read_b32 v{80+2*p}, v42 offset:{72*p + 32}")
                for p in range(4): a(f"v_mov_b32 v{81+2*p}, 0x00003f80")
                a(f"s_mov_b32 s51, {HB}")
                a("v_mul_lo_u32 v43, v38, s51")
                a("v_lshl_add_u32 v43, v37, 3, v43")
                a("s_lshl_b32 s51, s49, 3")
                a("s_add_u32 s51, s51, s48")
                a("s_add_u32 s51, s51, 16384")
                a("s_waitcnt lgkmcnt(0)")
                for h in range(8):
                    a(f"buffer_store_dwordx4 {vr(48+4*h,4)}, v41, s[20:23], s50 offen")
                    if h < 7: a(f"s_add_u32 s50, s50, {HB}")
                for p in range(4):
                    a(f"buffer_store_dwordx2 {vr(80+2*p,2)}, v43, s[20:23], s51 offen")
                    if p < 3: a(f"s_add_u32 s51, s51, {2*HB}")
                a(f"s_branch {a.name}_done")
                a.lab(lq)
                for n in range(3):
                    a(f"v_add_u32 v37, {64*n}, v1")
                    a("v_cmp_le_u32 vcc, 96, v37"); a("s_nop 1")
                    a("v_cndmask_b32 v38, 0, 1, vcc")
                    a("v_mul_u32_u24 v39, 96, v38")
                    a("v_sub_u32 v37, v37, v39")
                    a("v_mul_u32_u24 v39, 171, v37")
                    a("v_lshrrev_b32 v39, 9, v39")
                    a("v_mul_u32_u24 v40, 3, v39")
                    a("v_sub_u32 v40, v37, v40")
                    a(f"v_mul_u32_u24 v41, {P}, v39")
                    a("v_mul_u32_u24 v42, 36, v38")
                    a("v_add_u32 v41, v41, v42")
                    a("v_lshl_add_u32 v41, v40, 4, v41")
                    a(f"v_add_u32 v{44+n}, s47, v41")
                    a("v_mul_u32_u24 v41, 48, v39")
                    a("v_lshl_add_u32 v41, v40, 4, v41")
                    a("s_mov_b32 s51, 98304")
                    a("v_mul_lo_u32 v42, v38, s51")
                    a(f"v_add_u32 v{100+n}, v41, v42")
                for p in range(4):
                    for n in range(3):
                        b = 48 + (p*3+n)*4
                        a(f"ds_read2_b32 {vr(b,2)}, v{44+n} offset0:{18*p} offset1:{18*p+1}")
                        a(f"ds_read2_b32 {vr(b+2,2)}, v{44+n} offset0:{18*p+2} offset1:{18*p+3}")
                a("s_lshl_b32 s50, s44, 11")
                a("s_add_u32 s50, s50, s27")
                a("s_mul_i32 s50, s50, 48")
                a("s_waitcnt lgkmcnt(0)")
                if 'e3' in FL: stamp_mid(a, 0)
                for p in range(4):
                    for n in range(3):
                        a(f"buffer_store_dwordx4 {vr(48+(p*3+n)*4,4)}, v{100+n}, s[16:19], s50 offen")
                    if p < 3: a(f"s_add_u32 s50, s50, {2*98304}")
                a(f"s_branch {a.name}_done")
            else:
                for j in range(9):
                    for w in range(4): a(f"ds_read_b32 v{184+4*j+w}, v24 offset:{w*576 + j*64}")
                a("s_waitcnt lgkmcnt(0)")
                for j in range(9):
                    b = 184 + 4*j
                    a(f"v_add_f32 v{b}, v{b}, v{b+1}"); a(f"v_add_f32 v{b+2}, v{b+2}, v{b+3}")
                    a(f"v_add_f32 v{40+j}, v{b}, v{b+2}")
                a("s_lshl_b32 s45, s26, 8")
                a("s_add_u32 s45, s45, 2304")
                a("v_lshl_add_u32 v96, v3, 2, s45")
                for i in range(2):
                    a(f"ds_write_b32 v96, v{32+i} offset:{i*64}")
                    a(f"ds_write_b32 v96, v{34+i} offset:{128 + i*64}")
                a("v_lshl_add_u32 v97, v2, 4, s45")
                a("v_lshrrev_b32 v98, 2, v1")
                a("v_mul_u32_u24 v98, 1216, v98")
                a("v_and_b32 v99, 3, v1")
                a("v_mul_u32_u24 v99, 304, v99")
                a("v_add3_u32 v98, v98, v99, s47")
                a("v_cmp_gt_u32 vcc, 32, v1")
                a("s_and_saveexec_b64 s[52:53], vcc")
                a(f"ds_write_b128 v98, {vr(ONE,4)} offset:288")
                a("s_mov_b64 exec, s[52:53]")
                a("s_waitcnt lgkmcnt(0)")
                for i in range(2):
                    a(f"ds_read_b128 {vr(52+8*i,4)}, v97 offset:{i*64}")
                    a(f"ds_read_b128 {vr(56+8*i,4)}, v97 offset:{128+i*64}")
                a("v_and_b32 v98, 1, v2")
                a("v_mul_u32_u24 v98, 304, v98")
                a("v_lshrrev_b32 v99, 1, v2")
                a("v_lshl_add_u32 v98, v99, 3, v98")
                a("v_add_u32 v98, s47, v98")
                a("s_waitcnt lgkmcnt(0)")
                for j in range(9):
                    a(f"v_add_u32 v106, {16*j}, v3")
                    a("v_mul_u32_u24 v107, 3641, v106")
                    a("v_lshrrev_b32 v107, 16, v107")
                    a("v_mul_u32_u24 v108, 18, v107")
                    a("v_sub_u32 v108, v106, v108")
                    a("v_mul_u32_u24 v107, 1216, v107")
                    a("v_lshl_add_u32 v107, v108, 4, v107")
                    a("v_add_u32 v107, v107, v98")
                    for i in range(2):
                        c = ACC(i,j)
                        for r in range(4): a(f"v_mul_f32 v{100+r}, v{40+j}, v{56+8*i+r}")
                        for r in range(4): a(f"v_fma_f32 v{100+r}, v{c+r}, v{52+8*i+r}, -v{100+r}")
                        a(f"v_cvt_pk_bf16_f32 v{c}, v100, v101")
                        a(f"v_cvt_pk_bf16_f32 v{c+1}, v102, v103")
                        a(f"ds_write_b64 v107, {vr(c,2)} offset:{i*608}")
                a("v_lshl_add_u32 v96, v1, 4, s47")
                a("s_waitcnt lgkmcnt(0)")
                for n in range(10): a(f"ds_read_b128 {vr(40+4*n,4)}, v96 offset:{n*1024}")
                a("s_lshr_b32 s50, s49, 4")
                a("s_mul_i32 s50, s50, 608")
                a("s_add_u32 s50, s50, s48")
                a("s_add_u32 s50, s50, 20480")
                a(f"s_mov_b32 s51, {HB-1216}")
                for n in range(10):
                    a(f"v_add_u32 v100, {64*n}, v1")
                    a("v_mul_u32_u24 v101, 863, v100")
                    a("v_lshrrev_b32 v101, 16, v101")
                    a("v_mul_lo_u32 v101, v101, s51")
                    a(f"v_lshl_add_u32 v{84+n}, v100, 4, v101")
                a("s_waitcnt lgkmcnt(0)")
                for n in range(10):
                    if n == 9: a("s_and_saveexec_b64 s[52:53], vcc")
                    a(f"buffer_store_dwordx4 {vr(40+4*n,4)}, v{84+n}, s[20:23], s50 offen")
                a("s_mov_b64 exec, s[52:53]")
        return epilogue
    skeleton2(a, R, STG, NST, 9, loader_setup, dma, cons_setup, [("s_cmp_eq_u32 s41, 2", mkbody("qk"), mkepi("qk")), (None, mkbody("v"), mkepi("v"))], (8, 3))
    return a.text(), descriptor(a.name, 256, 0), f"; @launch kernel={a.name} grid=(192,1,1) block=(512,1,1) lds={R*STG}"


def k3():
    a = Asm("oproj_kernel"); header(a)
    R = 6; OB = 8192; STG = 20480; NST = 9
    ACC = lambda i, j: 72 + (i*3 + j)*4
    OF = lambda ks, i: 24 + (ks*2 + i)*4
    WF = lambda ks, j: 40 + (ks*3 + j)*4
    XR = lambda i, j: 96 + (i*3 + j)*2
    common_entry(a, 192, [(4, 0), (6, 16), (28, 80)])
    a("s_and_b32 s24, s2, 7")
    a("s_mul_i32 s24, s24, 24")
    a("s_lshr_b32 s25, s2, 3")
    a("s_add_u32 s24, s24, s25")
    a("s_mul_i32 s25, s24, 10923")
    a("s_lshr_b32 s25, s25, 16")
    a("s_mul_i32 s30, s25, 6")
    a("s_sub_u32 s24, s24, s30")
    a("s_waitcnt lgkmcnt(0)")
    srd_from_arg(a, 8, 0, S*D*2, 4)
    srd_from_arg(a, 12, 16, D*D*2, 6)
    srd_ws(a, 16, 28, WS_O, SZ_SD)
    srd_ws(a, 20, 28, WS_H, SZ_SD)
    srd_ws(a, 44, 28, WS_ST, SZ_ST)
    stamp_begin(a)
    def loader_setup():
        a("s_lshl_b32 s30, s26, 2")
        a("v_add_u32 v10, s30, v2")
        a("v_and_b32 v10, 7, v10")
        a("v_and_b32 v11, 7, v1")
        a("v_xor_b32 v10, v10, v11")
        a("v_lshrrev_b32 v11, 3, v1")
        a("s_lshl_b32 s30, s25, 6")
        a("s_lshl_b32 s31, s26, 3")
        a("s_add_u32 s30, s30, s31")
        a("v_add_u32 v11, s30, v11")
        a("v_mul_u32_u24 v11, 1152, v11")
        a("v_lshl_add_u32 v5, v10, 4, v11")
        a("s_mul_i32 s30, s26, 192")
        a("s_mul_i32 s31, s24, 192")
        for m in range(3):
            a("v_add_u32 v20, s30, v1")
            if m: a(f"v_add_u32 v20, {64*m}, v20")
            a("v_mul_u32_u24 v21, 43691, v20")
            a("v_lshrrev_b32 v21, 19, v21")
            a("v_mul_u32_u24 v22, 12, v21")
            a("v_sub_u32 v22, v20, v22")
            a("v_lshrrev_b32 v23, 2, v21")
            a("v_and_b32 v23, 2, v23")
            a("v_xor_b32 v22, v22, v23")
            a("v_mul_u32_u24 v21, 1152, v21")
            a("v_lshl_add_u32 v21, v22, 4, v21")
            a(f"v_add_u32 v{6+m}, s31, v21")
        a("s_lshl_b32 s46, s26, 10")
        a("s_mul_i32 s45, s26, 3072")
        a(f"s_add_u32 s45, s45, {OB}")
        a("s_mov_b32 s35, 0"); a("s_mov_b32 s36, 0")
    def dma():
        a("s_add_u32 s37, s34, s46")
        for m in range(2):
            a(f"s_add_u32 m0, s37, {m*4096}")
            a(f"s_add_u32 s38, s35, {m*32*1152}")
            a("buffer_load_dwordx4 v5, s[16:19], s38 offen lds")
        a("s_add_u32 s37, s34, s45")
        for m in range(3):
            a(f"s_add_u32 m0, s37, {m*1024}")
            a("s_nop 0")
            a(f"buffer_load_dwordx4 v{6+m}, s[12:15], s36 offen lds")
        a("s_add_u32 s35, s35, 128")
        a(f"s_add_u32 s36, s36, {64*1152}")
    def cons_setup():
        a("s_lshr_b32 s41, s26, 1")
        a("s_and_b32 s42, s26, 1")
        a("v_lshrrev_b32 v110, 1, v3")
        a("v_xor_b32 v111, v2, v110")
        a("s_lshl_b32 s30, s41, 5")
        a("v_add_u32 v112, s30, v3")
        a("v_lshlrev_b32 v112, 7, v112")
        a("v_lshl_add_u32 v6, v111, 4, v112")
        a("v_xor_b32 v111, 4, v111")
        a("v_lshl_add_u32 v7, v111, 4, v112")
        a("v_lshrrev_b32 v110, 2, v3")
        a("v_and_b32 v111, 3, v3")
        a("v_lshl_add_u32 v112, v2, 3, v110")
        a("v_mul_u32_u24 v112, 192, v112")
        a("v_and_b32 v113, 1, v111")
        a("v_lshl_add_u32 v112, v113, 3, v112")
        a(f"v_add_u32 v112, {OB}, v112")
        a("v_lshrrev_b32 v113, 1, v111")
        a("s_mul_i32 s30, s42, 6")
        a("v_add_u32 v113, s30, v113")
        a("v_and_b32 v114, 1, v2")
        a("v_lshlrev_b32 v114, 1, v114")
        for j in range(3):
            a(f"v_add_u32 v115, {2*j}, v113")
            a("v_xor_b32 v115, v115, v114")
            a(f"v_lshl_add_u32 v{8+j}, v115, 4, v112")
        for r in range(72, 96): a(f"v_mov_b32 v{r}, 0")
        a("s_lshl_b32 s27, s25, 6")
        a("s_lshl_b32 s30, s41, 5")
        a("s_add_u32 s27, s27, s30")
        a("v_add_u32 v110, s27, v3")
        a("v_mul_u32_u24 v111, 1152, v110")
        a("v_lshl_add_u32 v111, v2, 3, v111")
        a("s_mul_i32 s30, s24, 192")
        a("s_mul_i32 s31, s42, 96")
        a("s_add_u32 s30, s30, s31")
        a("v_add_u32 v111, s30, v111")
        a("s_mov_b32 s43, 18432")
        for i in range(2):
            for j in range(3):
                a(f"buffer_load_dwordx2 {vr(XR(i,j),2)}, v111, s[8:11], {'s43' if i else '0'} offen offset:{32*j}")
        a("v_mul_u32_u24 v110, 192, v110")
        a("v_lshl_add_u32 v110, v2, 3, v110")
        a(f"s_mul_i32 s30, s24, {2048*192}")
        a("s_add_u32 s30, s30, s31")
        a("v_add_u32 v108, s30, v110")
    def rd(ks, rel):
        b = 16 if rel else 11
        L = []
        for i in range(2):
            L.append(('r', (f"O{ks}{i}", rel), f"ds_read_b128 {vr(OF(ks,i),4)}, v{b+ks} offset:{i*2048}"))
        for j in range(3):
            for hh in range(2):
                L.append(('r', (f"W{ks}{j}{hh}", rel), f"ds_read_b64_tr_b16 {vr(WF(ks,j)+2*hh,2)}, v{b+2+j} offset:{ks*6144 + hh*768}"))
        return L
    def body():
        seq = []
        for ks in range(2):
            if ks == 1: seq.append(('x', '@BAR'))
            r = rd(1-ks, ks)
            ms = []
            for j in range(3):
                for i in range(2):
                    C = vr(ACC(i,j),4)
                    ms.append(('m', [f"O{ks}{i}", f"W{ks}{j}0", f"W{ks}{j}1"], f"v_mfma_f32_16x16x32_bf16 {C}, {vr(WF(ks,j),4)}, {vr(OF(ks,i),4)}, {C}"))
            k = 0
            for idx, m in enumerate(ms):
                seq.append(m)
                n = 2 if idx < 2 else 1
                seq += r[k:k+n]; k += n
        return seq
    def epilogue():
        a("s_waitcnt vmcnt(0)")
        a("s_nop 7")
        for r in range(24, 28): a(f"v_mov_b32 v{r}, 0")
        for i in range(2):
            for j in range(3):
                c = ACC(i,j); x = XR(i,j)
                a(f"v_lshlrev_b32 v40, 16, v{x}")
                a(f"v_and_b32 v41, 0xffff0000, v{x}")
                a(f"v_lshlrev_b32 v42, 16, v{x+1}")
                a(f"v_and_b32 v43, 0xffff0000, v{x+1}")
                for r in range(4): a(f"v_add_f32 v{40+r}, v{40+r}, v{c+r}")
                a(f"v_cvt_pk_bf16_f32 v{x}, v40, v41")
                a(f"v_cvt_pk_bf16_f32 v{x+1}, v42, v43")
                a(f"buffer_store_dwordx2 {vr(x,2)}, v108, s[20:23], 0 offen offset:{i*3072 + 32*j}")
                a(f"v_lshlrev_b32 v40, 16, v{x}")
                a(f"v_and_b32 v41, 0xffff0000, v{x}")
                a(f"v_lshlrev_b32 v42, 16, v{x+1}")
                a(f"v_and_b32 v43, 0xffff0000, v{x+1}")
                for r in range(4):
                    a(f"v_add_f32 v{24+i}, v{24+i}, v{40+r}")
                    a(f"v_fmac_f32 v{26+i}, v{40+r}, v{40+r}")
        a("v_xor_b32 v30, 16, v1"); a("v_lshlrev_b32 v30, 2, v30")
        a("v_xor_b32 v31, 32, v1"); a("v_lshlrev_b32 v31, 2, v31")
        for addr in ("v30", "v31"):
            for r in range(4): a(f"ds_bpermute_b32 v{32+r}, {addr}, v{24+r}")
            a("s_waitcnt lgkmcnt(0)")
            for r in range(4): a(f"v_add_f32 v{24+r}, v{24+r}, v{32+r}")
        X = R*STG
        a("s_lshl_b32 s30, s26, 8")
        a(f"s_add_u32 s30, s30, {X}")
        a("v_lshl_add_u32 v36, v3, 3, s30")
        for i in range(2):
            a(f"v_mov_b32 v{40+2*i}, v{24+i}"); a(f"v_mov_b32 v{41+2*i}, v{26+i}")
            a(f"ds_write_b64 v36, {vr(40+2*i,2)} offset:{i*128}")
        a("s_waitcnt lgkmcnt(0)")
        a("s_barrier")
        a("s_cmp_eq_u32 s42, 0")
        a(f"s_cbranch_scc0 {a.name}_done")
        for i in range(2): a(f"ds_read_b64 {vr(44+2*i,2)}, v36 offset:{256 + i*128}")
        a("s_lshl_b32 s30, s24, 11")
        a("s_add_u32 s30, s30, s27")
        a("v_add_u32 v37, s30, v3")
        a("v_lshlrev_b32 v37, 3, v37")
        a("v_cmp_gt_u32 vcc, 16, v1")
        a("s_waitcnt lgkmcnt(0)")
        for r in range(4): a(f"v_add_f32 v{40+r}, v{40+r}, v{44+r}")
        a("s_and_saveexec_b64 s[52:53], vcc")
        for i in range(2): a(f"buffer_store_dwordx2 {vr(40+2*i,2)}, v37, s[44:47], 0 offen offset:{i*128}")
        a("s_mov_b64 exec, s[52:53]")
    skeleton(a, R, STG, NST, 5, loader_setup, dma, cons_setup, body, (6, 5), epilogue)
    return a.text(), descriptor(a.name, 120, 0), f"; @launch kernel={a.name} grid=(192,1,1) block=(512,1,1) lds={R*STG + 1024}"


def k3b():
    a = Asm("ln_kernel"); header(a)
    a("s_cmp_ge_u32 s2, 576")
    a(f"s_cbranch_scc1 {a.name}_end")
    a("s_load_dwordx2 s[28:29], s[0:1], 80")
    a("s_lshl_b32 s3, s2, 8")
    a("v_add_u32 v1, s3, v0")
    a("v_lshlrev_b32 v2, 4, v1")
    a("s_mul_i32 s4, s2, 683")
    a("s_lshr_b32 s4, s4, 16")
    a("s_mul_i32 s4, s4, 24576")
    a("v_subrev_u32 v3, s4, v1")
    a("v_mul_u32_u24 v3, 43691, v3")
    a("v_lshrrev_b32 v3, 19, v3")
    a("v_lshlrev_b32 v3, 3, v3")
    a("s_waitcnt lgkmcnt(0)")
    srd_ws(a, 8, 28, WS_H, SZ_SD)
    srd_ws(a, 12, 28, WS_G, SZ_SD)
    srd_ws(a, 16, 28, WS_ST, SZ_ST)
    a("buffer_load_dwordx4 v[4:7], v2, s[8:11], 0 offen")
    for p in range(6):
        a(f"s_mov_b32 s20, {p*16384}")
        a(f"buffer_load_dwordx2 {vr(8+2*p,2)}, v3, s[16:19], s20 offen")
    a(f"s_mov_b32 s41, {f32hex(1.0/576)}")
    a(f"s_mov_b32 s42, {f32hex(1e-5)}")
    a("s_waitcnt vmcnt(0)")
    b = 8
    for c in range(2):
        a(f"v_add_f32 v{b+c}, v{b+c}, v{b+2+c}")
        a(f"v_add_f32 v{b+4+c}, v{b+4+c}, v{b+6+c}")
        a(f"v_add_f32 v{b+8+c}, v{b+8+c}, v{b+10+c}")
        a(f"v_add_f32 v{b+c}, v{b+c}, v{b+4+c}")
        a(f"v_add_f32 v{b+c}, v{b+c}, v{b+8+c}")
    a(f"v_mul_f32 v{b}, s41, v{b}")
    a(f"v_mul_f32 v{b+1}, s41, v{b+1}")
    a(f"v_fma_f32 v{b+1}, -v{b}, v{b}, v{b+1}")
    a(f"v_max_f32 v{b+1}, 0, v{b+1}")
    a(f"v_add_f32 v{b+2}, s42, v{b+1}")
    a(f"v_rcp_f32 v{b+3}, v{b+2}")
    a(f"v_rsq_f32 v{b+4}, v{b+2}")
    a("s_nop 0")
    a(f"v_mul_f32 v{b+3}, v{b+3}, v{b+1}")
    a(f"v_add_f32 v{b+3}, s42, v{b+3}")
    a(f"v_rsq_f32 v{b+3}, v{b+3}")
    a("s_nop 0")
    a(f"v_mul_f32 v{b+6}, v{b+3}, v{b+4}")
    a(f"v_mul_f32 v{b+7}, v{b+6}, v{b}")
    for r in range(4):
        a(f"v_lshlrev_b32 v20, 16, v{4+r}")
        a(f"v_and_b32 v21, 0xffff0000, v{4+r}")
        a(f"v_fma_f32 v20, v20, v14, -v15")
        a(f"v_fma_f32 v21, v21, v14, -v15")
        a(f"v_cvt_pk_bf16_f32 v{4+r}, v20, v21")
    a("buffer_store_dwordx4 v[4:7], v2, s[12:15], 0 offen")
    a.lab(f"{a.name}_end")
    a("s_endpgm")
    return a.text(), descriptor(a.name, 24, 0), f"; @launch kernel={a.name} grid=(576,1,1) block=(256,1,1) lds=0"


def build(kernels):
    hdr = "; generated by gen.py\n"
    texts, descs, launches = [], [], []
    for k in kernels:
        t, d, l = k()
        texts.append(t); descs.append(d); launches.append(l)
    if 'dup3' in FL: launches.append(launches[2])
    if 'dup45' in FL: launches = launches[:4] + [launches[3], launches[4], launches[4], launches[5]]
    out = hdr + "\n".join(launches) + "\n"
    out += '.amdgcn_target "amdgcn-amd-amdhsa--gfx950"\n.text\n'
    out += "\n".join(texts)
    out += '.section .rodata,"a"\n' + "\n".join(descs)
    return out

if __name__ == "__main__":
    ks = [k1, k2, k3, k3b, k4, k5, k6]
    out = build(ks)
    open(sys.argv[1] if len(sys.argv) > 1 else "out.s", "w").write(out)
```

```python
import sys, math, os
FL = os.environ.get('FLAGS', '').split(',')

S, D, F, H, DH = 2048, 576, 4608, 32, 18
WS_Q  = 0x0        ; SZ_Q  = 32*2048*48
WS_KV = 0x300000   ; HB = 159744 ; SZ_KV = 32*HB + 8192
WS_O  = 0x800000   ; SZ_SD = 2048*576*2
WS_H  = 0xA80000
WS_G  = 0xD00000
WS_ST = 0xF80000   ; SZ_ST = 6*2048*8
WS_U  = 0x1000000  ; SZ_U = 576*4608*2
WS_P  = 0x1800000  ; SZ_P = 4*2048*576*4
CHUNK = 39936
LOG2E = 1.4426950408889634
QSCALE = (18 ** -0.5) * LOG2E

import struct
def f32hex(x):
    return "0x%08x" % struct.unpack("<I", struct.pack("<f", x))[0]

class Asm:
    def __init__(s, name):
        s.name = name; s.t = []; s.nl = 0
    def __call__(s, line):
        if s.name in ('mlp1_kernel', 'mlp2_kernel'):
            if 'gnomfma' in FL and line.startswith('v_mfma'): return
            if 'gnords' in FL and line.startswith('ds_read'): return
            if 'gnodma' in FL and line.startswith('buffer_load') and line.endswith('lds'): return
            if 'gnobar' in FL and line.startswith('s_barrier'): return
            if 'gnopk' in FL and (line.startswith('v_pk_fma') or line.startswith('v_cvt_pk_bf16_f32 v3') or line.startswith('v_cvt_pk_bf16_f32 v4') or line.startswith('v_cvt_pk_bf16_f32 v5') or line.startswith('v_cvt_pk_bf16_f32 v6') or line.startswith('v_cvt_pk_bf16_f32 v7') or line.startswith('v_lshlrev_b32 v28') or line.startswith('v_and_b32 v29') or line.startswith('v_cvt_pk_bf16_f32 v8') or line.startswith('v_cvt_pk_bf16_f32 v9') or line.startswith('v_cvt_pk_bf16_f32 v10') or line.startswith('v_cvt_pk_bf16_f32 v11')): return
            if 'gnowr' in FL and line.startswith('ds_write_b128'): return
            if 'gnohl' in FL and line.startswith('buffer_load_dwordx4 v['): return
        if s.name == 'qkv_kernel':
            if 'k1nostore' in FL and line.startswith('buffer_store'): return
            if 'k1nomfma' in FL and line.startswith('v_mfma'): return
            if 'k1nodot' in FL and line.startswith('v_dot2c'): return
            if 'k1notr' in FL and line.startswith('ds_read_b64_tr'): return
            if 'k1noa' in FL and line.startswith('buffer_load_dwordx4 v['): return
            if 'k1nodma' in FL and line.startswith('buffer_load') and line.endswith('lds'): return
            if 'k1nobar' in FL and line.startswith('s_barrier'): return
        s.t.append("    " + line)
    def lab(s, l):
        s.t.append(l + ":")
    def newlabel(s, p="L"):
        s.nl += 1
        return f"{s.name}_{p}{s.nl}"
    def text(s):
        return "\n".join(s.t) + "\n"

def vr(b, n):  return f"v[{b}:{b+n-1}]"
def ar(b, n):  return f"a[{b}:{b+n-1}]"
def sr(b, n):  return f"s[{b}:{b+n-1}]"

def srd_from_arg(a, sreg, argoff, size, tmp):
    a(f"s_mov_b32 s{sreg}, s{tmp}")
    a(f"s_mov_b32 s{sreg+1}, s{tmp+1}")
    a(f"s_mov_b32 s{sreg+2}, {size}")
    a(f"s_mov_b32 s{sreg+3}, 0x00020000")

def srd_ws(a, sreg, wsreg, off, size):
    a(f"s_add_u32 s{sreg}, s{wsreg}, {off}")
    a(f"s_addc_u32 s{sreg+1}, s{wsreg+1}, 0")
    a(f"s_mov_b32 s{sreg+2}, {size}")
    a(f"s_mov_b32 s{sreg+3}, 0x00020000")

def stamp_begin(a, wsreg=28):
    if 'stamp_' + a.name[:4] in FL:
        srd_ws(a, 80, wsreg, 0x3000000, 0x100000)
        a("s_memtime s[84:85]"); a("s_memrealtime s[86:87]")
def stamp_mid(a, k):
    if 'stamp_' + a.name[:4] in FL:
        a(f"s_memtime s[{88+2*k}:{89+2*k}]")
def stamp_end(a, nwaves, wavereg=26):
    if 'stamp_' + a.name[:4] in FL:
        a("s_memtime s[92:93]"); a("s_memrealtime s[94:95]"); a("s_waitcnt lgkmcnt(0)")
        a("s_sub_u32 s88, s88, s84"); a("s_sub_u32 s92, s92, s84"); a("s_sub_u32 s94, s94, s86"); a("s_sub_u32 s90, s90, s84")
        a("v_mov_b32 v16, s88"); a("v_mov_b32 v17, s92"); a("v_mov_b32 v18, s94"); a("v_mov_b32 v19, s90")
        a(f"s_mul_i32 s70, s2, {nwaves}"); a(f"s_add_u32 s70, s70, s{wavereg}"); a("s_lshl_b32 s70, s70, 4")
        a("v_mov_b32 v20, s70")
        a("buffer_store_dwordx4 v[16:19], v20, s[80:83], 0 offen")

def prefetch(a, srd, nlines, nshare, share_sgpr, addr_fn, vt=250, wave_sgpr=26, nwaves=4, dst=255):
    if 'pf' not in FL: return
    per = (nlines + nshare - 1)//nshare
    nt = (per + 64*nwaves - 1)//(64*nwaves)
    a(f"s_lshl_b32 s60, s{wave_sgpr}, 6")
    for t in range(nt):
        a(f"v_add_u32 v{vt}, s60, v1")
        if t: a(f"v_add_u32 v{vt}, {t*nwaves*64}, v{vt}")
        if nshare > 1:
            a(f"v_mul_u32_u24 v{vt}, {nshare}, v{vt}")
            a(f"v_add_u32 v{vt}, s{share_sgpr}, v{vt}")
        addr_fn(vt, vt+1)
        a(f"buffer_load_dword v{dst}, v{vt+1}, s[{srd}:{srd+3}], 0 offen")

def header(a):
    a.t.append(f".globl {a.name}\n.p2align 8\n.type {a.name},@function\n{a.name}:")

def descriptor(name, vgpr, agpr, sgpr=96):
    acc = (vgpr + 3) // 4 * 4
    return f""".p2align 6
.amdhsa_kernel {name}
  .amdhsa_next_free_vgpr {acc + agpr if agpr else vgpr}
  .amdhsa_next_free_sgpr {sgpr}
  .amdhsa_accum_offset {acc}
  .amdhsa_group_segment_fixed_size 0
  .amdhsa_kernarg_size 88
  .amdhsa_user_sgpr_count 2
  .amdhsa_user_sgpr_kernarg_segment_ptr 1
  .amdhsa_system_sgpr_workgroup_id_x 1
.end_amdhsa_kernel
"""

def interleave(main, *fill):
    out = []
    n = len(main)
    pos = [0]*len(fill)
    for idx, m in enumerate(main):
        out.append(m)
        for fi, f in enumerate(fill):
            tgt = (idx+1)*len(f)//n
            while pos[fi] < tgt:
                out.append(f[pos[fi]]); pos[fi] += 1
    return out

def k2():
    a = Asm("attn_kernel"); header(a)
    Q1, Q2 = 8, 12
    KF1 = lambda b: 16 + 8*b
    KF2 = lambda b: 20 + 8*b
    VF = lambda b, t: 32 + 8*b + 4*t
    SS = lambda b: 48 + 16*b
    PP = lambda b: 80 + 8*b
    E = 96; O = 112
    a("s_cmp_ge_u32 s2, 256")
    a(f"s_cbranch_scc1 {a.name}_end")
    a("s_load_dwordx2 s[28:29], s[0:1], 80")
    a("s_load_dwordx2 s[4:5], s[0:1], 32")
    a("s_load_dwordx2 s[6:7], s[0:1], 48")
    a("s_load_dwordx2 s[64:65], s[0:1], 16")
    a("s_and_b32 s24, s2, 7")
    a("s_lshl_b32 s24, s24, 2")
    a("s_lshr_b32 s25, s2, 3")
    a("s_and_b32 s25, s25, 3")
    a("s_add_u32 s24, s24, s25")
    a("s_lshr_b32 s25, s2, 5")
    a("v_and_b32 v1, 63, v0")
    a("v_lshrrev_b32 v2, 5, v1")
    a("v_and_b32 v3, 31, v1")
    a("v_lshrrev_b32 v4, 6, v0")
    a("s_nop 1")
    a("v_readfirstlane_b32 s26, v4")
    a("s_waitcnt lgkmcnt(0)")
    srd_ws(a, 8, 28, WS_Q, SZ_Q)
    srd_ws(a, 12, 28, WS_KV, SZ_KV)
    srd_ws(a, 16, 28, WS_O, SZ_SD)
    srd_from_arg(a, 44, 32, S*F*2, 4)
    srd_from_arg(a, 48, 48, S*F*2, 6)
    srd_from_arg(a, 76, 16, D*D*2, 64)
    if 'stamp' in FL:
        srd_ws(a, 20, 28, 0x3000000, 0x100000)
        a("s_memtime s[72:73]"); a("s_memrealtime s[74:75]")
    lpf = f"{a.name}_nopf"
    NPF = 4
    a("s_cmp_ge_u32 s26, 8")
    a(f"s_cbranch_scc0 {lpf}")
    a("s_and_b32 s52, s2, 7")
    a("s_lshr_b32 s53, s2, 3")
    a("s_mul_i32 s53, s53, 576")
    a("s_sub_u32 s54, s26, 8")
    a(f"s_mul_i32 s54, s54, {576//NPF}")
    a("s_add_u32 s53, s53, s54")
    a("s_lshr_b32 s56, s52, 1")
    a(f"s_mul_i32 s56, s56, {1152*4096}")
    a("s_and_b32 s57, s52, 1")
    a("s_lshl_b32 s57, s57, 11")
    a("s_add_u32 s56, s56, s57")
    a("s_mul_i32 s57, s52, 1152")
    a(f"s_mul_i32 s30, s24, {HB}")
    a("s_sub_u32 s31, s26, 8")
    a("s_lshl_b32 s31, s31, 10")
    a("s_add_u32 s31, s31, 40960")
    a("s_add_u32 s30, s30, s31")
    a("v_lshl_add_u32 v4, v1, 4, s30")
    a("s_barrier")
    for n in range(30):
        a(f"s_add_u32 m0, s31, {n*4096}")
        a(f"s_mov_b32 s32, {n*4096}")
        a(f"buffer_load_dwordx4 v4, s[12:15], s32 offen lds")
    if 'pfearly' not in FL:
        a("s_waitcnt vmcnt(0)")
        a("s_barrier")
    LPI = 48
    a("s_mov_b32 exec_hi, 0xffff")
    if 'noapf' not in FL:
        a("s_lshr_b32 s58, s2, 3")
        a("s_lshl_b32 s58, s58, 2")
        a("s_add_u32 s58, s58, s26")
        a("s_sub_u32 s58, s58, 8")
        a("s_mul_i32 s58, s58, 41")
        a("v_add_u32 v5, s58, v1")
        a("v_lshlrev_b32 v6, 7, v5")
        a("buffer_load_dword v10, v6, s[76:79], 0 offen")
    for n in range((576//NPF)//LPI if 'noapf' not in FL else 0):
        a("v_add_u32 v5, s53, v1")
        if n: a(f"v_add_u32 v5, {LPI*n}, v5")
        a("v_mul_u32_u24 v6, 58255, v5")
        a("v_lshrrev_b32 v6, 19, v6")
        a("v_mul_u32_u24 v7, 9, v6")
        a("v_sub_u32 v7, v5, v7")
        a("v_mul_u32_u24 v6, 9216, v6")
        a("v_lshl_add_u32 v6, v7, 7, v6")
        a("buffer_load_dword v8, v6, s[44:47], s57 offen")
    for n in range((576//NPF)//LPI if 'noapf' not in FL else 0):
        a("v_add_u32 v5, s53, v1")
        if n: a(f"v_add_u32 v5, {LPI*n}, v5")
        a("v_lshrrev_b32 v6, 4, v5")
        a("v_lshlrev_b32 v6, 12, v6")
        a("v_and_b32 v7, 15, v5")
        a("v_lshl_add_u32 v6, v7, 7, v6")
        a("buffer_load_dword v9, v6, s[48:51], s56 offen")
    if 'pfearly' in FL:
        a(f"s_waitcnt vmcnt({7 if 'noapf' not in FL else 0})")
        a("s_barrier")
    a("s_endpgm")
    a.lab(lpf)
    a("s_lshl_b32 s27, s25, 8")
    a("s_lshl_b32 s30, s26, 5")
    a("s_add_u32 s27, s27, s30")
    a("s_lshl_b32 s30, s24, 11")
    a("s_add_u32 s30, s30, s27")
    a("v_add_u32 v128, s30, v3")
    a("v_mul_u32_u24 v128, 48, v128")
    a("v_lshl_add_u32 v129, v2, 4, v128")
    a(f"buffer_load_dwordx4 {vr(Q1,4)}, v129, s[8:11], 0 offen")
    a(f"buffer_load_dword v{Q2}, v128, s[8:11], 0 offen offset:32")
    a(f"s_mul_i32 s30, s24, {HB}")
    a("s_lshl_b32 s31, s26, 10")
    a("s_add_u32 s30, s30, s31")
    a("v_lshl_add_u32 v4, v1, 4, s30")
    for n in range(5):
        a(f"s_add_u32 m0, s31, {n*8192}")
        a(f"s_mov_b32 s32, {n*8192}")
        a(f"buffer_load_dwordx4 v4, s[12:15], s32 offen lds")
    a("v_lshlrev_b32 v5, 4, v1")
    a("v_lshlrev_b32 v6, 3, v3")
    a("v_add_u32 v6, 16384, v6")
    a("v_min_u32 v7, 18, v3")
    a("v_lshlrev_b32 v7, 4, v7")
    a("v_mul_u32_u24 v130, 304, v2")
    a("v_add_u32 v7, v7, v130")
    a("v_add_u32 v7, 20480, v7")
    a("v_mov_b32 v131, v5"); a("v_mov_b32 v132, v6"); a("v_mov_b32 v133, v7")
    for r in list(range(KF2(0)+2, KF2(0)+4)) + list(range(KF2(1)+2, KF2(1)+4)) + list(range(32, 48)) + list(range(80, 96)) + list(range(O, O+16)) + [Q2+1, Q2+2, Q2+3]:
        a(f"v_mov_b32 v{r}, 0")
    a("v_cmp_gt_u32 s[34:35], 32, v1")
    a("s_waitcnt vmcnt(0)")
    a(f"v_cndmask_b32 v{Q2}, 0, v{Q2}, s[34:35]")
    a("s_barrier")
    if 'stamp' in FL: a("s_memtime s[64:65]")
    def kread(t, b):
        off = (t // 16)*CHUNK; tt = t % 16
        return [f"ds_read_b128 {vr(KF1(b),4)}, v5 offset:{off + tt*1024}",
                f"ds_read_b64 {vr(KF2(b),2)}, v6 offset:{off + tt*256}"]
    def vread(t, b):
        return [f"ds_read_b128 {vr(VF(b,0),4)}, v7 offset:{t*1216}",
                f"ds_read_b128 {vr(VF(b,1),4)}, v7 offset:{t*1216 + 608}"]
    def qk(b):
        return [f"v_mfma_f32_32x32x16_bf16 {vr(SS(b),16)}, {vr(KF1(b),4)}, {vr(Q1,4)}, 0",
                f"v_mfma_f32_32x32x16_bf16 {vr(SS(b),16)}, {vr(KF2(b),4)}, {vr(Q2,4)}, {vr(SS(b),16)}"]
    def pv(b):
        return [f"v_mfma_f32_32x32x16_bf16 {vr(O,16)}, {vr(VF(b,0),4)}, {vr(PP(b),4)}, {vr(O,16)}",
                f"v_mfma_f32_32x32x16_bf16 {vr(O,16)}, {vr(VF(b,1),4)}, {vr(PP(b)+4,4)}, {vr(O,16)}"]
    for x in kread(0, 0) + kread(1, 1): a(x)
    a("s_waitcnt lgkmcnt(0)")
    for x in qk(0): a(x)
    a("s_nop 7"); a("s_nop 7")
    a(f"v_max_f32 v134, v{SS(0)}, v{SS(0)+1}")
    for r in range(2, 16): a(f"v_max_f32 v134, v134, v{SS(0)+r}")
    a("v_mov_b32 v135, v134")
    a("s_nop 1")
    a("v_permlane32_swap_b32 v134, v135")
    a("s_nop 1")
    a("v_max_f32 v134, v134, v135")
    a("v_sub_f32 v134, 0, v134")
    a("v_cvt_pk_bf16_f32 v134, v134, 0")
    a("s_nop 0")
    a(f"v_cndmask_b32 v{Q2+1}, 0, v134, s[34:35]")
    a("s_nop 1")
    for x in qk(0): a(x)
    a("s_mov_b32 s33, 0")
    if 'aprio' in FL:
        l = a.newlabel("pr")
        a("s_cmp_ge_u32 s26, 4")
        a(f"s_cbranch_scc0 {l}")
        a("s_setprio 1")
        a.lab(l)
    a("s_nop 7"); a("s_nop 3")
    a.lab(f"{a.name}_loop")
    for t in range(16):
        b = t % 2; nb = 1 - b
        if t == 14:
            l = a.newlabel("nb")
            a("s_cmp_eq_u32 s33, 0")
            a(f"s_cbranch_scc0 {l}")
            a("s_waitcnt vmcnt(0)")
            a("s_barrier")
            a.lab(l)
        a("s_waitcnt lgkmcnt(0)")
        e = [f"v_exp_f32 v{E+r}, v{SS(b)+r}" for r in range(16)]
        c = [f"v_cvt_pk_bf16_f32 v{PP(b)+r}, v{E+2*r}, v{E+2*r+1}" for r in range(8)]
        m1 = qk(nb); m2 = pv(nb)
        kr = kread(t+2, b); vrd = vread(t, b)
        if 'aord2' in FL:
            seq = [m1[0], kr[0]] + e[0:3] + [kr[1]] + e[3:5] + [m1[1], vrd[0]] + e[5:8] + [c[0], vrd[1], c[1]] + e[8:9] + [m2[0]] + e[9:12] + [c[2], c[3]] + e[12:13] + [m2[1]] + e[13:16] + [c[4], c[5], c[6], c[7]]
        elif 'aord3' in FL:
            seq = [kr[0], kr[1], vrd[0], vrd[1], m1[0]] + e[0:5] + [m1[1]] + e[5:8] + [c[0], c[1], c[2], m2[0]] + e[8:13] + [m2[1]] + e[13:16] + [c[3], c[4], c[5], c[6], c[7]]
        else:
            seq = [m1[0], kr[0], kr[1]] + e[0:4] + [vrd[0], m1[1], vrd[1]] + e[4:8] + [c[0], c[1], m2[0]] + e[8:12] + [c[2], c[3], m2[1]] + e[12:16] + [c[4], c[5], c[6], c[7]]
        for x in seq: a(x)
    a(f"v_add_u32 v5, {CHUNK}, v5"); a(f"v_add_u32 v6, {CHUNK}, v6"); a(f"v_add_u32 v7, {CHUNK}, v7")
    a("s_add_u32 s33, s33, 1")
    a("s_cmp_lt_u32 s33, 4")
    a(f"s_cbranch_scc1 {a.name}_loop")
    a("s_waitcnt lgkmcnt(0)")
    for x in pv(1): a(x)
    if 'stamp' in FL:
        a("s_memtime s[66:67]"); a("s_memrealtime s[68:69]"); a("s_waitcnt lgkmcnt(0)")
        a("s_sub_u32 s64, s64, s72"); a("s_sub_u32 s66, s66, s72"); a("s_sub_u32 s68, s68, s74")
        a("v_mov_b32 v140, s64"); a("v_mov_b32 v141, s66"); a("v_mov_b32 v142, s68"); a("v_mov_b32 v143, s72")
        a("s_lshl_b32 s70, s2, 3"); a("s_add_u32 s70, s70, s26"); a("s_lshl_b32 s70, s70, 4")
        a("v_mov_b32 v139, s70")
        a("buffer_store_dwordx4 v[140:143], v139, s[20:23], 0 offen")
    a.lab(f"{a.name}_fin")
    a("s_nop 7"); a("s_nop 7")
    a(f"v_mov_b32 v134, v{O+10}")
    a(f"v_mov_b32 v135, v{O+10}")
    a("s_nop 1")
    a("v_permlane32_swap_b32 v134, v135")
    a(f"s_mov_b32 s36, {f32hex(2.0**40)}")
    a("s_nop 0")
    a("v_cmp_nlt_f32 vcc, v134, s36") if False else a("v_cmp_ngt_f32 vcc, s36, v134")
    a("s_cmp_eq_u32 s33, 99")
    a(f"s_cbranch_scc1 {a.name}_store")
    a(f"s_cbranch_vccnz {a.name}_slow")
    a.lab(f"{a.name}_store")
    a("v_rcp_f32 v134, v134")
    a("s_nop 0")
    for r in range(10): a(f"v_mul_f32 v{O+r}, v{O+r}, v134")
    for r in range(5): a(f"v_cvt_pk_bf16_f32 v{E+r}, v{O+2*r}, v{O+2*r+1}")
    a("v_add_u32 v128, s27, v3")
    a("v_mul_u32_u24 v128, 1152, v128")
    a("v_lshl_add_u32 v128, v2, 3, v128")
    a("s_mul_i32 s30, s24, 36")
    a(f"buffer_store_dwordx2 {vr(E,2)}, v128, s[16:19], s30 offen")
    a(f"buffer_store_dwordx2 {vr(E+2,2)}, v128, s[16:19], s30 offen offset:16")
    a("s_and_saveexec_b64 s[38:39], s[34:35]")
    a(f"buffer_store_dword v{E+4}, v128, s[16:19], s30 offen offset:32")
    a("s_endpgm")
    a.lab(f"{a.name}_slow")
    a("v_mov_b32 v5, v131"); a("v_mov_b32 v6, v132"); a("v_mov_b32 v7, v133")
    a(f"v_mov_b32 v{Q2+1}, 0")
    for r in range(16): a(f"v_mov_b32 v{O+r}, 0")
    a("v_mov_b32 v136, 0xff800000")
    a("s_mov_b32 s33, 0")
    a.lab(f"{a.name}_sl1")
    a("s_mov_b32 s37, 0")
    a.lab(f"{a.name}_sl2")
    for x in kread(0, 0) + vread(0, 0): a(x)
    a("s_waitcnt lgkmcnt(0)")
    for x in qk(0): a(x)
    a("s_nop 7"); a("s_nop 7")
    a(f"v_max_f32 v134, v{SS(0)}, v{SS(0)+1}")
    for r in range(2, 16): a(f"v_max_f32 v134, v134, v{SS(0)+r}")
    a("v_mov_b32 v135, v134")
    a("s_nop 1")
    a("v_permlane32_swap_b32 v134, v135")
    a("s_nop 1")
    a("v_max_f32 v134, v134, v135")
    a("v_max_f32 v134, v134, v136")
    a("v_sub_f32 v135, v136, v134")
    a("v_exp_f32 v135, v135")
    a("v_mov_b32 v136, v134")
    for r in range(16): a(f"v_sub_f32 v{E+r}, v{SS(0)+r}, v134")
    for r in range(16): a(f"v_exp_f32 v{E+r}, v{E+r}")
    for r in range(16): a(f"v_mul_f32 v{O+r}, v{O+r}, v135")
    for r in range(8): a(f"v_cvt_pk_bf16_f32 v{PP(0)+r}, v{E+2*r}, v{E+2*r+1}")
    a("s_nop 1")
    for x in pv(0): a(x)
    a("s_nop 7"); a("s_nop 7")
    a("v_add_u32 v5, 1024, v5"); a("v_add_u32 v6, 256, v6"); a("v_add_u32 v7, 1216, v7")
    a("s_add_u32 s37, s37, 1")
    a("s_cmp_lt_u32 s37, 16")
    a(f"s_cbranch_scc1 {a.name}_sl2")
    a(f"v_add_u32 v5, {CHUNK-16*1024}, v5"); a(f"v_add_u32 v6, {CHUNK-16*256}, v6"); a(f"v_add_u32 v7, {CHUNK-16*1216}, v7")
    a("s_add_u32 s33, s33, 1")
    a("s_cmp_lt_u32 s33, 4")
    a(f"s_cbranch_scc1 {a.name}_sl1")
    a("s_mov_b32 s33, 99")
    a(f"s_branch {a.name}_fin")
    a.lab(f"{a.name}_end")
    a("s_endpgm")
    return a.text(), descriptor(a.name, 144, 0), f"; @launch kernel={a.name} grid=(256,1,1) block=(768,1,1) lds=163840"

def swap23(a, p, t1, t2):
    a(f"v_and_b32 v{t1}, 0x33, v{p}")
    a(f"v_and_b32 v{t2}, 4, v{p}")
    a(f"v_lshlrev_b32 v{t2}, 1, v{t2}")
    a(f"v_or_b32 v{t1}, v{t1}, v{t2}")
    a(f"v_and_b32 v{t2}, 8, v{p}")
    a(f"v_lshrrev_b32 v{t2}, 1, v{t2}")
    a(f"v_or_b32 v{t1}, v{t1}, v{t2}")

def sched_waits(seq):
    issued = []
    out = []
    known = 0
    for it in range(2):
        for item in seq:
            if item[0] == 'r':
                name, rel = item[1]
                issued.append((name, it + rel))
                if it == 1: out.append(item[2])
            elif item[0] == 'm':
                if it == 1:
                    idx = max(i for i, (n, t) in enumerate(issued) if t == it and n in item[1])
                    assert len([1 for (n, t) in issued if t == it and n in item[1]]) == len(item[1]), item
                    if idx + 1 > known:
                        cnt = min(len(issued) - (idx + 1), 15)
                        out.append(f"s_waitcnt lgkmcnt({cnt})")
                        known = idx + 1
                    out.append(item[2])
            else:
                if it == 1: out.append(item[1])
    return out

def skeleton(a, R, STG, NST, NLD, loader_setup, dma, cons_setup, body, nbase, epilogue, custom_loader=None):
    skeleton2(a, R, STG, NST, NLD, loader_setup, dma, cons_setup, [(None, body, epilogue)], nbase, custom_loader)

def skeleton2(a, R, STG, NST, NLD, loader_setup, dma, cons_setup, variants, nbase, custom_loader=None):
    a("s_cmp_ge_u32 s26, 4")
    a(f"s_cbranch_scc0 {a.name}_cons")
    a("s_sub_u32 s26, s26, 4")
    if custom_loader:
        a("s_cmp_ge_u32 s26, 4")
        a(f"s_cbranch_scc0 {a.name}_std")
        a("s_sub_u32 s26, s26, 4")
        custom_loader()
        a("s_endpgm")
        a.lab(f"{a.name}_std")
    std_loader(a, R, STG, NST, NLD, loader_setup, dma)
    cons_part(a, R, STG, NST, cons_setup, variants, nbase)

def std_loader(a, R, STG, NST, NLD, loader_setup, dma):
    loader_setup()
    a("s_mov_b32 s34, 0")
    def dma_adv():
        dma()
        a(f"s_add_u32 s34, s34, {STG}")
        a(f"s_cmp_eq_u32 s34, {R*STG}")
        a("s_cselect_b32 s34, 0, s34")
    for st in range(R-1): dma_adv()
    a(f"s_waitcnt vmcnt({(R-2)*NLD})")
    a("s_barrier")
    a("s_mov_b32 s40, 0")
    a.lab(f"{a.name}_lloop")
    a(f"s_waitcnt vmcnt({(R-3)*NLD})")
    a("s_barrier")
    dma_adv()
    a("s_add_u32 s40, s40, 1")
    a(f"s_cmp_lt_u32 s40, {NST-R+1}")
    a(f"s_cbranch_scc1 {a.name}_lloop")
    for k in range(R-1):
        a(f"s_waitcnt vmcnt({max(R-3-k,0)*NLD})")
        a("s_barrier")
    a("s_endpgm")

def cons_part(a, R, STG, NST, cons_setup, variants, nbase):
    a.lab(f"{a.name}_cons")
    cons_setup()
    nb0, n = nbase
    for r in range(n):
        a(f"v_mov_b32 v{nb0+n+r}, v{nb0+r}")
        a(f"v_mov_b32 v{nb0+2*n+r}, v{nb0+r}")
    a("s_mov_b32 s39, 0")
    a("s_mov_b32 s40, 0")
    a("s_barrier")
    stamp_mid(a, 0)
    for vi, (cmp, body, epilogue) in enumerate(variants):
        if vi: a.lab(f"{a.name}_var{vi}")
        if cmp:
            a(cmp); a(f"s_cbranch_scc1 {a.name}_var{vi+1}")
        seq = body()
        for item in seq:
            if item[0] == 'r' and item[1][1] == 1: a(item[2])
        a.lab(f"{a.name}_loop{vi}")
        a(f"s_add_u32 s39, s39, {STG}")
        a(f"s_cmp_eq_u32 s39, {R*STG}")
        a("s_cselect_b32 s39, 0, s39")
        for r in range(n):
            a(f"v_mov_b32 v{nb0+n+r}, v{nb0+2*n+r}")
            a(f"v_add_u32 v{nb0+2*n+r}, s39, v{nb0+r}")
        for x in sched_waits(seq):
            if x == '@BAR': a("s_barrier")
            elif x.startswith('@LAB '): a.lab(x[5:])
            else: a(x)
        a("s_add_u32 s40, s40, 1")
        a(f"s_cmp_lt_u32 s40, {NST}")
        a(f"s_cbranch_scc1 {a.name}_loop{vi}")
        a("s_waitcnt lgkmcnt(0)")
        stamp_mid(a, 1)
        epilogue()
    a.lab(f"{a.name}_done")
    stamp_end(a, 8)
    a.lab(f"{a.name}_end")
    a("s_endpgm")

def common_entry(a, nwg, args):
    a(f"s_cmp_ge_u32 s2, {nwg}")
    a(f"s_cbranch_scc1 {a.name}_end")
    for reg, off in args: a(f"s_load_dwordx2 s[{reg}:{reg+1}], s[0:1], {off}")
    a("v_and_b32 v1, 63, v0")
    a("v_lshrrev_b32 v2, 4, v1")
    a("v_and_b32 v3, 15, v1")
    a("v_lshrrev_b32 v4, 6, v0")
    a("s_nop 1")
    a("v_readfirstlane_b32 s26, v4")

def k4():
    a = Asm("mlp1_kernel"); header(a)
    R = 5; STG = 28672; NST = 32
    ACC = lambda b: 96 + 16*b
    WF = lambda ks: 24 + ks*4
    GF = lambda ks, b: 40 + (ks*3 + b)*4
    common_entry(a, 216, [(4, 32), (6, 40), (28, 80)])
    a("s_and_b32 s24, s2, 7")
    a("s_mul_i32 s24, s24, 27")
    a("s_lshr_b32 s25, s2, 3")
    a("s_add_u32 s24, s24, s25")
    a("s_mul_i32 s25, s24, 10923")
    a("s_lshr_b32 s25, s25, 16")
    a("s_mul_i32 s30, s25, 6")
    a("s_sub_u32 s24, s24, s30")
    a("s_waitcnt lgkmcnt(0)")
    srd_from_arg(a, 8, 32, S*F*2, 4)
    srd_from_arg(a, 12, 40, F*2, 6)
    srd_ws(a, 16, 28, WS_G, SZ_SD)
    srd_ws(a, 20, 28, WS_U, SZ_U)
    stamp_begin(a)
    def loader_setup():
        a("s_lshl_b32 s30, s26, 4")
        a("v_add_u32 v10, s30, v2")
        a("v_mul_u32_u24 v10, 9216, v10")
        a("v_lshlrev_b32 v11, 2, v2")
        a("v_xor_b32 v11, v11, v3")
        a("v_lshl_add_u32 v10, v11, 4, v10")
        a("s_lshl_b32 s30, s25, 8")
        a("v_add_u32 v5, s30, v10")
        a("s_mul_i32 s30, s26, 3072")
        a(f"s_mul_i32 s31, s24, {2048*192}")
        a("s_add_u32 s30, s30, s31")
        a("v_lshl_add_u32 v6, v1, 4, s30")
        a("s_lshl_b32 s32, s26, 12")
        a("s_mul_i32 s33, s26, 3072")
        a("s_add_u32 s33, s33, 16384")
        a("s_mov_b32 s35, 0"); a("s_mov_b32 s36, 0")
    def dma():
        a("s_add_u32 s37, s34, s32")
        for m in range(4):
            a(f"s_add_u32 m0, s37, {m*1024}")
            a(f"s_add_u32 s38, s35, {m*36864}")
            a("buffer_load_dwordx4 v5, s[8:11], s38 offen lds")
        a("s_add_u32 m0, s34, s33")
        a("s_nop 0")
        for m in range(3):
            a(f"buffer_load_dwordx4 v6, s[16:19], s36 offen offset:{m*1024} lds")
        a(f"s_add_u32 s35, s35, {64*9216}")
        a(f"s_add_u32 s36, s36, {64*192}")
    def cons_setup():
        a("v_lshrrev_b32 v150, 2, v3")
        a("v_and_b32 v151, 3, v3")
        a("v_lshrrev_b32 v152, 1, v2")
        a("v_and_b32 v153, 1, v2")
        a("v_lshl_add_u32 v154, v152, 3, v150")
        a("v_lshrrev_b32 v155, 1, v151")
        a("v_lshl_add_u32 v155, v153, 1, v155")
        a("s_lshl_b32 s30, s26, 2")
        a("v_add_u32 v155, s30, v155")
        a("v_lshlrev_b32 v156, 2, v150")
        a("v_xor_b32 v155, v155, v156")
        a("v_lshlrev_b32 v155, 4, v155")
        a("v_lshl_add_u32 v155, v154, 8, v155")
        a("v_and_b32 v156, 1, v151")
        a("v_lshl_add_u32 v10, v156, 3, v155")
        a("v_mul_u32_u24 v155, 192, v154")
        a("v_lshl_add_u32 v155, v153, 5, v155")
        a("v_lshl_add_u32 v155, v151, 3, v155")
        a("v_add_u32 v11, 16384, v155")
        a("v_lshrrev_b32 v4, 5, v1")
        a("s_lshl_b32 s30, s25, 8")
        a("s_lshl_b32 s31, s26, 6")
        a("s_add_u32 s30, s30, s31")
        a("v_lshl_add_u32 v150, v4, 3, s30")
        for qd in range(4): a(f"buffer_load_dwordx2 {vr(160+2*qd,2)}, v150, s[12:15], 0 offen offset:{16*qd}")
        for r in range(96, 144): a(f"v_mov_b32 v{r}, 0")
    def rd(ks, rel):
        wb, gb = ("v14", "v15") if rel else ("v12", "v13")
        L = []
        for hh in range(2):
            L.append(('r', (f"W{ks}{hh}", rel), f"ds_read_b64_tr_b16 {vr(WF(ks)+2*hh,2)}, {wb} offset:{ks*4096 + hh*1024}"))
        for b in range(3):
            for hh in range(2):
                L.append(('r', (f"G{ks}{b}{hh}", rel), f"ds_read_b64_tr_b16 {vr(GF(ks,b)+2*hh,2)}, {gb} offset:{ks*3072 + hh*768 + 64*b}"))
        return L
    def body():
        seq = []
        for ks in range(4):
            if ks == 2: seq.append(('x', '@BAR'))
            r = rd((ks+2) % 4, 1 if ks >= 2 else 0)
            for b in range(3):
                seq.append(('m', [f"W{ks}0", f"W{ks}1", f"G{ks}{b}0", f"G{ks}{b}1"],
                            f"v_mfma_f32_32x32x16_bf16 {vr(ACC(b),16)}, {vr(WF(ks),4)}, {vr(GF(ks,b),4)}, {vr(ACC(b),16)}"))
                seq += r[3*b:3*b+3]
        return seq
    def epilogue():
        P = 80
        a("s_barrier")
        a(f"s_mul_i32 s47, s26, {96*P}")
        a("v_and_b32 v151, 31, v1")
        a(f"v_mul_u32_u24 v151, {P}, v151")
        a("v_lshl_add_u32 v151, v4, 3, v151")
        a("v_add_u32 v16, s47, v151")
        a("v_lshrrev_b32 v151, 2, v1")
        a("v_and_b32 v152, 3, v1")
        a(f"v_mul_u32_u24 v153, {P}, v151")
        a("v_lshl_add_u32 v153, v152, 4, v153")
        a("v_add_u32 v18, s47, v153")
        a("v_lshlrev_b32 v153, 7, v151")
        a("v_lshl_add_u32 v19, v152, 4, v153")
        a("s_lshr_b32 s31, s26, 1")
        a("s_lshl_b32 s30, s25, 1")
        a("s_add_u32 s31, s31, s30")
        a("s_mul_i32 s31, s31, 73728")
        a("s_and_b32 s30, s26, 1")
        a("s_lshl_b32 s30, s30, 6")
        a("s_add_u32 s31, s31, s30")
        a(f"s_mul_i32 s30, s24, {96*128}")
        a("s_add_u32 s42, s31, s30")
        a("s_add_u32 s43, s42, 4096")
        a("s_add_u32 s44, s42, 8192")
        a("s_waitcnt vmcnt(0)")
        for qd in range(4):
            for p in range(2):
                a(f"v_lshlrev_b32 v{32+4*qd+2*p}, 16, v{160+2*qd+p}")
                a(f"v_and_b32 v{33+4*qd+2*p}, 0xffff0000, v{160+2*qd+p}")
        c0 = -2.0*math.sqrt(2.0/math.pi)*LOG2E
        a(f"s_mov_b32 s41, {f32hex(c0*0.044715)}")
        a(f"v_mov_b32 v17, {f32hex(c0)}")
        for b in range(3):
            for qp in range(2):
                cs = [ACC(b) + 4*(2*qp) + r for r in range(8)]
                bs = [32 + 4*(2*qp) + r for r in range(8)]
                for r in range(8): a(f"v_add_f32 v{cs[r]}, v{cs[r]}, v{bs[r]}")
                for r in range(8): a(f"v_mul_f32 v{150+r}, v{cs[r]}, v{cs[r]}")
                for r in range(8): a(f"v_fma_f32 v{150+r}, v{150+r}, s41, v17")
                for r in range(8): a(f"v_mul_f32 v{150+r}, v{150+r}, v{cs[r]}")
                for r in range(8): a(f"v_exp_f32 v{150+r}, v{150+r}")
                for r in range(8): a(f"v_add_f32 v{150+r}, 1.0, v{150+r}")
                for r in range(8): a(f"v_rcp_f32 v{150+r}, v{150+r}")
                for r in range(8): a(f"v_mul_f32 v{cs[r]}, v{cs[r]}, v{150+r}")
                for q2 in range(2):
                    c = cs[4*q2]
                    a(f"v_cvt_pk_bf16_f32 v{c}, v{c}, v{c+1}")
                    a(f"v_cvt_pk_bf16_f32 v{c+1}, v{c+2}, v{c+3}")
                    a(f"ds_write_b64 v16, {vr(c,2)} offset:{b*32*P + 16*(2*qp+q2)}")
        a("s_waitcnt lgkmcnt(0)")
        for n in range(6): a(f"ds_read_b128 {vr(48+4*n,4)}, v18 offset:{n*16*P}")
        for n in range(6):
            a(f"s_waitcnt lgkmcnt({5-n})")
            a(f"buffer_store_dwordx4 {vr(48+4*n,4)}, v19, s[20:23], s{42 + n//2} offen offset:{(n%2)*2048}")
    skeleton(a, R, STG, NST, 7, loader_setup, dma, cons_setup, body, (10, 2), epilogue)
    return a.text(), descriptor(a.name, 168, 0), f"; @launch kernel={a.name} grid=(216,1,1) block=(512,1,1) lds={R*STG}"

def k5():
    a = Asm("mlp2_kernel"); header(a)
    R = 4; STG = 34816; NST = 18; UB = 18432
    ACC = lambda j, t: 112 + (j*2 + t)*4
    UF = lambda buf, j: 24 + (buf*9 + j)*4
    WF = lambda buf, t: 96 + (buf*2 + t)*4
    common_entry(a, 256, [(4, 48), (28, 80)])
    a("s_and_b32 s24, s2, 7")
    a("s_lshl_b32 s24, s24, 5")
    a("s_lshr_b32 s25, s2, 3")
    a("s_add_u32 s27, s24, s25")
    a("s_and_b32 s24, s27, 3")
    a("s_lshr_b32 s25, s27, 2")
    a("s_and_b32 s25, s25, 15")
    a("s_lshr_b32 s27, s27, 6")
    a("s_waitcnt lgkmcnt(0)")
    srd_from_arg(a, 8, 48, F*S*2, 4)
    srd_ws(a, 16, 28, WS_U, SZ_U)
    srd_ws(a, 20, 28, WS_P, SZ_P)
    stamp_begin(a)
    def loader_setup():
        a("s_lshl_b32 s30, s26, 2")
        a("v_add_u32 v10, s30, v2")
        a("v_and_b32 v10, 7, v10")
        a("v_and_b32 v11, 7, v1")
        a("v_xor_b32 v10, v10, v11")
        a("v_lshrrev_b32 v11, 3, v1")
        a("v_lshlrev_b32 v11, 7, v11")
        a("v_lshl_add_u32 v5, v10, 4, v11")
        a("s_and_b32 s30, s26, 1")
        a("s_add_u32 s45, s30, 16")
        a("s_lshl_b32 s45, s45, 10")
        a("s_lshl_b32 s46, s26, 10")
        a("s_lshl_b32 s30, s26, 4")
        a("v_add_u32 v10, s30, v2")
        a("v_lshlrev_b32 v10, 12, v10")
        a("s_lshl_b32 s30, s25, 8")
        a("v_add_u32 v10, s30, v10")
        a("v_lshlrev_b32 v11, 1, v2")
        a("v_xor_b32 v11, v11, v3")
        a("v_lshl_add_u32 v6, v11, 4, v10")
        a("v_xor_b32 v11, 8, v11")
        a("v_lshl_add_u32 v7, v11, 4, v10")
        a("s_lshl_b32 s32, s26, 12")
        a(f"s_add_u32 s32, s32, {UB}")
        a(f"s_mul_i32 s35, s27, {18*73728}")
        a(f"s_mul_i32 s30, s24, {UB}")
        a("s_add_u32 s35, s35, s30")
        a(f"s_mul_i32 s36, s27, {1152*4096}")
    def dma():
        a("s_add_u32 s37, s34, s46")
        a("s_add_u32 s47, s35, s46")
        for m in range(4):
            a(f"s_add_u32 m0, s37, {m*4096}")
            a(f"s_add_u32 s38, s47, {m*4096}")
            a("buffer_load_dwordx4 v5, s[16:19], s38 offen lds")
        a("s_add_u32 m0, s34, s45")
        a("s_add_u32 s38, s35, s45")
        a("buffer_load_dwordx4 v5, s[16:19], s38 offen lds")
        a("s_add_u32 s37, s34, s32")
        for m in range(4):
            a(f"s_add_u32 m0, s37, {m*1024}")
            a(f"s_add_u32 s38, s36, {m*4*4096}")
            a(f"buffer_load_dwordx4 v{6 + (m>>1)}, s[8:11], s38 offen lds")
        a("s_add_u32 s35, s35, 73728")
        a(f"s_add_u32 s36, s36, {64*4096}")
    def cons_setup():
        a("v_lshrrev_b32 v200, 1, v3")
        a("v_xor_b32 v201, v2, v200")
        a("v_lshlrev_b32 v202, 7, v3")
        a("v_lshl_add_u32 v8, v201, 4, v202")
        a("v_xor_b32 v201, 4, v201")
        a("v_lshl_add_u32 v9, v201, 4, v202")
        a("v_lshrrev_b32 v200, 2, v3")
        a("v_and_b32 v201, 3, v3")
        a("v_lshl_add_u32 v202, v2, 3, v200")
        a("v_and_b32 v203, 1, v2")
        a("v_lshl_add_u32 v203, v203, 2, v200")
        a("v_lshlrev_b32 v203, 1, v203")
        a("v_lshrrev_b32 v204, 1, v201")
        a("s_lshl_b32 s30, s26, 2")
        a("v_add_u32 v204, s30, v204")
        a("v_xor_b32 v205, v204, v203")
        a("v_lshlrev_b32 v205, 4, v205")
        a("v_lshl_add_u32 v205, v202, 8, v205")
        a("v_and_b32 v206, 1, v201")
        a("v_lshl_add_u32 v205, v206, 3, v205")
        a(f"v_add_u32 v10, {UB}, v205")
        a("v_xor_b32 v11, 32, v10")
        for r in range(112, 184): a(f"v_mov_b32 v{r}, 0")
    def rd(ks, rel):
        b = 16 if rel else 12
        L = []
        for t in range(2):
            for hh in range(2):
                L.append(('r', (f"W{ks}{t}{hh}", rel), f"ds_read_b64_tr_b16 {vr(WF(ks,t)+2*hh,2)}, v{b+2+t} offset:{ks*8192 + hh*1024}"))
        for j in range(9):
            L.append(('r', (f"U{ks}{j}", rel), f"ds_read_b128 {vr(UF(ks,j),4)}, v{b+ks} offset:{j*2048}"))
        return L
    def body():
        seq = []
        for ks in range(2):
            if ks == 1: seq.append(('x', '@BAR'))
            r = rd(1-ks, ks)
            k = 0
            for j in range(9):
                for t in range(2):
                    C = vr(ACC(j,t),4)
                    G = 3 if 'nogrp' not in FL else 1
                    needs = [f"U{ks}{jj}" for jj in range(j, min(9, (j//G + 1)*G))] + [f"W{ks}00", f"W{ks}01", f"W{ks}10", f"W{ks}11"]
                    seq.append(('m', needs, f"v_mfma_f32_16x16x32_bf16 {C}, {vr(UF(ks,j),4)}, {vr(WF(ks,t),4)}, {C}"))
                    if k < len(r): seq.append(r[k]); k += 1
        return seq
    def epilogue():
        P = 304
        a("s_barrier")
        a(f"s_mul_i32 s47, s26, {32*P}")
        a(f"v_mul_u32_u24 v200, {P}, v3")
        a("v_lshl_add_u32 v200, v2, 3, v200")
        a("v_add_u32 v200, s47, v200")
        for j in range(9):
            for t in range(2):
                c = ACC(j,t)
                a(f"v_cvt_pk_bf16_f32 v{c}, v{c}, v{c+1}")
                a(f"v_cvt_pk_bf16_f32 v{c+1}, v{c+2}, v{c+3}")
                a(f"ds_write_b64 v200, {vr(c,2)} offset:{t*16*P + 32*j}")
        a("s_lshl_b32 s30, s27, 11")
        a("s_lshl_b32 s31, s25, 7")
        a("s_add_u32 s30, s30, s31")
        a("s_lshl_b32 s31, s26, 5")
        a("s_add_u32 s30, s30, s31")
        a("s_mul_i32 s30, s30, 1152")
        a("s_mul_i32 s31, s24, 288")
        a("s_add_u32 s30, s30, s31")
        for n in range(9):
            a(f"v_add_u32 v201, {64*n}, v1")
            a("v_mul_u32_u24 v202, 3641, v201")
            a("v_lshrrev_b32 v202, 16, v202")
            a("v_mul_u32_u24 v203, 18, v202")
            a("v_sub_u32 v203, v201, v203")
            a("v_lshlrev_b32 v203, 4, v203")
            a(f"v_mad_u32_u24 v{24+n}, v202, s48, v203") if False else None
            a(f"v_mul_u32_u24 v204, {P}, v202")
            a(f"v_add3_u32 v{24+n}, v204, v203, s47")
            a("v_mul_u32_u24 v204, 1152, v202")
            a(f"v_add_u32 v{40+n}, v204, v203")
        a("s_waitcnt lgkmcnt(0)")
        for n in range(9): a(f"ds_read_b128 {vr(56+4*n,4)}, v{24+n}")
        for n in range(9):
            a(f"s_waitcnt lgkmcnt({8-n})")
            a(f"buffer_store_dwordx4 {vr(56+4*n,4)}, v{40+n}, s[20:23], s30 offen")
    skeleton(a, R, STG, NST, 9, loader_setup, dma, cons_setup, body, (8, 4), epilogue)
    return a.text(), descriptor(a.name, 208, 0), f"; @launch kernel={a.name} grid=(256,1,1) block=(512,1,1) lds={R*STG}"

def k6():
    a = Asm("final_kernel"); header(a)
    a("s_cmp_ge_u32 s2, 576")
    a(f"s_cbranch_scc1 {a.name}_end")
    a("s_load_dwordx2 s[4:5], s[0:1], 56")
    a("s_load_dwordx2 s[6:7], s[0:1], 64")
    a("s_load_dwordx2 s[28:29], s[0:1], 80")
    a("s_lshl_b32 s3, s2, 8")
    a("v_add_u32 v1, s3, v0")
    a("v_lshlrev_b32 v2, 4, v1")
    a("s_mov_b32 s30, 0x38e38e4")
    a("v_mul_hi_u32 v4, v1, s30")
    a("v_mul_u32_u24 v12, 72, v4")
    a("v_sub_u32 v12, v1, v12")
    a("v_mul_u32_u24 v13, 43691, v12")
    a("v_lshrrev_b32 v13, 19, v13")
    a("v_mul_u32_u24 v14, 12, v13")
    a("v_sub_u32 v12, v12, v14")
    a("s_mov_b32 s31, 393216")
    a("v_mul_lo_u32 v13, v13, s31")
    a("v_mul_u32_u24 v14, 192, v4")
    a("v_add_u32 v13, v13, v14")
    a("v_lshl_add_u32 v12, v12, 4, v13")
    a("v_lshlrev_b32 v4, 1, v4")
    a("s_waitcnt lgkmcnt(0)")
    srd_from_arg(a, 8, 56, S*2, 4)
    srd_from_arg(a, 12, 64, S*D*2, 6)
    srd_ws(a, 16, 28, WS_H, SZ_SD)
    srd_ws(a, 20, 28, WS_P, SZ_P)
    for p in range(4):
        a(f"s_mov_b32 s{32+p}, {p*S*D*2}")
        a(f"buffer_load_dwordx4 {vr(16+4*p,4)}, v2, s[20:23], s{32+p} offen")
    a("buffer_load_dwordx4 v[32:35], v12, s[16:19], 0 offen")
    a("buffer_load_ushort v5, v4, s[8:11], 0 offen")
    a("v_mov_b32 v10, 0x00003f80"); a("v_mov_b32 v11, 0x3f800000")
    a("s_waitcnt vmcnt(0)")
    for r in range(8): a(f"v_lshlrev_b32 v{40+r}, 16, v5")
    for sreg in (16, 20, 24, 28, 32):
        for r in range(8): a(f"v_dot2c_f32_bf16 v{40+r}, v{sreg + r//2}, v{10 + r%2}")
    a("s_nop 2")
    for r in range(4): a(f"v_cvt_pk_bf16_f32 v{8+r if False else 16+r}, v{40+2*r}, v{41+2*r}")
    a("buffer_store_dwordx4 v[16:19], v2, s[12:15], 0 offen")
    a.lab(f"{a.name}_end")
    a("s_endpgm")
    return a.text(), descriptor(a.name, 48, 0), f"; @launch kernel={a.name} grid=(576,1,1) block=(256,1,1) lds=0"

def k1():
    a = Asm("qkv_kernel"); header(a)
    R = 4; XB = 16384; STG = 34816; NST = 9
    ACC = lambda i, j: 112 + (i*9 + j)*4
    XF = lambda ks, i: 24 + (ks*2 + i)*4
    WF = lambda ks, j: 40 + (ks*9 + j)*4
    CW = lambda j: 184 + 4*j
    S1 = lambda i: 220 + 4*i
    S2 = lambda i: 228 + 4*i
    ONE = 236
    T = 240
    common_entry(a, 192, [(4, 0), (6, 8), (28, 80)])
    a("s_and_b32 s52, s2, 7")
    a("s_lshr_b32 s53, s2, 3")
    a("s_mul_i32 s30, s52, 24")
    a("s_add_u32 s30, s30, s53")
    a("s_mul_i32 s24, s30, 5462")
    a("s_lshr_b32 s24, s24, 16")
    a("s_mul_i32 s25, s24, 12")
    a("s_sub_u32 s25, s30, s25")
    a("s_lshr_b32 s41, s25, 2")
    a("s_waitcnt lgkmcnt(0)")
    srd_from_arg(a, 8, 0, S*D*2, 4)
    srd_from_arg(a, 12, 8, D*3*D*2, 6)
    srd_ws(a, 16, 28, WS_Q, SZ_Q)
    srd_ws(a, 20, 28, WS_KV, SZ_KV)
    stamp_begin(a)
    def loader_setup():
        a("s_lshl_b32 s30, s26, 2")
        a("v_add_u32 v10, s30, v2")
        a("v_and_b32 v10, 7, v10")
        a("v_and_b32 v11, 7, v1")
        a("v_xor_b32 v10, v10, v11")
        a("v_lshrrev_b32 v11, 3, v1")
        a("s_lshl_b32 s30, s24, 7")
        a("s_lshl_b32 s31, s26, 3")
        a("s_add_u32 s30, s30, s31")
        a("v_add_u32 v11, s30, v11")
        a("v_mul_u32_u24 v11, 1152, v11")
        a("v_lshl_add_u32 v5, v10, 4, v11")
        a("s_lshl_b32 s32, s26, 6")
        a("s_and_b32 s33, s26, 1")
        a("s_add_u32 s33, s33, 16")
        a("s_lshl_b32 s30, s33, 6")
        a("s_mul_i32 s31, s25, 288")
        for n in range(5):
            if n < 4:
                a(f"v_add_u32 v20, s32, v1")
                if n: a(f"v_add_u32 v20, {n*256}, v20")
            else:
                a(f"v_add_u32 v20, s30, v1")
            a("v_mul_u32_u24 v21, 3641, v20")
            a("v_lshrrev_b32 v21, 16, v21")
            a("v_mul_u32_u24 v22, 18, v21")
            a("v_sub_u32 v22, v20, v22")
            swap23(a, 21, 23, 24)
            a("v_mul_u32_u24 v23, 3456, v23")
            a("v_lshl_add_u32 v23, v22, 4, v23")
            a(f"v_add_u32 v{6+n}, s31, v23")
        a("s_lshl_b32 s46, s26, 10")
        a("s_lshl_b32 s45, s33, 10")
        a(f"s_add_u32 s45, s45, {XB}")
        a("s_mov_b32 s35, 0"); a("s_mov_b32 s36, 0")
    def dma():
        a("s_add_u32 s37, s34, s46")
        for m in range(4):
            a(f"s_add_u32 m0, s37, {m*4096}")
            a(f"s_add_u32 s38, s35, {m*32*1152}")
            a("buffer_load_dwordx4 v5, s[8:11], s38 offen lds")
        for n in range(5):
            if n < 4: a(f"s_add_u32 m0, s37, {XB + n*4096}")
            else:     a("s_add_u32 m0, s34, s45")
            a("s_nop 0")
            a(f"buffer_load_dwordx4 v{6+n}, s[12:15], s36 offen lds")
        a("s_add_u32 s35, s35, 128")
        a(f"s_add_u32 s36, s36, {64*3456}")
    def cons_setup():
        a("v_lshrrev_b32 v240, 1, v3")
        a("v_xor_b32 v241, v2, v240")
        a("s_lshl_b32 s30, s26, 5")
        a("v_add_u32 v242, s30, v3")
        a("v_lshlrev_b32 v242, 7, v242")
        a("v_lshl_add_u32 v8, v241, 4, v242")
        a("v_xor_b32 v241, 4, v241")
        a("v_lshl_add_u32 v9, v241, 4, v242")
        a("v_lshrrev_b32 v240, 1, v2")
        a("v_and_b32 v241, 1, v2")
        a("v_lshlrev_b32 v240, 4, v240")
        a("v_lshl_add_u32 v240, v241, 2, v240")
        a("v_lshrrev_b32 v241, 2, v3")
        a("v_add_u32 v240, v240, v241")
        a("v_mul_u32_u24 v240, 288, v240")
        a("v_and_b32 v241, 3, v3")
        a("v_lshl_add_u32 v10, v241, 3, v240")
        a(f"v_add_u32 v10, {XB}, v10")
        if 'k1pf' in FL:
            a("s_lshl_b32 s54, s53, 2")
            a("s_add_u32 s54, s54, s26")
            a("v_mul_u32_u24 v240, 96, v1")
            a("v_add_u32 v240, s54, v240")
            for n in range(3):
                if n: a("v_add_u32 v240, 6144, v240")
                a("v_lshlrev_b32 v241, 7, v240")
                a("buffer_load_dword v242, v241, s[12:15], 0 offen")
            a("v_cmp_gt_u32 vcc, 24, v1")
            a("v_mul_u32_u24 v240, 96, v1")
            a("v_add_u32 v240, s54, v240")
            a("v_lshlrev_b32 v241, 7, v240")
            a(f"s_mul_i32 s55, s52, {256*1152}")
            a("s_and_saveexec_b64 s[56:57], vcc")
            a("buffer_load_dword v242, v241, s[8:11], s55 offen")
            a("s_mov_b64 exec, s[56:57]")
        for r in range(112, 236): a(f"v_mov_b32 v{r}, 0")
        for r in range(236, 240): a(f"v_mov_b32 v{r}, 0x3f803f80")
        a("s_mov_b32 s42, 0")
    def mkbody(mode):
        def rd(ks, rel):
            b = 14 if rel else 11
            L = []
            for i in range(2):
                L.append(('r', (f"X{ks}{i}", rel), f"ds_read_b128 {vr(XF(ks,i),4)}, v{b+ks} offset:{i*2048}"))
            for j in range(9):
                for hh in range(2):
                    L.append(('r', (f"W{ks}{j}{hh}", rel), f"ds_read_b64_tr_b16 {vr(WF(ks,j)+2*hh,2)}, v{b+2} offset:{ks*32*288 + hh*8*288 + 32*j}"))
            return L
        def body():
            seq = []
            for ks in range(2):
                if ks == 1: seq.append(('x', '@BAR'))
                r = rd(1-ks, ks)
                ms = []
                for i in range(2):
                    X = vr(XF(ks,i),4)
                    ms.append(('m', [f"X{ks}{i}"], f"v_mfma_f32_16x16x32_bf16 {vr(S1(i),4)}, {vr(ONE,4)}, {X}, {vr(S1(i),4)}"))
                    ms.append(('m', [f"X{ks}{i}"], f"v_mfma_f32_16x16x32_bf16 {vr(S2(i),4)}, {X}, {X}, {vr(S2(i),4)}"))
                for j in range(9):
                    for i in range(2):
                        W = vr(WF(ks,j),4); X = vr(XF(ks,i),4); C = vr(ACC(i,j),4)
                        ops = f"{W}, {X}" if mode == "qk" else f"{X}, {W}"
                        G = 3 if 'nogrp' not in FL else 1
                        needs = [f"X{ks}{i}"] + [f"W{ks}{jj}{hh}" for jj in range(j, min(9, (j//G + 1)*G)) for hh in range(2)]
                        ms.append(('m', needs, f"v_mfma_f32_16x16x32_bf16 {C}, {ops}, {C}"))
                k = 0
                for m in ms:
                    seq.append(m)
                    if k < len(r): seq.append(r[k]); k += 1
                l = a.newlabel("cw")
                seq.append(('x', "s_and_b32 s43, s42, 3"))
                seq.append(('x', "s_add_u32 s42, s42, 1"))
                seq.append(('x', "s_cmp_eq_u32 s43, s26"))
                seq.append(('x', f"s_cbranch_scc0 {l}"))
                for j in range(9):
                    W = vr(WF(ks,j),4); C = vr(CW(j),4)
                    ops = f"{W}, {vr(ONE,4)}" if mode == "qk" else f"{vr(ONE,4)}, {W}"
                    seq.append(('x', f"v_mfma_f32_16x16x32_bf16 {C}, {ops}, {C}"))
                seq.append(('x', f"@LAB {l}"))
            return seq
        return body
    P = 296
    def mkepi(mode):
        def epilogue():
            a("s_nop 7")
            a("s_barrier")
            a("s_mul_i32 s40, s26, 576")
            if mode == "qk":
                a("v_lshlrev_b32 v24, 4, v2")
                a("v_add_u32 v25, s40, v24")
                for j in range(9): a(f"ds_write_b128 v25, {vr(CW(j),4)} offset:{j*64}")
            else:
                a("v_lshlrev_b32 v24, 2, v3")
                a("v_add_u32 v25, s40, v24")
                for j in range(9): a(f"ds_write_b32 v25, v{CW(j)} offset:{j*64}")
            a("v_and_b32 v26, 3, v3")
            a("v_lshrrev_b32 v27, 2, v3")
            a("v_lshl_add_u32 v27, v27, 4, v3")
            a("v_lshlrev_b32 v27, 2, v27")
            for i in range(2):
                a(f"v_cmp_eq_u32 vcc, 1, v26"); a("s_nop 1")
                a(f"v_cndmask_b32 v{28+i}, v{S2(i)}, v{S2(i)+1}, vcc")
                a(f"v_cmp_eq_u32 vcc, 2, v26"); a("s_nop 1")
                a(f"v_cndmask_b32 v{28+i}, v{28+i}, v{S2(i)+2}, vcc")
                a(f"v_cmp_eq_u32 vcc, 3, v26"); a("s_nop 1")
                a(f"v_cndmask_b32 v{28+i}, v{28+i}, v{S2(i)+3}, vcc")
                a(f"ds_bpermute_b32 v{30+i}, v27, v{28+i}")
            a(f"s_mov_b32 s44, {f32hex(1.0/576)}")
            a(f"s_mov_b32 s45, {f32hex(1e-5)}")
            a("s_waitcnt lgkmcnt(0)")
            for i in range(2):
                a(f"v_mul_f32 v{28+i}, s44, v{S1(i)}")
                a(f"v_mul_f32 v{30+i}, s44, v{30+i}")
                a(f"v_fma_f32 v{30+i}, -v{28+i}, v{28+i}, v{30+i}")
                a(f"v_max_f32 v{30+i}, 0, v{30+i}")
                a(f"v_add_f32 v{30+i}, s45, v{30+i}")
                a(f"v_rsq_f32 v{32+i}, v{30+i}")
            a("s_nop 0")
            if mode == "qk":
                a(f"s_mov_b32 s43, {f32hex(QSCALE)}")
                a("s_cmp_eq_u32 s41, 0")
                a("s_cselect_b32 s43, s43, 1.0")
                for i in range(2): a(f"v_mul_f32 v{32+i}, s43, v{32+i}")
            for i in range(2): a(f"v_mul_f32 v{34+i}, v{28+i}, v{32+i}")
            a("s_barrier")
            if 'e1' in FL: stamp_mid(a, 0)
            a("s_and_b32 s44, s25, 3")
            a("s_lshl_b32 s44, s44, 3")
            a("s_lshl_b32 s27, s24, 7")
            a("s_lshl_b32 s30, s26, 5")
            a("s_add_u32 s27, s27, s30")
            a("s_mul_i32 s47, s26, 12288")
            a("s_add_u32 s47, s47, 4096")
            a("s_lshr_b32 s48, s27, 9")
            a(f"s_mul_i32 s48, s48, {CHUNK}")
            a("s_and_b32 s49, s27, 511")
            a(f"s_mul_i32 s50, s44, {HB}")
            a("s_add_u32 s48, s48, s50")
            if mode == "qk":
                for j in range(9):
                    a(f"ds_read_b128 {vr(40+4*j,4)}, v24 offset:{j*64}")
                    a(f"ds_read_b128 {vr(76+4*j,4)}, v24 offset:{576 + j*64}")
                a("s_waitcnt lgkmcnt(0)")
                for k in range(36): a(f"v_add_f32 v{40+k}, v{40+k}, v{76+k}")
                for j in range(9):
                    a(f"ds_read_b128 {vr(76+4*j,4)}, v24 offset:{2*576 + j*64}")
                    a(f"ds_read_b128 {vr(184+4*j,4)}, v24 offset:{3*576 + j*64}")
                a("s_waitcnt lgkmcnt(0)")
                for k in range(36):
                    a(f"v_add_f32 v{76+k}, v{76+k}, v{184+k}")
                    a(f"v_add_f32 v{40+k}, v{40+k}, v{76+k}")
                a(f"v_mul_u32_u24 v36, {P}, v3")
                a("v_lshl_add_u32 v36, v2, 3, v36")
                a("v_add_u32 v36, s47, v36")
                for i in range(2):
                    for j in range(9):
                        c = ACC(i,j)
                        for r in range(4): a(f"v_mul_f32 v{96+r}, v{40+4*j+r}, v{34+i}")
                        for r in range(4): a(f"v_fma_f32 v{96+r}, v{c+r}, v{32+i}, -v{96+r}")
                        a(f"v_cvt_pk_bf16_f32 v{c}, v96, v97")
                        a(f"v_cvt_pk_bf16_f32 v{c+1}, v98, v99")
                        a(f"ds_write_b64 v36, {vr(c,2)} offset:{i*16*P + 32*j}")
                lq = a.newlabel("isq")
                a("s_waitcnt lgkmcnt(0)")
                if 'e2' in FL: stamp_mid(a, 0)
                a("s_cmp_eq_u32 s41, 0")
                a(f"s_cbranch_scc1 {lq}")
                a("v_and_b32 v37, 31, v1")
                a("v_lshrrev_b32 v38, 5, v1")
                a(f"v_mul_u32_u24 v39, {P}, v37")
                a("v_add_u32 v39, s47, v39")
                a("v_lshl_add_u32 v40, v38, 4, v39")
                a("v_lshlrev_b32 v41, 4, v1")
                a("s_lshr_b32 s50, s49, 5")
                a("s_lshl_b32 s50, s50, 10")
                a("s_add_u32 s50, s50, s48")
                for h in range(8):
                    b = 48 + 4*h
                    a(f"ds_read2_b32 {vr(b,2)}, v40 offset0:{9*h} offset1:{9*h+1}")
                    a(f"ds_read2_b32 {vr(b+2,2)}, v40 offset0:{9*h+2} offset1:{9*h+3}")
                a("v_mul_u32_u24 v42, 36, v38")
                a("v_add_u32 v42, v42, v39")
                for p in range(4): a(f"ds_read_b32 v{80+2*p}, v42 offset:{72*p + 32}")
                for p in range(4): a(f"v_mov_b32 v{81+2*p}, 0x00003f80")
                a(f"s_mov_b32 s51, {HB}")
                a("v_mul_lo_u32 v43, v38, s51")
                a("v_lshl_add_u32 v43, v37, 3, v43")
                a("s_lshl_b32 s51, s49, 3")
                a("s_add_u32 s51, s51, s48")
                a("s_add_u32 s51, s51, 16384")
                a("s_waitcnt lgkmcnt(0)")
                for h in range(8):
                    a(f"buffer_store_dwordx4 {vr(48+4*h,4)}, v41, s[20:23], s50 offen")
                    if h < 7: a(f"s_add_u32 s50, s50, {HB}")
                for p in range(4):
                    a(f"buffer_store_dwordx2 {vr(80+2*p,2)}, v43, s[20:23], s51 offen")
                    if p < 3: a(f"s_add_u32 s51, s51, {2*HB}")
                a(f"s_branch {a.name}_done")
                a.lab(lq)
                for n in range(3):
                    a(f"v_add_u32 v37, {64*n}, v1")
                    a("v_cmp_le_u32 vcc, 96, v37"); a("s_nop 1")
                    a("v_cndmask_b32 v38, 0, 1, vcc")
                    a("v_mul_u32_u24 v39, 96, v38")
                    a("v_sub_u32 v37, v37, v39")
                    a("v_mul_u32_u24 v39, 171, v37")
                    a("v_lshrrev_b32 v39, 9, v39")
                    a("v_mul_u32_u24 v40, 3, v39")
                    a("v_sub_u32 v40, v37, v40")
                    a(f"v_mul_u32_u24 v41, {P}, v39")
                    a("v_mul_u32_u24 v42, 36, v38")
                    a("v_add_u32 v41, v41, v42")
                    a("v_lshl_add_u32 v41, v40, 4, v41")
                    a(f"v_add_u32 v{44+n}, s47, v41")
                    a("v_mul_u32_u24 v41, 48, v39")
                    a("v_lshl_add_u32 v41, v40, 4, v41")
                    a("s_mov_b32 s51, 98304")
                    a("v_mul_lo_u32 v42, v38, s51")
                    a(f"v_add_u32 v{100+n}, v41, v42")
                for p in range(4):
                    for n in range(3):
                        b = 48 + (p*3+n)*4
                        a(f"ds_read2_b32 {vr(b,2)}, v{44+n} offset0:{18*p} offset1:{18*p+1}")
                        a(f"ds_read2_b32 {vr(b+2,2)}, v{44+n} offset0:{18*p+2} offset1:{18*p+3}")
                a("s_lshl_b32 s50, s44, 11")
                a("s_add_u32 s50, s50, s27")
                a("s_mul_i32 s50, s50, 48")
                a("s_waitcnt lgkmcnt(0)")
                if 'e3' in FL: stamp_mid(a, 0)
                for p in range(4):
                    for n in range(3):
                        a(f"buffer_store_dwordx4 {vr(48+(p*3+n)*4,4)}, v{100+n}, s[16:19], s50 offen")
                    if p < 3: a(f"s_add_u32 s50, s50, {2*98304}")
                a(f"s_branch {a.name}_done")
            else:
                for j in range(9):
                    for w in range(4): a(f"ds_read_b32 v{184+4*j+w}, v24 offset:{w*576 + j*64}")
                a("s_waitcnt lgkmcnt(0)")
                for j in range(9):
                    b = 184 + 4*j
                    a(f"v_add_f32 v{b}, v{b}, v{b+1}"); a(f"v_add_f32 v{b+2}, v{b+2}, v{b+3}")
                    a(f"v_add_f32 v{40+j}, v{b}, v{b+2}")
                a("s_lshl_b32 s45, s26, 8")
                a("s_add_u32 s45, s45, 2304")
                a("v_lshl_add_u32 v96, v3, 2, s45")
                for i in range(2):
                    a(f"ds_write_b32 v96, v{32+i} offset:{i*64}")
                    a(f"ds_write_b32 v96, v{34+i} offset:{128 + i*64}")
                a("v_lshl_add_u32 v97, v2, 4, s45")
                a("v_lshrrev_b32 v98, 2, v1")
                a("v_mul_u32_u24 v98, 1216, v98")
                a("v_and_b32 v99, 3, v1")
                a("v_mul_u32_u24 v99, 304, v99")
                a("v_add3_u32 v98, v98, v99, s47")
                a("v_cmp_gt_u32 vcc, 32, v1")
                a("s_and_saveexec_b64 s[52:53], vcc")
                a(f"ds_write_b128 v98, {vr(ONE,4)} offset:288")
                a("s_mov_b64 exec, s[52:53]")
                a("s_waitcnt lgkmcnt(0)")
                for i in range(2):
                    a(f"ds_read_b128 {vr(52+8*i,4)}, v97 offset:{i*64}")
                    a(f"ds_read_b128 {vr(56+8*i,4)}, v97 offset:{128+i*64}")
                a("v_and_b32 v98, 1, v2")
                a("v_mul_u32_u24 v98, 304, v98")
                a("v_lshrrev_b32 v99, 1, v2")
                a("v_lshl_add_u32 v98, v99, 3, v98")
                a("v_add_u32 v98, s47, v98")
                a("s_waitcnt lgkmcnt(0)")
                for j in range(9):
                    a(f"v_add_u32 v106, {16*j}, v3")
                    a("v_mul_u32_u24 v107, 3641, v106")
                    a("v_lshrrev_b32 v107, 16, v107")
                    a("v_mul_u32_u24 v108, 18, v107")
                    a("v_sub_u32 v108, v106, v108")
                    a("v_mul_u32_u24 v107, 1216, v107")
                    a("v_lshl_add_u32 v107, v108, 4, v107")
                    a("v_add_u32 v107, v107, v98")
                    for i in range(2):
                        c = ACC(i,j)
                        for r in range(4): a(f"v_mul_f32 v{100+r}, v{40+j}, v{56+8*i+r}")
                        for r in range(4): a(f"v_fma_f32 v{100+r}, v{c+r}, v{52+8*i+r}, -v{100+r}")
                        a(f"v_cvt_pk_bf16_f32 v{c}, v100, v101")
                        a(f"v_cvt_pk_bf16_f32 v{c+1}, v102, v103")
                        a(f"ds_write_b64 v107, {vr(c,2)} offset:{i*608}")
                a("v_lshl_add_u32 v96, v1, 4, s47")
                a("s_waitcnt lgkmcnt(0)")
                for n in range(10): a(f"ds_read_b128 {vr(40+4*n,4)}, v96 offset:{n*1024}")
                a("s_lshr_b32 s50, s49, 4")
                a("s_mul_i32 s50, s50, 608")
                a("s_add_u32 s50, s50, s48")
                a("s_add_u32 s50, s50, 20480")
                a(f"s_mov_b32 s51, {HB-1216}")
                for n in range(10):
                    a(f"v_add_u32 v100, {64*n}, v1")
                    a("v_mul_u32_u24 v101, 863, v100")
                    a("v_lshrrev_b32 v101, 16, v101")
                    a("v_mul_lo_u32 v101, v101, s51")
                    a(f"v_lshl_add_u32 v{84+n}, v100, 4, v101")
                a("s_waitcnt lgkmcnt(0)")
                for n in range(10):
                    if n == 9: a("s_and_saveexec_b64 s[52:53], vcc")
                    a(f"buffer_store_dwordx4 {vr(40+4*n,4)}, v{84+n}, s[20:23], s50 offen")
                a("s_mov_b64 exec, s[52:53]")
        return epilogue
    skeleton2(a, R, STG, NST, 9, loader_setup, dma, cons_setup, [("s_cmp_eq_u32 s41, 2", mkbody("qk"), mkepi("qk")), (None, mkbody("v"), mkepi("v"))], (8, 3))
    return a.text(), descriptor(a.name, 256, 0), f"; @launch kernel={a.name} grid=(192,1,1) block=(512,1,1) lds={R*STG}"


def k3():
    a = Asm("oproj_kernel"); header(a)
    R = 6; OB = 8192; STG = 20480; NST = 9
    ACC = lambda i, j: 72 + (i*3 + j)*4
    OF = lambda ks, i: 24 + (ks*2 + i)*4
    WF = lambda ks, j: 40 + (ks*3 + j)*4
    XR = lambda i, j: 96 + (i*3 + j)*2
    common_entry(a, 192, [(4, 0), (6, 16), (28, 80)])
    a("s_and_b32 s24, s2, 7")
    a("s_mul_i32 s24, s24, 24")
    a("s_lshr_b32 s25, s2, 3")
    a("s_add_u32 s24, s24, s25")
    a("s_mul_i32 s25, s24, 10923")
    a("s_lshr_b32 s25, s25, 16")
    a("s_mul_i32 s30, s25, 6")
    a("s_sub_u32 s24, s24, s30")
    a("s_waitcnt lgkmcnt(0)")
    srd_from_arg(a, 8, 0, S*D*2, 4)
    srd_from_arg(a, 12, 16, D*D*2, 6)
    srd_ws(a, 16, 28, WS_O, SZ_SD)
    srd_ws(a, 20, 28, WS_H, SZ_SD)
    srd_ws(a, 44, 28, WS_ST, SZ_ST)
    stamp_begin(a)
    def loader_setup():
        a("s_lshl_b32 s30, s26, 2")
        a("v_add_u32 v10, s30, v2")
        a("v_and_b32 v10, 7, v10")
        a("v_and_b32 v11, 7, v1")
        a("v_xor_b32 v10, v10, v11")
        a("v_lshrrev_b32 v11, 3, v1")
        a("s_lshl_b32 s30, s25, 6")
        a("s_lshl_b32 s31, s26, 3")
        a("s_add_u32 s30, s30, s31")
        a("v_add_u32 v11, s30, v11")
        a("v_mul_u32_u24 v11, 1152, v11")
        a("v_lshl_add_u32 v5, v10, 4, v11")
        a("s_mul_i32 s30, s26, 192")
        a("s_mul_i32 s31, s24, 192")
        for m in range(3):
            a("v_add_u32 v20, s30, v1")
            if m: a(f"v_add_u32 v20, {64*m}, v20")
            a("v_mul_u32_u24 v21, 43691, v20")
            a("v_lshrrev_b32 v21, 19, v21")
            a("v_mul_u32_u24 v22, 12, v21")
            a("v_sub_u32 v22, v20, v22")
            a("v_lshrrev_b32 v23, 2, v21")
            a("v_and_b32 v23, 2, v23")
            a("v_xor_b32 v22, v22, v23")
            a("v_mul_u32_u24 v21, 1152, v21")
            a("v_lshl_add_u32 v21, v22, 4, v21")
            a(f"v_add_u32 v{6+m}, s31, v21")
        a("s_lshl_b32 s46, s26, 10")
        a("s_mul_i32 s45, s26, 3072")
        a(f"s_add_u32 s45, s45, {OB}")
        a("s_mov_b32 s35, 0"); a("s_mov_b32 s36, 0")
    def dma():
        a("s_add_u32 s37, s34, s46")
        for m in range(2):
            a(f"s_add_u32 m0, s37, {m*4096}")
            a(f"s_add_u32 s38, s35, {m*32*1152}")
            a("buffer_load_dwordx4 v5, s[16:19], s38 offen lds")
        a("s_add_u32 s37, s34, s45")
        for m in range(3):
            a(f"s_add_u32 m0, s37, {m*1024}")
            a("s_nop 0")
            a(f"buffer_load_dwordx4 v{6+m}, s[12:15], s36 offen lds")
        a("s_add_u32 s35, s35, 128")
        a(f"s_add_u32 s36, s36, {64*1152}")
    def cons_setup():
        a("s_lshr_b32 s41, s26, 1")
        a("s_and_b32 s42, s26, 1")
        a("v_lshrrev_b32 v110, 1, v3")
        a("v_xor_b32 v111, v2, v110")
        a("s_lshl_b32 s30, s41, 5")
        a("v_add_u32 v112, s30, v3")
        a("v_lshlrev_b32 v112, 7, v112")
        a("v_lshl_add_u32 v6, v111, 4, v112")
        a("v_xor_b32 v111, 4, v111")
        a("v_lshl_add_u32 v7, v111, 4, v112")
        a("v_lshrrev_b32 v110, 2, v3")
        a("v_and_b32 v111, 3, v3")
        a("v_lshl_add_u32 v112, v2, 3, v110")
        a("v_mul_u32_u24 v112, 192, v112")
        a("v_and_b32 v113, 1, v111")
        a("v_lshl_add_u32 v112, v113, 3, v112")
        a(f"v_add_u32 v112, {OB}, v112")
        a("v_lshrrev_b32 v113, 1, v111")
        a("s_mul_i32 s30, s42, 6")
        a("v_add_u32 v113, s30, v113")
        a("v_and_b32 v114, 1, v2")
        a("v_lshlrev_b32 v114, 1, v114")
        for j in range(3):
            a(f"v_add_u32 v115, {2*j}, v113")
            a("v_xor_b32 v115, v115, v114")
            a(f"v_lshl_add_u32 v{8+j}, v115, 4, v112")
        for r in range(72, 96): a(f"v_mov_b32 v{r}, 0")
        a("s_lshl_b32 s27, s25, 6")
        a("s_lshl_b32 s30, s41, 5")
        a("s_add_u32 s27, s27, s30")
        a("v_add_u32 v110, s27, v3")
        a("v_mul_u32_u24 v111, 1152, v110")
        a("v_lshl_add_u32 v111, v2, 3, v111")
        a("s_mul_i32 s30, s24, 192")
        a("s_mul_i32 s31, s42, 96")
        a("s_add_u32 s30, s30, s31")
        a("v_add_u32 v111, s30, v111")
        a("s_mov_b32 s43, 18432")
        for i in range(2):
            for j in range(3):
                a(f"buffer_load_dwordx2 {vr(XR(i,j),2)}, v111, s[8:11], {'s43' if i else '0'} offen offset:{32*j}")
        a("v_mul_u32_u24 v110, 192, v110")
        a("v_lshl_add_u32 v110, v2, 3, v110")
        a(f"s_mul_i32 s30, s24, {2048*192}")
        a("s_add_u32 s30, s30, s31")
        a("v_add_u32 v108, s30, v110")
    def rd(ks, rel):
        b = 16 if rel else 11
        L = []
        for i in range(2):
            L.append(('r', (f"O{ks}{i}", rel), f"ds_read_b128 {vr(OF(ks,i),4)}, v{b+ks} offset:{i*2048}"))
        for j in range(3):
            for hh in range(2):
                L.append(('r', (f"W{ks}{j}{hh}", rel), f"ds_read_b64_tr_b16 {vr(WF(ks,j)+2*hh,2)}, v{b+2+j} offset:{ks*6144 + hh*768}"))
        return L
    def body():
        seq = []
        for ks in range(2):
            if ks == 1: seq.append(('x', '@BAR'))
            r = rd(1-ks, ks)
            ms = []
            for j in range(3):
                for i in range(2):
                    C = vr(ACC(i,j),4)
                    ms.append(('m', [f"O{ks}{i}", f"W{ks}{j}0", f"W{ks}{j}1"], f"v_mfma_f32_16x16x32_bf16 {C}, {vr(WF(ks,j),4)}, {vr(OF(ks,i),4)}, {C}"))
            k = 0
            for idx, m in enumerate(ms):
                seq.append(m)
                n = 2 if idx < 2 else 1
                seq += r[k:k+n]; k += n
        return seq
    def epilogue():
        a("s_waitcnt vmcnt(0)")
        a("s_nop 7")
        for r in range(24, 28): a(f"v_mov_b32 v{r}, 0")
        for i in range(2):
            for j in range(3):
                c = ACC(i,j); x = XR(i,j)
                a(f"v_lshlrev_b32 v40, 16, v{x}")
                a(f"v_and_b32 v41, 0xffff0000, v{x}")
                a(f"v_lshlrev_b32 v42, 16, v{x+1}")
                a(f"v_and_b32 v43, 0xffff0000, v{x+1}")
                for r in range(4): a(f"v_add_f32 v{40+r}, v{40+r}, v{c+r}")
                a(f"v_cvt_pk_bf16_f32 v{x}, v40, v41")
                a(f"v_cvt_pk_bf16_f32 v{x+1}, v42, v43")
                a(f"buffer_store_dwordx2 {vr(x,2)}, v108, s[20:23], 0 offen offset:{i*3072 + 32*j}")
                a(f"v_lshlrev_b32 v40, 16, v{x}")
                a(f"v_and_b32 v41, 0xffff0000, v{x}")
                a(f"v_lshlrev_b32 v42, 16, v{x+1}")
                a(f"v_and_b32 v43, 0xffff0000, v{x+1}")
                for r in range(4):
                    a(f"v_add_f32 v{24+i}, v{24+i}, v{40+r}")
                    a(f"v_fmac_f32 v{26+i}, v{40+r}, v{40+r}")
        a("v_xor_b32 v30, 16, v1"); a("v_lshlrev_b32 v30, 2, v30")
        a("v_xor_b32 v31, 32, v1"); a("v_lshlrev_b32 v31, 2, v31")
        for addr in ("v30", "v31"):
            for r in range(4): a(f"ds_bpermute_b32 v{32+r}, {addr}, v{24+r}")
            a("s_waitcnt lgkmcnt(0)")
            for r in range(4): a(f"v_add_f32 v{24+r}, v{24+r}, v{32+r}")
        X = R*STG
        a("s_lshl_b32 s30, s26, 8")
        a(f"s_add_u32 s30, s30, {X}")
        a("v_lshl_add_u32 v36, v3, 3, s30")
        for i in range(2):
            a(f"v_mov_b32 v{40+2*i}, v{24+i}"); a(f"v_mov_b32 v{41+2*i}, v{26+i}")
            a(f"ds_write_b64 v36, {vr(40+2*i,2)} offset:{i*128}")
        a("s_waitcnt lgkmcnt(0)")
        a("s_barrier")
        a("s_cmp_eq_u32 s42, 0")
        a(f"s_cbranch_scc0 {a.name}_done")
        for i in range(2): a(f"ds_read_b64 {vr(44+2*i,2)}, v36 offset:{256 + i*128}")
        a("s_lshl_b32 s30, s24, 11")
        a("s_add_u32 s30, s30, s27")
        a("v_add_u32 v37, s30, v3")
        a("v_lshlrev_b32 v37, 3, v37")
        a("v_cmp_gt_u32 vcc, 16, v1")
        a("s_waitcnt lgkmcnt(0)")
        for r in range(4): a(f"v_add_f32 v{40+r}, v{40+r}, v{44+r}")
        a("s_and_saveexec_b64 s[52:53], vcc")
        for i in range(2): a(f"buffer_store_dwordx2 {vr(40+2*i,2)}, v37, s[44:47], 0 offen offset:{i*128}")
        a("s_mov_b64 exec, s[52:53]")
    skeleton(a, R, STG, NST, 5, loader_setup, dma, cons_setup, body, (6, 5), epilogue)
    return a.text(), descriptor(a.name, 120, 0), f"; @launch kernel={a.name} grid=(192,1,1) block=(512,1,1) lds={R*STG + 1024}"


def k3b():
    a = Asm("ln_kernel"); header(a)
    a("s_cmp_ge_u32 s2, 576")
    a(f"s_cbranch_scc1 {a.name}_end")
    a("s_load_dwordx2 s[28:29], s[0:1], 80")
    a("s_lshl_b32 s3, s2, 8")
    a("v_add_u32 v1, s3, v0")
    a("v_lshlrev_b32 v2, 4, v1")
    a("s_mul_i32 s4, s2, 683")
    a("s_lshr_b32 s4, s4, 16")
    a("s_mul_i32 s4, s4, 24576")
    a("v_subrev_u32 v3, s4, v1")
    a("v_mul_u32_u24 v3, 43691, v3")
    a("v_lshrrev_b32 v3, 19, v3")
    a("v_lshlrev_b32 v3, 3, v3")
    a("s_waitcnt lgkmcnt(0)")
    srd_ws(a, 8, 28, WS_H, SZ_SD)
    srd_ws(a, 12, 28, WS_G, SZ_SD)
    srd_ws(a, 16, 28, WS_ST, SZ_ST)
    a("buffer_load_dwordx4 v[4:7], v2, s[8:11], 0 offen")
    for p in range(6):
        a(f"s_mov_b32 s20, {p*16384}")
        a(f"buffer_load_dwordx2 {vr(8+2*p,2)}, v3, s[16:19], s20 offen")
    a(f"s_mov_b32 s41, {f32hex(1.0/576)}")
    a(f"s_mov_b32 s42, {f32hex(1e-5)}")
    a("s_waitcnt vmcnt(0)")
    b = 8
    for c in range(2):
        a(f"v_add_f32 v{b+c}, v{b+c}, v{b+2+c}")
        a(f"v_add_f32 v{b+4+c}, v{b+4+c}, v{b+6+c}")
        a(f"v_add_f32 v{b+8+c}, v{b+8+c}, v{b+10+c}")
        a(f"v_add_f32 v{b+c}, v{b+c}, v{b+4+c}")
        a(f"v_add_f32 v{b+c}, v{b+c}, v{b+8+c}")
    a(f"v_mul_f32 v{b}, s41, v{b}")
    a(f"v_mul_f32 v{b+1}, s41, v{b+1}")
    a(f"v_fma_f32 v{b+1}, -v{b}, v{b}, v{b+1}")
    a(f"v_max_f32 v{b+1}, 0, v{b+1}")
    a(f"v_add_f32 v{b+2}, s42, v{b+1}")
    a(f"v_rcp_f32 v{b+3}, v{b+2}")
    a(f"v_rsq_f32 v{b+4}, v{b+2}")
    a("s_nop 0")
    a(f"v_mul_f32 v{b+3}, v{b+3}, v{b+1}")
    a(f"v_add_f32 v{b+3}, s42, v{b+3}")
    a(f"v_rsq_f32 v{b+3}, v{b+3}")
    a("s_nop 0")
    a(f"v_mul_f32 v{b+6}, v{b+3}, v{b+4}")
    a(f"v_mul_f32 v{b+7}, v{b+6}, v{b}")
    for r in range(4):
        a(f"v_lshlrev_b32 v20, 16, v{4+r}")
        a(f"v_and_b32 v21, 0xffff0000, v{4+r}")
        a(f"v_fma_f32 v20, v20, v14, -v15")
        a(f"v_fma_f32 v21, v21, v14, -v15")
        a(f"v_cvt_pk_bf16_f32 v{4+r}, v20, v21")
    a("buffer_store_dwordx4 v[4:7], v2, s[12:15], 0 offen")
    a.lab(f"{a.name}_end")
    a("s_endpgm")
    return a.text(), descriptor(a.name, 24, 0), f"; @launch kernel={a.name} grid=(576,1,1) block=(256,1,1) lds=0"


def build(kernels):
    hdr = "; generated by gen.py\n"
    texts, descs, launches = [], [], []
    for k in kernels:
        t, d, l = k()
        texts.append(t); descs.append(d); launches.append(l)
    if 'dup3' in FL: launches.append(launches[2])
    if 'dup45' in FL: launches = launches[:4] + [launches[3], launches[4], launches[4], launches[5]]
    out = hdr + "\n".join(launches) + "\n"
    out += '.amdgcn_target "amdgcn-amd-amdhsa--gfx950"\n.text\n'
    out += "\n".join(texts)
    out += '.section .rodata,"a"\n' + "\n".join(descs)
    return out

if __name__ == "__main__":
    ks = [k1, k2, k3, k3b, k4, k5, k6]
    out = build(ks)
    open(sys.argv[1] if len(sys.argv) > 1 else "out.s", "w").write(out)
```

```python
import sys, math, os
FL = os.environ.get('FLAGS', '').split(',')

S, D, F, H, DH = 2048, 576, 4608, 32, 18
WS_Q  = 0x0        ; SZ_Q  = 32*2048*48
WS_KV = 0x300000   ; HB = 159744 ; SZ_KV = 32*HB + 8192
WS_O  = 0x800000   ; SZ_SD = 2048*576*2
WS_H  = 0xA80000
WS_G  = 0xD00000
WS_ST = 0xF80000   ; SZ_ST = 6*2048*8
WS_U  = 0x1000000  ; SZ_U = 576*4608*2
WS_P  = 0x1800000  ; SZ_P = 4*2048*576*4
CHUNK = 39936
LOG2E = 1.4426950408889634
QSCALE = (18 ** -0.5) * LOG2E

import struct
def f32hex(x):
    return "0x%08x" % struct.unpack("<I", struct.pack("<f", x))[0]

class Asm:
    def __init__(s, name):
        s.name = name; s.t = []; s.nl = 0
    def __call__(s, line):
        if s.name in ('mlp1_kernel', 'mlp2_kernel'):
            if 'gnomfma' in FL and line.startswith('v_mfma'): return
            if 'gnords' in FL and line.startswith('ds_read'): return
            if 'gnodma' in FL and line.startswith('buffer_load') and line.endswith('lds'): return
            if 'gnobar' in FL and line.startswith('s_barrier'): return
            if 'gnopk' in FL and (line.startswith('v_pk_fma') or line.startswith('v_cvt_pk_bf16_f32 v3') or line.startswith('v_cvt_pk_bf16_f32 v4') or line.startswith('v_cvt_pk_bf16_f32 v5') or line.startswith('v_cvt_pk_bf16_f32 v6') or line.startswith('v_cvt_pk_bf16_f32 v7') or line.startswith('v_lshlrev_b32 v28') or line.startswith('v_and_b32 v29') or line.startswith('v_cvt_pk_bf16_f32 v8') or line.startswith('v_cvt_pk_bf16_f32 v9') or line.startswith('v_cvt_pk_bf16_f32 v10') or line.startswith('v_cvt_pk_bf16_f32 v11')): return
            if 'gnowr' in FL and line.startswith('ds_write_b128'): return
            if 'gnohl' in FL and line.startswith('buffer_load_dwordx4 v['): return
        if s.name == 'qkv_kernel':
            if 'k1nostore' in FL and line.startswith('buffer_store'): return
            if 'k1nomfma' in FL and line.startswith('v_mfma'): return
            if 'k1nodot' in FL and line.startswith('v_dot2c'): return
            if 'k1notr' in FL and line.startswith('ds_read_b64_tr'): return
            if 'k1noa' in FL and line.startswith('buffer_load_dwordx4 v['): return
            if 'k1nodma' in FL and line.startswith('buffer_load') and line.endswith('lds'): return
            if 'k1nobar' in FL and line.startswith('s_barrier'): return
        s.t.append("    " + line)
    def lab(s, l):
        s.t.append(l + ":")
    def newlabel(s, p="L"):
        s.nl += 1
        return f"{s.name}_{p}{s.nl}"
    def text(s):
        return "\n".join(s.t) + "\n"

def vr(b, n):  return f"v[{b}:{b+n-1}]"
def ar(b, n):  return f"a[{b}:{b+n-1}]"
def sr(b, n):  return f"s[{b}:{b+n-1}]"

def srd_from_arg(a, sreg, argoff, size, tmp):
    a(f"s_mov_b32 s{sreg}, s{tmp}")
    a(f"s_mov_b32 s{sreg+1}, s{tmp+1}")
    a(f"s_mov_b32 s{sreg+2}, {size}")
    a(f"s_mov_b32 s{sreg+3}, 0x00020000")

def srd_ws(a, sreg, wsreg, off, size):
    a(f"s_add_u32 s{sreg}, s{wsreg}, {off}")
    a(f"s_addc_u32 s{sreg+1}, s{wsreg+1}, 0")
    a(f"s_mov_b32 s{sreg+2}, {size}")
    a(f"s_mov_b32 s{sreg+3}, 0x00020000")

def stamp_begin(a, wsreg=28):
    if 'stamp_' + a.name[:4] in FL:
        srd_ws(a, 80, wsreg, 0x3000000, 0x100000)
        a("s_memtime s[84:85]"); a("s_memrealtime s[86:87]")
def stamp_mid(a, k):
    if 'stamp_' + a.name[:4] in FL:
        a(f"s_memtime s[{88+2*k}:{89+2*k}]")
def stamp_end(a, nwaves, wavereg=26):
    if 'stamp_' + a.name[:4] in FL:
        a("s_memtime s[92:93]"); a("s_memrealtime s[94:95]"); a("s_waitcnt lgkmcnt(0)")
        a("s_sub_u32 s88, s88, s84"); a("s_sub_u32 s92, s92, s84"); a("s_sub_u32 s94, s94, s86"); a("s_sub_u32 s90, s90, s84")
        a("v_mov_b32 v16, s88"); a("v_mov_b32 v17, s92"); a("v_mov_b32 v18, s94"); a("v_mov_b32 v19, s90")
        a(f"s_mul_i32 s70, s2, {nwaves}"); a(f"s_add_u32 s70, s70, s{wavereg}"); a("s_lshl_b32 s70, s70, 4")
        a("v_mov_b32 v20, s70")
        a("buffer_store_dwordx4 v[16:19], v20, s[80:83], 0 offen")

def prefetch(a, srd, nlines, nshare, share_sgpr, addr_fn, vt=250, wave_sgpr=26, nwaves=4, dst=255):
    if 'pf' not in FL: return
    per = (nlines + nshare - 1)//nshare
    nt = (per + 64*nwaves - 1)//(64*nwaves)
    a(f"s_lshl_b32 s60, s{wave_sgpr}, 6")
    for t in range(nt):
        a(f"v_add_u32 v{vt}, s60, v1")
        if t: a(f"v_add_u32 v{vt}, {t*nwaves*64}, v{vt}")
        if nshare > 1:
            a(f"v_mul_u32_u24 v{vt}, {nshare}, v{vt}")
            a(f"v_add_u32 v{vt}, s{share_sgpr}, v{vt}")
        addr_fn(vt, vt+1)
        a(f"buffer_load_dword v{dst}, v{vt+1}, s[{srd}:{srd+3}], 0 offen")

def header(a):
    a.t.append(f".globl {a.name}\n.p2align 8\n.type {a.name},@function\n{a.name}:")

def descriptor(name, vgpr, agpr, sgpr=96):
    acc = (vgpr + 3) // 4 * 4
    return f""".p2align 6
.amdhsa_kernel {name}
  .amdhsa_next_free_vgpr {acc + agpr if agpr else vgpr}
  .amdhsa_next_free_sgpr {sgpr}
  .amdhsa_accum_offset {acc}
  .amdhsa_group_segment_fixed_size 0
  .amdhsa_kernarg_size 88
  .amdhsa_user_sgpr_count 2
  .amdhsa_user_sgpr_kernarg_segment_ptr 1
  .amdhsa_system_sgpr_workgroup_id_x 1
.end_amdhsa_kernel
"""

def interleave(main, *fill):
    out = []
    n = len(main)
    pos = [0]*len(fill)
    for idx, m in enumerate(main):
        out.append(m)
        for fi, f in enumerate(fill):
            tgt = (idx+1)*len(f)//n
            while pos[fi] < tgt:
                out.append(f[pos[fi]]); pos[fi] += 1
    return out

def k2():
    a = Asm("attn_kernel"); header(a)
    Q1, Q2 = 8, 12
    KF1 = lambda b: 16 + 8*b
    KF2 = lambda b: 20 + 8*b
    VF = lambda b, t: 32 + 8*b + 4*t
    SS = lambda b: 48 + 16*b
    PP = lambda b: 80 + 8*b
    E = 96; O = 112
    a("s_cmp_ge_u32 s2, 256")
    a(f"s_cbranch_scc1 {a.name}_end")
    a("s_load_dwordx2 s[28:29], s[0:1], 80")
    a("s_load_dwordx2 s[4:5], s[0:1], 32")
    a("s_load_dwordx2 s[6:7], s[0:1], 48")
    a("s_load_dwordx2 s[64:65], s[0:1], 16")
    a("s_and_b32 s24, s2, 7")
    a("s_lshl_b32 s24, s24, 2")
    a("s_lshr_b32 s25, s2, 3")
    a("s_and_b32 s25, s25, 3")
    a("s_add_u32 s24, s24, s25")
    a("s_lshr_b32 s25, s2, 5")
    a("v_and_b32 v1, 63, v0")
    a("v_lshrrev_b32 v2, 5, v1")
    a("v_and_b32 v3, 31, v1")
    a("v_lshrrev_b32 v4, 6, v0")
    a("s_nop 1")
    a("v_readfirstlane_b32 s26, v4")
    a("s_waitcnt lgkmcnt(0)")
    srd_ws(a, 8, 28, WS_Q, SZ_Q)
    srd_ws(a, 12, 28, WS_KV, SZ_KV)
    srd_ws(a, 16, 28, WS_O, SZ_SD)
    srd_from_arg(a, 44, 32, S*F*2, 4)
    srd_from_arg(a, 48, 48, S*F*2, 6)
    srd_from_arg(a, 76, 16, D*D*2, 64)
    if 'stamp' in FL:
        srd_ws(a, 20, 28, 0x3000000, 0x100000)
        a("s_memtime s[72:73]"); a("s_memrealtime s[74:75]")
    lpf = f"{a.name}_nopf"
    NPF = 4
    a("s_cmp_ge_u32 s26, 8")
    a(f"s_cbranch_scc0 {lpf}")
    a("s_and_b32 s52, s2, 7")
    a("s_lshr_b32 s53, s2, 3")
    a("s_mul_i32 s53, s53, 576")
    a("s_sub_u32 s54, s26, 8")
    a(f"s_mul_i32 s54, s54, {576//NPF}")
    a("s_add_u32 s53, s53, s54")
    a("s_lshr_b32 s56, s52, 1")
    a(f"s_mul_i32 s56, s56, {1152*4096}")
    a("s_and_b32 s57, s52, 1")
    a("s_lshl_b32 s57, s57, 11")
    a("s_add_u32 s56, s56, s57")
    a("s_mul_i32 s57, s52, 1152")
    a(f"s_mul_i32 s30, s24, {HB}")
    a("s_sub_u32 s31, s26, 8")
    a("s_lshl_b32 s31, s31, 10")
    a("s_add_u32 s31, s31, 40960")
    a("s_add_u32 s30, s30, s31")
    a("v_lshl_add_u32 v4, v1, 4, s30")
    a("s_barrier")
    for n in range(30):
        a(f"s_add_u32 m0, s31, {n*4096}")
        a(f"s_mov_b32 s32, {n*4096}")
        a(f"buffer_load_dwordx4 v4, s[12:15], s32 offen lds")
    if 'pfearly' not in FL:
        a("s_waitcnt vmcnt(0)")
        a("s_barrier")
    LPI = 48
    a("s_mov_b32 exec_hi, 0xffff")
    if 'noapf' not in FL:
        a("s_lshr_b32 s58, s2, 3")
        a("s_lshl_b32 s58, s58, 2")
        a("s_add_u32 s58, s58, s26")
        a("s_sub_u32 s58, s58, 8")
        a("s_mul_i32 s58, s58, 41")
        a("v_add_u32 v5, s58, v1")
        a("v_lshlrev_b32 v6, 7, v5")
        a("buffer_load_dword v10, v6, s[76:79], 0 offen")
    a("s_lshr_b32 s58, s2, 3")
    a("s_lshl_b32 s58, s58, 2")
    a("s_add_u32 s58, s58, s26")
    a("s_sub_u32 s58, s58, 8")
    xp = 'noxpf' not in FL
    a(f"s_mul_i32 s59, s58, {96 if xp else 144}")
    if xp: a("s_add_u32 s59, s59, 6144")
    for n in range((2 if xp else 3) if 'noapf' not in FL else 0):
        a("v_add_u32 v20, s59, v1")
        if n: a(f"v_add_u32 v20, {48*n}, v20")
        a("v_mul_u32_u24 v21, 58255, v20")
        a("v_lshrrev_b32 v21, 19, v21")
        a("v_mul_u32_u24 v22, 9, v21")
        a("v_sub_u32 v22, v20, v22")
        a("v_mul_u32_u24 v21, 9216, v21")
        a("v_lshl_add_u32 v21, v22, 7, v21")
        a("buffer_load_dword v23, v21, s[44:47], s57 offen")
    a(f"s_mul_i32 s59, s58, {108 if xp else 144}")
    for n in range(3 if 'noapf' not in FL else 0):
        a("v_add_u32 v5, s59, v1")
        if n: a(f"v_add_u32 v5, {(36 if xp else 48)*n}, v5")
        a("v_lshrrev_b32 v6, 4, v5")
        a("v_lshlrev_b32 v6, 12, v6")
        a("v_and_b32 v7, 15, v5")
        a("v_lshl_add_u32 v6, v7, 7, v6")
        a("buffer_load_dword v9, v6, s[48:51], s56 offen")
    if 'pfearly' in FL:
        a(f"s_waitcnt vmcnt({7 if 'noapf' not in FL else 0})")
        a("s_barrier")
    a("s_endpgm")
    a.lab(lpf)
    a("s_lshl_b32 s27, s25, 8")
    a("s_lshl_b32 s30, s26, 5")
    a("s_add_u32 s27, s27, s30")
    a("s_lshl_b32 s30, s24, 11")
    a("s_add_u32 s30, s30, s27")
    a("v_add_u32 v128, s30, v3")
    a("v_mul_u32_u24 v128, 48, v128")
    a("v_lshl_add_u32 v129, v2, 4, v128")
    a(f"buffer_load_dwordx4 {vr(Q1,4)}, v129, s[8:11], 0 offen")
    a(f"buffer_load_dword v{Q2}, v128, s[8:11], 0 offen offset:32")
    a(f"s_mul_i32 s30, s24, {HB}")
    a("s_lshl_b32 s31, s26, 10")
    a("s_add_u32 s30, s30, s31")
    a("v_lshl_add_u32 v4, v1, 4, s30")
    for n in range(5):
        a(f"s_add_u32 m0, s31, {n*8192}")
        a(f"s_mov_b32 s32, {n*8192}")
        a(f"buffer_load_dwordx4 v4, s[12:15], s32 offen lds")
    a("v_lshlrev_b32 v5, 4, v1")
    a("v_lshlrev_b32 v6, 3, v3")
    a("v_add_u32 v6, 16384, v6")
    a("v_min_u32 v7, 18, v3")
    a("v_lshlrev_b32 v7, 4, v7")
    a("v_mul_u32_u24 v130, 304, v2")
    a("v_add_u32 v7, v7, v130")
    a("v_add_u32 v7, 20480, v7")
    a("v_mov_b32 v131, v5"); a("v_mov_b32 v132, v6"); a("v_mov_b32 v133, v7")
    for r in list(range(KF2(0)+2, KF2(0)+4)) + list(range(KF2(1)+2, KF2(1)+4)) + list(range(32, 48)) + list(range(80, 96)) + list(range(O, O+16)) + [Q2+1, Q2+2, Q2+3]:
        a(f"v_mov_b32 v{r}, 0")
    a("v_cmp_gt_u32 s[34:35], 32, v1")
    a("s_waitcnt vmcnt(0)")
    a(f"v_cndmask_b32 v{Q2}, 0, v{Q2}, s[34:35]")
    a("s_barrier")
    if 'stamp' in FL: a("s_memtime s[64:65]")
    def kread(t, b):
        off = (t // 16)*CHUNK; tt = t % 16
        return [f"ds_read_b128 {vr(KF1(b),4)}, v5 offset:{off + tt*1024}",
                f"ds_read_b64 {vr(KF2(b),2)}, v6 offset:{off + tt*256}"]
    def vread(t, b):
        return [f"ds_read_b128 {vr(VF(b,0),4)}, v7 offset:{t*1216}",
                f"ds_read_b128 {vr(VF(b,1),4)}, v7 offset:{t*1216 + 608}"]
    def qk(b):
        return [f"v_mfma_f32_32x32x16_bf16 {vr(SS(b),16)}, {vr(KF1(b),4)}, {vr(Q1,4)}, 0",
                f"v_mfma_f32_32x32x16_bf16 {vr(SS(b),16)}, {vr(KF2(b),4)}, {vr(Q2,4)}, {vr(SS(b),16)}"]
    def pv(b):
        return [f"v_mfma_f32_32x32x16_bf16 {vr(O,16)}, {vr(VF(b,0),4)}, {vr(PP(b),4)}, {vr(O,16)}",
                f"v_mfma_f32_32x32x16_bf16 {vr(O,16)}, {vr(VF(b,1),4)}, {vr(PP(b)+4,4)}, {vr(O,16)}"]
    for x in kread(0, 0) + kread(1, 1): a(x)
    a("s_waitcnt lgkmcnt(0)")
    for x in qk(0): a(x)
    a("s_nop 7"); a("s_nop 7")
    a(f"v_max_f32 v134, v{SS(0)}, v{SS(0)+1}")
    for r in range(2, 16): a(f"v_max_f32 v134, v134, v{SS(0)+r}")
    a("v_mov_b32 v135, v134")
    a("s_nop 1")
    a("v_permlane32_swap_b32 v134, v135")
    a("s_nop 1")
    a("v_max_f32 v134, v134, v135")
    a("v_sub_f32 v134, 0, v134")
    a("v_cvt_pk_bf16_f32 v134, v134, 0")
    a("s_nop 0")
    a(f"v_cndmask_b32 v{Q2+1}, 0, v134, s[34:35]")
    a("s_nop 1")
    for x in qk(0): a(x)
    a("s_mov_b32 s33, 0")
    if 'aprio' in FL:
        l = a.newlabel("pr")
        a("s_cmp_ge_u32 s26, 4")
        a(f"s_cbranch_scc0 {l}")
        a("s_setprio 1")
        a.lab(l)
    a("s_nop 7"); a("s_nop 3")
    a.lab(f"{a.name}_loop")
    for t in range(16):
        b = t % 2; nb = 1 - b
        if t == 14:
            l = a.newlabel("nb")
            a("s_cmp_eq_u32 s33, 0")
            a(f"s_cbranch_scc0 {l}")
            a("s_waitcnt vmcnt(0)")
            a("s_barrier")
            a.lab(l)
        a("s_waitcnt lgkmcnt(0)")
        e = [f"v_exp_f32 v{E+r}, v{SS(b)+r}" for r in range(16)]
        c = [f"v_cvt_pk_bf16_f32 v{PP(b)+r}, v{E+2*r}, v{E+2*r+1}" for r in range(8)]
        m1 = qk(nb); m2 = pv(nb)
        kr = kread(t+2, b); vrd = vread(t, b)
        if 'aord2' in FL:
            seq = [m1[0], kr[0]] + e[0:3] + [kr[1]] + e[3:5] + [m1[1], vrd[0]] + e[5:8] + [c[0], vrd[1], c[1]] + e[8:9] + [m2[0]] + e[9:12] + [c[2], c[3]] + e[12:13] + [m2[1]] + e[13:16] + [c[4], c[5], c[6], c[7]]
        elif 'aord3' in FL:
            seq = [kr[0], kr[1], vrd[0], vrd[1], m1[0]] + e[0:5] + [m1[1]] + e[5:8] + [c[0], c[1], c[2], m2[0]] + e[8:13] + [m2[1]] + e[13:16] + [c[3], c[4], c[5], c[6], c[7]]
        else:
            seq = [m1[0], kr[0], kr[1]] + e[0:4] + [vrd[0], m1[1], vrd[1]] + e[4:8] + [c[0], c[1], m2[0]] + e[8:12] + [c[2], c[3], m2[1]] + e[12:16] + [c[4], c[5], c[6], c[7]]
        for x in seq: a(x)
    a(f"v_add_u32 v5, {CHUNK}, v5"); a(f"v_add_u32 v6, {CHUNK}, v6"); a(f"v_add_u32 v7, {CHUNK}, v7")
    a("s_add_u32 s33, s33, 1")
    a("s_cmp_lt_u32 s33, 4")
    a(f"s_cbranch_scc1 {a.name}_loop")
    a("s_waitcnt lgkmcnt(0)")
    for x in pv(1): a(x)
    if 'stamp' in FL:
        a("s_memtime s[66:67]"); a("s_memrealtime s[68:69]"); a("s_waitcnt lgkmcnt(0)")
        a("s_sub_u32 s64, s64, s72"); a("s_sub_u32 s66, s66, s72"); a("s_sub_u32 s68, s68, s74")
        a("v_mov_b32 v140, s64"); a("v_mov_b32 v141, s66"); a("v_mov_b32 v142, s68"); a("v_mov_b32 v143, s72")
        a("s_lshl_b32 s70, s2, 3"); a("s_add_u32 s70, s70, s26"); a("s_lshl_b32 s70, s70, 4")
        a("v_mov_b32 v139, s70")
        a("buffer_store_dwordx4 v[140:143], v139, s[20:23], 0 offen")
    a.lab(f"{a.name}_fin")
    a("s_nop 7"); a("s_nop 7")
    a(f"v_mov_b32 v134, v{O+10}")
    a(f"v_mov_b32 v135, v{O+10}")
    a("s_nop 1")
    a("v_permlane32_swap_b32 v134, v135")
    a(f"s_mov_b32 s36, {f32hex(2.0**40)}")
    a("s_nop 0")
    a("v_cmp_nlt_f32 vcc, v134, s36") if False else a("v_cmp_ngt_f32 vcc, s36, v134")
    a("s_cmp_eq_u32 s33, 99")
    a(f"s_cbranch_scc1 {a.name}_store")
    a(f"s_cbranch_vccnz {a.name}_slow")
    a.lab(f"{a.name}_store")
    a("v_rcp_f32 v134, v134")
    a("s_nop 0")
    for r in range(10): a(f"v_mul_f32 v{O+r}, v{O+r}, v134")
    for r in range(5): a(f"v_cvt_pk_bf16_f32 v{E+r}, v{O+2*r}, v{O+2*r+1}")
    a("v_add_u32 v128, s27, v3")
    a("v_mul_u32_u24 v128, 1152, v128")
    a("v_lshl_add_u32 v128, v2, 3, v128")
    a("s_mul_i32 s30, s24, 36")
    a(f"buffer_store_dwordx2 {vr(E,2)}, v128, s[16:19], s30 offen")
    a(f"buffer_store_dwordx2 {vr(E+2,2)}, v128, s[16:19], s30 offen offset:16")
    a("s_and_saveexec_b64 s[38:39], s[34:35]")
    a(f"buffer_store_dword v{E+4}, v128, s[16:19], s30 offen offset:32")
    a("s_endpgm")
    a.lab(f"{a.name}_slow")
    a("v_mov_b32 v5, v131"); a("v_mov_b32 v6, v132"); a("v_mov_b32 v7, v133")
    a(f"v_mov_b32 v{Q2+1}, 0")
    for r in range(16): a(f"v_mov_b32 v{O+r}, 0")
    a("v_mov_b32 v136, 0xff800000")
    a("s_mov_b32 s33, 0")
    a.lab(f"{a.name}_sl1")
    a("s_mov_b32 s37, 0")
    a.lab(f"{a.name}_sl2")
    for x in kread(0, 0) + vread(0, 0): a(x)
    a("s_waitcnt lgkmcnt(0)")
    for x in qk(0): a(x)
    a("s_nop 7"); a("s_nop 7")
    a(f"v_max_f32 v134, v{SS(0)}, v{SS(0)+1}")
    for r in range(2, 16): a(f"v_max_f32 v134, v134, v{SS(0)+r}")
    a("v_mov_b32 v135, v134")
    a("s_nop 1")
    a("v_permlane32_swap_b32 v134, v135")
    a("s_nop 1")
    a("v_max_f32 v134, v134, v135")
    a("v_max_f32 v134, v134, v136")
    a("v_sub_f32 v135, v136, v134")
    a("v_exp_f32 v135, v135")
    a("v_mov_b32 v136, v134")
    for r in range(16): a(f"v_sub_f32 v{E+r}, v{SS(0)+r}, v134")
    for r in range(16): a(f"v_exp_f32 v{E+r}, v{E+r}")
    for r in range(16): a(f"v_mul_f32 v{O+r}, v{O+r}, v135")
    for r in range(8): a(f"v_cvt_pk_bf16_f32 v{PP(0)+r}, v{E+2*r}, v{E+2*r+1}")
    a("s_nop 1")
    for x in pv(0): a(x)
    a("s_nop 7"); a("s_nop 7")
    a("v_add_u32 v5, 1024, v5"); a("v_add_u32 v6, 256, v6"); a("v_add_u32 v7, 1216, v7")
    a("s_add_u32 s37, s37, 1")
    a("s_cmp_lt_u32 s37, 16")
    a(f"s_cbranch_scc1 {a.name}_sl2")
    a(f"v_add_u32 v5, {CHUNK-16*1024}, v5"); a(f"v_add_u32 v6, {CHUNK-16*256}, v6"); a(f"v_add_u32 v7, {CHUNK-16*1216}, v7")
    a("s_add_u32 s33, s33, 1")
    a("s_cmp_lt_u32 s33, 4")
    a(f"s_cbranch_scc1 {a.name}_sl1")
    a("s_mov_b32 s33, 99")
    a(f"s_branch {a.name}_fin")
    a.lab(f"{a.name}_end")
    a("s_endpgm")
    return a.text(), descriptor(a.name, 144, 0), f"; @launch kernel={a.name} grid=(256,1,1) block=(768,1,1) lds=163840"

def swap23(a, p, t1, t2):
    a(f"v_and_b32 v{t1}, 0x33, v{p}")
    a(f"v_and_b32 v{t2}, 4, v{p}")
    a(f"v_lshlrev_b32 v{t2}, 1, v{t2}")
    a(f"v_or_b32 v{t1}, v{t1}, v{t2}")
    a(f"v_and_b32 v{t2}, 8, v{p}")
    a(f"v_lshrrev_b32 v{t2}, 1, v{t2}")
    a(f"v_or_b32 v{t1}, v{t1}, v{t2}")

def sched_waits(seq):
    issued = []
    out = []
    known = 0
    for it in range(2):
        for item in seq:
            if item[0] == 'r':
                name, rel = item[1]
                issued.append((name, it + rel))
                if it == 1: out.append(item[2])
            elif item[0] == 'm':
                if it == 1:
                    idx = max(i for i, (n, t) in enumerate(issued) if t == it and n in item[1])
                    assert len([1 for (n, t) in issued if t == it and n in item[1]]) == len(item[1]), item
                    if idx + 1 > known:
                        cnt = min(len(issued) - (idx + 1), 15)
                        out.append(f"s_waitcnt lgkmcnt({cnt})")
                        known = idx + 1
                    out.append(item[2])
            else:
                if it == 1: out.append(item[1])
    return out

def skeleton(a, R, STG, NST, NLD, loader_setup, dma, cons_setup, body, nbase, epilogue, custom_loader=None):
    skeleton2(a, R, STG, NST, NLD, loader_setup, dma, cons_setup, [(None, body, epilogue)], nbase, custom_loader)

def skeleton2(a, R, STG, NST, NLD, loader_setup, dma, cons_setup, variants, nbase, custom_loader=None, tail=None):
    a("s_cmp_ge_u32 s26, 4")
    a(f"s_cbranch_scc0 {a.name}_cons")
    a("s_sub_u32 s26, s26, 4")
    if custom_loader:
        a("s_cmp_ge_u32 s26, 4")
        a(f"s_cbranch_scc0 {a.name}_std")
        a("s_sub_u32 s26, s26, 4")
        custom_loader()
        a("s_endpgm")
        a.lab(f"{a.name}_std")
    std_loader(a, R, STG, NST, NLD, loader_setup, dma, tail)
    cons_part(a, R, STG, NST, cons_setup, variants, nbase)

def std_loader(a, R, STG, NST, NLD, loader_setup, dma, tail=None):
    loader_setup()
    a("s_mov_b32 s34, 0")
    def dma_adv():
        dma()
        a(f"s_add_u32 s34, s34, {STG}")
        a(f"s_cmp_eq_u32 s34, {R*STG}")
        a("s_cselect_b32 s34, 0, s34")
    for st in range(R-1): dma_adv()
    a(f"s_waitcnt vmcnt({(R-2)*NLD})")
    a("s_barrier")
    a("s_mov_b32 s40, 0")
    a.lab(f"{a.name}_lloop")
    a(f"s_waitcnt vmcnt({(R-3)*NLD})")
    a("s_barrier")
    dma_adv()
    a("s_add_u32 s40, s40, 1")
    a(f"s_cmp_lt_u32 s40, {NST-R+1}")
    a(f"s_cbranch_scc1 {a.name}_lloop")
    extra = tail() if tail else 0
    for k in range(R-1):
        a(f"s_waitcnt vmcnt({max(R-3-k,0)*NLD + extra})")
        a("s_barrier")
    a("s_endpgm")

def cons_part(a, R, STG, NST, cons_setup, variants, nbase):
    a.lab(f"{a.name}_cons")
    cons_setup()
    nb0, n = nbase
    for r in range(n):
        a(f"v_mov_b32 v{nb0+n+r}, v{nb0+r}")
        a(f"v_mov_b32 v{nb0+2*n+r}, v{nb0+r}")
    a("s_mov_b32 s39, 0")
    a("s_mov_b32 s40, 0")
    a("s_barrier")
    stamp_mid(a, 0)
    for vi, (cmp, body, epilogue) in enumerate(variants):
        if vi: a.lab(f"{a.name}_var{vi}")
        if cmp:
            a(cmp); a(f"s_cbranch_scc1 {a.name}_var{vi+1}")
        seq = body()
        for item in seq:
            if item[0] == 'r' and item[1][1] == 1: a(item[2])
        a.lab(f"{a.name}_loop{vi}")
        a(f"s_add_u32 s39, s39, {STG}")
        a(f"s_cmp_eq_u32 s39, {R*STG}")
        a("s_cselect_b32 s39, 0, s39")
        for r in range(n):
            a(f"v_mov_b32 v{nb0+n+r}, v{nb0+2*n+r}")
            a(f"v_add_u32 v{nb0+2*n+r}, s39, v{nb0+r}")
        for x in sched_waits(seq):
            if x == '@BAR': a("s_barrier")
            elif x.startswith('@LAB '): a.lab(x[5:])
            else: a(x)
        a("s_add_u32 s40, s40, 1")
        a(f"s_cmp_lt_u32 s40, {NST}")
        a(f"s_cbranch_scc1 {a.name}_loop{vi}")
        a("s_waitcnt lgkmcnt(0)")
        stamp_mid(a, 1)
        epilogue()
    a.lab(f"{a.name}_done")
    stamp_end(a, 8)
    a.lab(f"{a.name}_end")
    a("s_endpgm")

def common_entry(a, nwg, args):
    a(f"s_cmp_ge_u32 s2, {nwg}")
    a(f"s_cbranch_scc1 {a.name}_end")
    for reg, off in args: a(f"s_load_dwordx2 s[{reg}:{reg+1}], s[0:1], {off}")
    a("v_and_b32 v1, 63, v0")
    a("v_lshrrev_b32 v2, 4, v1")
    a("v_and_b32 v3, 15, v1")
    a("v_lshrrev_b32 v4, 6, v0")
    a("s_nop 1")
    a("v_readfirstlane_b32 s26, v4")

def k4():
    a = Asm("mlp1_kernel"); header(a)
    R = 5; STG = 28672; NST = 32
    ACC = lambda b: 96 + 16*b
    WF = lambda ks: 24 + ks*4
    GF = lambda ks, b: 40 + (ks*3 + b)*4
    common_entry(a, 256, [(4, 32), (6, 40), (28, 80), (64, 48)])
    a("s_and_b32 s24, s2, 7")
    a("s_mul_i32 s24, s24, 27")
    a("s_lshr_b32 s25, s2, 3")
    a("s_add_u32 s24, s24, s25")
    a("s_mul_i32 s25, s24, 10923")
    a("s_lshr_b32 s25, s25, 16")
    a("s_mul_i32 s30, s25, 6")
    a("s_sub_u32 s24, s24, s30")
    a("s_waitcnt lgkmcnt(0)")
    srd_from_arg(a, 8, 32, S*F*2, 4)
    srd_from_arg(a, 12, 40, F*2, 6)
    srd_ws(a, 16, 28, WS_G, SZ_SD)
    srd_ws(a, 20, 28, WS_U, SZ_U)
    srd_from_arg(a, 68, 48, S*F*2, 64)
    lx = f"{a.name}_work"
    a("s_cmp_ge_u32 s2, 216")
    a(f"s_cbranch_scc0 {lx}")
    a("s_and_b32 s52, s2, 7")
    a("s_lshr_b32 s53, s2, 3")
    a("s_sub_u32 s54, s53, 27")
    a("s_lshl_b32 s54, s54, 3")
    a("s_add_u32 s54, s54, s26")
    a("s_mul_i32 s54, s54, 116")
    a("s_add_u32 s54, s54, 13824")
    a("s_lshr_b32 s56, s52, 1")
    a(f"s_mul_i32 s56, s56, {1152*4096}")
    a("s_and_b32 s57, s52, 1")
    a("s_lshl_b32 s57, s57, 11")
    a("s_add_u32 s56, s56, s57")
    a("s_mov_b32 exec_hi, 0xffff")
    for n in range(3 if 'noxpf' not in FL else 0):
        a("v_add_u32 v5, s54, v1")
        if n: a(f"v_add_u32 v5, {40*n}, v5")
        a("v_min_u32 v5, 18431, v5")
        a("v_lshrrev_b32 v6, 4, v5")
        a("v_lshlrev_b32 v6, 12, v6")
        a("v_and_b32 v7, 15, v5")
        a("v_lshl_add_u32 v6, v7, 7, v6")
        a("buffer_load_dword v9, v6, s[68:71], s56 offen")
    a("s_endpgm")
    a.lab(lx)
    stamp_begin(a)
    def loader_setup():
        a("s_lshl_b32 s30, s26, 4")
        a("v_add_u32 v10, s30, v2")
        a("v_mul_u32_u24 v10, 9216, v10")
        a("v_lshlrev_b32 v11, 2, v2")
        a("v_xor_b32 v11, v11, v3")
        a("v_lshl_add_u32 v10, v11, 4, v10")
        a("s_lshl_b32 s30, s25, 8")
        a("v_add_u32 v5, s30, v10")
        a("s_mul_i32 s30, s26, 3072")
        a(f"s_mul_i32 s31, s24, {2048*192}")
        a("s_add_u32 s30, s30, s31")
        a("v_lshl_add_u32 v6, v1, 4, s30")
        a("s_lshl_b32 s32, s26, 12")
        a("s_mul_i32 s33, s26, 3072")
        a("s_add_u32 s33, s33, 16384")
        a("s_mov_b32 s35, 0"); a("s_mov_b32 s36, 0")
    def dma():
        a("s_add_u32 s37, s34, s32")
        for m in range(4):
            a(f"s_add_u32 m0, s37, {m*1024}")
            a(f"s_add_u32 s38, s35, {m*36864}")
            a("buffer_load_dwordx4 v5, s[8:11], s38 offen lds")
        a("s_add_u32 m0, s34, s33")
        a("s_nop 0")
        for m in range(3):
            a(f"buffer_load_dwordx4 v6, s[16:19], s36 offen offset:{m*1024} lds")
        a(f"s_add_u32 s35, s35, {64*9216}")
        a(f"s_add_u32 s36, s36, {64*192}")
    def cons_setup():
        a("v_lshrrev_b32 v150, 2, v3")
        a("v_and_b32 v151, 3, v3")
        a("v_lshrrev_b32 v152, 1, v2")
        a("v_and_b32 v153, 1, v2")
        a("v_lshl_add_u32 v154, v152, 3, v150")
        a("v_lshrrev_b32 v155, 1, v151")
        a("v_lshl_add_u32 v155, v153, 1, v155")
        a("s_lshl_b32 s30, s26, 2")
        a("v_add_u32 v155, s30, v155")
        a("v_lshlrev_b32 v156, 2, v150")
        a("v_xor_b32 v155, v155, v156")
        a("v_lshlrev_b32 v155, 4, v155")
        a("v_lshl_add_u32 v155, v154, 8, v155")
        a("v_and_b32 v156, 1, v151")
        a("v_lshl_add_u32 v10, v156, 3, v155")
        a("v_mul_u32_u24 v155, 192, v154")
        a("v_lshl_add_u32 v155, v153, 5, v155")
        a("v_lshl_add_u32 v155, v151, 3, v155")
        a("v_add_u32 v11, 16384, v155")
        a("v_lshrrev_b32 v4, 5, v1")
        a("s_lshl_b32 s30, s25, 8")
        a("s_lshl_b32 s31, s26, 6")
        a("s_add_u32 s30, s30, s31")
        a("v_lshl_add_u32 v150, v4, 3, s30")
        for qd in range(4): a(f"buffer_load_dwordx2 {vr(160+2*qd,2)}, v150, s[12:15], 0 offen offset:{16*qd}")
        for r in range(96, 144): a(f"v_mov_b32 v{r}, 0")
    def rd(ks, rel):
        wb, gb = ("v14", "v15") if rel else ("v12", "v13")
        L = []
        for hh in range(2):
            L.append(('r', (f"W{ks}{hh}", rel), f"ds_read_b64_tr_b16 {vr(WF(ks)+2*hh,2)}, {wb} offset:{ks*4096 + hh*1024}"))
        for b in range(3):
            for hh in range(2):
                L.append(('r', (f"G{ks}{b}{hh}", rel), f"ds_read_b64_tr_b16 {vr(GF(ks,b)+2*hh,2)}, {gb} offset:{ks*3072 + hh*768 + 64*b}"))
        return L
    def body():
        seq = []
        for ks in range(4):
            if ks == 2: seq.append(('x', '@BAR'))
            r = rd((ks+2) % 4, 1 if ks >= 2 else 0)
            for b in range(3):
                seq.append(('m', [f"W{ks}0", f"W{ks}1", f"G{ks}{b}0", f"G{ks}{b}1"],
                            f"v_mfma_f32_32x32x16_bf16 {vr(ACC(b),16)}, {vr(WF(ks),4)}, {vr(GF(ks,b),4)}, {vr(ACC(b),16)}"))
                seq += r[3*b:3*b+3]
        return seq
    def epilogue():
        P = 80
        a("s_barrier")
        a(f"s_mul_i32 s47, s26, {96*P}")
        a("v_and_b32 v151, 31, v1")
        a(f"v_mul_u32_u24 v151, {P}, v151")
        a("v_lshl_add_u32 v151, v4, 3, v151")
        a("v_add_u32 v16, s47, v151")
        a("v_lshrrev_b32 v151, 2, v1")
        a("v_and_b32 v152, 3, v1")
        a(f"v_mul_u32_u24 v153, {P}, v151")
        a("v_lshl_add_u32 v153, v152, 4, v153")
        a("v_add_u32 v18, s47, v153")
        a("v_lshlrev_b32 v153, 7, v151")
        a("v_lshl_add_u32 v19, v152, 4, v153")
        a("s_lshr_b32 s31, s26, 1")
        a("s_lshl_b32 s30, s25, 1")
        a("s_add_u32 s31, s31, s30")
        a("s_mul_i32 s31, s31, 73728")
        a("s_and_b32 s30, s26, 1")
        a("s_lshl_b32 s30, s30, 6")
        a("s_add_u32 s31, s31, s30")
        a(f"s_mul_i32 s30, s24, {96*128}")
        a("s_add_u32 s42, s31, s30")
        a("s_add_u32 s43, s42, 4096")
        a("s_add_u32 s44, s42, 8192")
        a("s_waitcnt vmcnt(0)")
        for qd in range(4):
            for p in range(2):
                a(f"v_lshlrev_b32 v{32+4*qd+2*p}, 16, v{160+2*qd+p}")
                a(f"v_and_b32 v{33+4*qd+2*p}, 0xffff0000, v{160+2*qd+p}")
        c0 = -2.0*math.sqrt(2.0/math.pi)*LOG2E
        a(f"s_mov_b32 s41, {f32hex(c0*0.044715)}")
        a(f"v_mov_b32 v17, {f32hex(c0)}")
        for b in range(3):
            for qp in range(2):
                cs = [ACC(b) + 4*(2*qp) + r for r in range(8)]
                bs = [32 + 4*(2*qp) + r for r in range(8)]
                for r in range(8): a(f"v_add_f32 v{cs[r]}, v{cs[r]}, v{bs[r]}")
                for r in range(8): a(f"v_mul_f32 v{150+r}, v{cs[r]}, v{cs[r]}")
                for r in range(8): a(f"v_fma_f32 v{150+r}, v{150+r}, s41, v17")
                for r in range(8): a(f"v_mul_f32 v{150+r}, v{150+r}, v{cs[r]}")
                for r in range(8): a(f"v_exp_f32 v{150+r}, v{150+r}")
                for r in range(8): a(f"v_add_f32 v{150+r}, 1.0, v{150+r}")
                for r in range(8): a(f"v_rcp_f32 v{150+r}, v{150+r}")
                for r in range(8): a(f"v_mul_f32 v{cs[r]}, v{cs[r]}, v{150+r}")
                for q2 in range(2):
                    c = cs[4*q2]
                    a(f"v_cvt_pk_bf16_f32 v{c}, v{c}, v{c+1}")
                    a(f"v_cvt_pk_bf16_f32 v{c+1}, v{c+2}, v{c+3}")
                    a(f"ds_write_b64 v16, {vr(c,2)} offset:{b*32*P + 16*(2*qp+q2)}")
        a("s_waitcnt lgkmcnt(0)")
        for n in range(6): a(f"ds_read_b128 {vr(48+4*n,4)}, v18 offset:{n*16*P}")
        for n in range(6):
            a(f"s_waitcnt lgkmcnt({5-n})")
            a(f"buffer_store_dwordx4 {vr(48+4*n,4)}, v19, s[20:23], s{42 + n//2} offen offset:{(n%2)*2048}")
    skeleton(a, R, STG, NST, 7, loader_setup, dma, cons_setup, body, (10, 2), epilogue)
    return a.text(), descriptor(a.name, 168, 0), f"; @launch kernel={a.name} grid=(256,1,1) block=(512,1,1) lds={R*STG}"

def k5():
    a = Asm("mlp2_kernel"); header(a)
    R = 4; STG = 34816; NST = 18; UB = 18432
    ACC = lambda j, t: 112 + (j*2 + t)*4
    UF = lambda buf, j: 24 + (buf*9 + j)*4
    WF = lambda buf, t: 96 + (buf*2 + t)*4
    common_entry(a, 256, [(4, 48), (28, 80)])
    a("s_and_b32 s24, s2, 7")
    a("s_lshl_b32 s24, s24, 5")
    a("s_lshr_b32 s25, s2, 3")
    a("s_add_u32 s27, s24, s25")
    a("s_and_b32 s24, s27, 3")
    a("s_lshr_b32 s25, s27, 2")
    a("s_and_b32 s25, s25, 15")
    a("s_lshr_b32 s27, s27, 6")
    a("s_waitcnt lgkmcnt(0)")
    srd_from_arg(a, 8, 48, F*S*2, 4)
    srd_ws(a, 16, 28, WS_U, SZ_U)
    srd_ws(a, 20, 28, WS_P, SZ_P)
    stamp_begin(a)
    def loader_setup():
        a("s_lshl_b32 s30, s26, 2")
        a("v_add_u32 v10, s30, v2")
        a("v_and_b32 v10, 7, v10")
        a("v_and_b32 v11, 7, v1")
        a("v_xor_b32 v10, v10, v11")
        a("v_lshrrev_b32 v11, 3, v1")
        a("v_lshlrev_b32 v11, 7, v11")
        a("v_lshl_add_u32 v5, v10, 4, v11")
        a("s_and_b32 s30, s26, 1")
        a("s_add_u32 s45, s30, 16")
        a("s_lshl_b32 s45, s45, 10")
        a("s_lshl_b32 s46, s26, 10")
        a("s_lshl_b32 s30, s26, 4")
        a("v_add_u32 v10, s30, v2")
        a("v_lshlrev_b32 v10, 12, v10")
        a("s_lshl_b32 s30, s25, 8")
        a("v_add_u32 v10, s30, v10")
        a("v_lshlrev_b32 v11, 1, v2")
        a("v_xor_b32 v11, v11, v3")
        a("v_lshl_add_u32 v6, v11, 4, v10")
        a("v_xor_b32 v11, 8, v11")
        a("v_lshl_add_u32 v7, v11, 4, v10")
        a("s_lshl_b32 s32, s26, 12")
        a(f"s_add_u32 s32, s32, {UB}")
        a(f"s_mul_i32 s35, s27, {18*73728}")
        a(f"s_mul_i32 s30, s24, {UB}")
        a("s_add_u32 s35, s35, s30")
        a(f"s_mul_i32 s36, s27, {1152*4096}")
    def dma():
        a("s_add_u32 s37, s34, s46")
        a("s_add_u32 s47, s35, s46")
        for m in range(4):
            a(f"s_add_u32 m0, s37, {m*4096}")
            a(f"s_add_u32 s38, s47, {m*4096}")
            a("buffer_load_dwordx4 v5, s[16:19], s38 offen lds")
        a("s_add_u32 m0, s34, s45")
        a("s_add_u32 s38, s35, s45")
        a("buffer_load_dwordx4 v5, s[16:19], s38 offen lds")
        a("s_add_u32 s37, s34, s32")
        for m in range(4):
            a(f"s_add_u32 m0, s37, {m*1024}")
            a(f"s_add_u32 s38, s36, {m*4*4096}")
            a(f"buffer_load_dwordx4 v{6 + (m>>1)}, s[8:11], s38 offen lds")
        a("s_add_u32 s35, s35, 73728")
        a(f"s_add_u32 s36, s36, {64*4096}")
    def cons_setup():
        a("v_lshrrev_b32 v200, 1, v3")
        a("v_xor_b32 v201, v2, v200")
        a("v_lshlrev_b32 v202, 7, v3")
        a("v_lshl_add_u32 v8, v201, 4, v202")
        a("v_xor_b32 v201, 4, v201")
        a("v_lshl_add_u32 v9, v201, 4, v202")
        a("v_lshrrev_b32 v200, 2, v3")
        a("v_and_b32 v201, 3, v3")
        a("v_lshl_add_u32 v202, v2, 3, v200")
        a("v_and_b32 v203, 1, v2")
        a("v_lshl_add_u32 v203, v203, 2, v200")
        a("v_lshlrev_b32 v203, 1, v203")
        a("v_lshrrev_b32 v204, 1, v201")
        a("s_lshl_b32 s30, s26, 2")
        a("v_add_u32 v204, s30, v204")
        a("v_xor_b32 v205, v204, v203")
        a("v_lshlrev_b32 v205, 4, v205")
        a("v_lshl_add_u32 v205, v202, 8, v205")
        a("v_and_b32 v206, 1, v201")
        a("v_lshl_add_u32 v205, v206, 3, v205")
        a(f"v_add_u32 v10, {UB}, v205")
        a("v_xor_b32 v11, 32, v10")
        for r in range(112, 184): a(f"v_mov_b32 v{r}, 0")
    def rd(ks, rel):
        b = 16 if rel else 12
        L = []
        for t in range(2):
            for hh in range(2):
                L.append(('r', (f"W{ks}{t}{hh}", rel), f"ds_read_b64_tr_b16 {vr(WF(ks,t)+2*hh,2)}, v{b+2+t} offset:{ks*8192 + hh*1024}"))
        for j in range(9):
            L.append(('r', (f"U{ks}{j}", rel), f"ds_read_b128 {vr(UF(ks,j),4)}, v{b+ks} offset:{j*2048}"))
        return L
    def body():
        seq = []
        for ks in range(2):
            if ks == 1: seq.append(('x', '@BAR'))
            r = rd(1-ks, ks)
            k = 0
            for j in range(9):
                for t in range(2):
                    C = vr(ACC(j,t),4)
                    G = 3 if 'nogrp' not in FL else 1
                    needs = [f"U{ks}{jj}" for jj in range(j, min(9, (j//G + 1)*G))] + [f"W{ks}00", f"W{ks}01", f"W{ks}10", f"W{ks}11"]
                    seq.append(('m', needs, f"v_mfma_f32_16x16x32_bf16 {C}, {vr(UF(ks,j),4)}, {vr(WF(ks,t),4)}, {C}"))
                    if k < len(r): seq.append(r[k]); k += 1
        return seq
    def epilogue():
        P = 304
        a("s_barrier")
        a(f"s_mul_i32 s47, s26, {32*P}")
        a(f"v_mul_u32_u24 v200, {P}, v3")
        a("v_lshl_add_u32 v200, v2, 3, v200")
        a("v_add_u32 v200, s47, v200")
        for j in range(9):
            for t in range(2):
                c = ACC(j,t)
                a(f"v_cvt_pk_bf16_f32 v{c}, v{c}, v{c+1}")
                a(f"v_cvt_pk_bf16_f32 v{c+1}, v{c+2}, v{c+3}")
                a(f"ds_write_b64 v200, {vr(c,2)} offset:{t*16*P + 32*j}")
        a("s_lshl_b32 s30, s27, 11")
        a("s_lshl_b32 s31, s25, 7")
        a("s_add_u32 s30, s30, s31")
        a("s_lshl_b32 s31, s26, 5")
        a("s_add_u32 s30, s30, s31")
        a("s_mul_i32 s30, s30, 1152")
        a("s_mul_i32 s31, s24, 288")
        a("s_add_u32 s30, s30, s31")
        for n in range(9):
            a(f"v_add_u32 v201, {64*n}, v1")
            a("v_mul_u32_u24 v202, 3641, v201")
            a("v_lshrrev_b32 v202, 16, v202")
            a("v_mul_u32_u24 v203, 18, v202")
            a("v_sub_u32 v203, v201, v203")
            a("v_lshlrev_b32 v203, 4, v203")
            a(f"v_mad_u32_u24 v{24+n}, v202, s48, v203") if False else None
            a(f"v_mul_u32_u24 v204, {P}, v202")
            a(f"v_add3_u32 v{24+n}, v204, v203, s47")
            a("v_mul_u32_u24 v204, 1152, v202")
            a(f"v_add_u32 v{40+n}, v204, v203")
        a("s_waitcnt lgkmcnt(0)")
        for n in range(9): a(f"ds_read_b128 {vr(56+4*n,4)}, v{24+n}")
        for n in range(9):
            a(f"s_waitcnt lgkmcnt({8-n})")
            a(f"buffer_store_dwordx4 {vr(56+4*n,4)}, v{40+n}, s[20:23], s30 offen")
    skeleton(a, R, STG, NST, 9, loader_setup, dma, cons_setup, body, (8, 4), epilogue)
    return a.text(), descriptor(a.name, 208, 0), f"; @launch kernel={a.name} grid=(256,1,1) block=(512,1,1) lds={R*STG}"

def k6():
    a = Asm("final_kernel"); header(a)
    a("s_cmp_ge_u32 s2, 576")
    a(f"s_cbranch_scc1 {a.name}_end")
    a("s_load_dwordx2 s[4:5], s[0:1], 56")
    a("s_load_dwordx2 s[6:7], s[0:1], 64")
    a("s_load_dwordx2 s[28:29], s[0:1], 80")
    a("s_lshl_b32 s3, s2, 8")
    a("v_add_u32 v1, s3, v0")
    a("v_lshlrev_b32 v2, 4, v1")
    a("s_mov_b32 s30, 0x38e38e4")
    a("v_mul_hi_u32 v4, v1, s30")
    a("v_mul_u32_u24 v12, 72, v4")
    a("v_sub_u32 v12, v1, v12")
    a("v_mul_u32_u24 v13, 43691, v12")
    a("v_lshrrev_b32 v13, 19, v13")
    a("v_mul_u32_u24 v14, 12, v13")
    a("v_sub_u32 v12, v12, v14")
    a("s_mov_b32 s31, 393216")
    a("v_mul_lo_u32 v13, v13, s31")
    a("v_mul_u32_u24 v14, 192, v4")
    a("v_add_u32 v13, v13, v14")
    a("v_lshl_add_u32 v12, v12, 4, v13")
    a("v_lshlrev_b32 v4, 1, v4")
    a("s_waitcnt lgkmcnt(0)")
    srd_from_arg(a, 8, 56, S*2, 4)
    srd_from_arg(a, 12, 64, S*D*2, 6)
    srd_ws(a, 16, 28, WS_H, SZ_SD)
    srd_ws(a, 20, 28, WS_P, SZ_P)
    for p in range(4):
        a(f"s_mov_b32 s{32+p}, {p*S*D*2}")
        a(f"buffer_load_dwordx4 {vr(16+4*p,4)}, v2, s[20:23], s{32+p} offen")
    a("buffer_load_dwordx4 v[32:35], v12, s[16:19], 0 offen")
    a("buffer_load_ushort v5, v4, s[8:11], 0 offen")
    a("v_mov_b32 v10, 0x00003f80"); a("v_mov_b32 v11, 0x3f800000")
    a("s_waitcnt vmcnt(0)")
    for r in range(8): a(f"v_lshlrev_b32 v{40+r}, 16, v5")
    for sreg in (16, 20, 24, 28, 32):
        for r in range(8): a(f"v_dot2c_f32_bf16 v{40+r}, v{sreg + r//2}, v{10 + r%2}")
    a("s_nop 2")
    for r in range(4): a(f"v_cvt_pk_bf16_f32 v{8+r if False else 16+r}, v{40+2*r}, v{41+2*r}")
    a("buffer_store_dwordx4 v[16:19], v2, s[12:15], 0 offen")
    a.lab(f"{a.name}_end")
    a("s_endpgm")
    return a.text(), descriptor(a.name, 48, 0), f"; @launch kernel={a.name} grid=(576,1,1) block=(256,1,1) lds=0"

def k1():
    a = Asm("qkv_kernel"); header(a)
    R = 4; XB = 16384; STG = 34816; NST = 9
    ACC = lambda i, j: 112 + (i*9 + j)*4
    XF = lambda ks, i: 24 + (ks*2 + i)*4
    WF = lambda ks, j: 40 + (ks*9 + j)*4
    CW = lambda j: 184 + 4*j
    S1 = lambda i: 220 + 4*i
    S2 = lambda i: 228 + 4*i
    ONE = 236
    T = 240
    common_entry(a, 256, [(4, 0), (6, 8), (28, 80), (64, 32)])
    a("s_and_b32 s52, s2, 7")
    a("s_lshr_b32 s53, s2, 3")
    a("s_mul_i32 s30, s52, 24")
    a("s_add_u32 s30, s30, s53")
    a("s_mul_i32 s24, s30, 5462")
    a("s_lshr_b32 s24, s24, 16")
    a("s_mul_i32 s25, s24, 12")
    a("s_sub_u32 s25, s30, s25")
    a("s_lshr_b32 s41, s25, 2")
    a("s_waitcnt lgkmcnt(0)")
    srd_from_arg(a, 8, 0, S*D*2, 4)
    srd_from_arg(a, 12, 8, D*3*D*2, 6)
    srd_ws(a, 16, 28, WS_Q, SZ_Q)
    srd_ws(a, 20, 28, WS_KV, SZ_KV)
    srd_from_arg(a, 68, 32, S*F*2, 64)
    lx = f"{a.name}_work"
    a("s_cmp_ge_u32 s2, 192")
    a(f"s_cbranch_scc0 {lx}")
    a("s_sub_u32 s54, s53, 24")
    a("s_lshl_b32 s54, s54, 3")
    a("s_add_u32 s54, s54, s26")
    a("s_mul_i32 s54, s54, 96")
    a("s_mul_i32 s57, s52, 1152")
    a("s_mov_b32 exec_hi, 0xffff")
    for n in range(2 if 'noxpf' not in FL else 0):
        a("v_add_u32 v20, s54, v1")
        if n: a("v_add_u32 v20, 48, v20")
        a("v_mul_u32_u24 v21, 58255, v20")
        a("v_lshrrev_b32 v21, 19, v21")
        a("v_mul_u32_u24 v22, 9, v21")
        a("v_sub_u32 v22, v20, v22")
        a("v_mul_u32_u24 v21, 9216, v21")
        a("v_lshl_add_u32 v21, v22, 7, v21")
        a("buffer_load_dword v23, v21, s[68:71], s57 offen")
    a("s_endpgm")
    a.lab(lx)
    stamp_begin(a)
    def tail():
        if 'k1tail' not in FL: return 0
        a("s_lshl_b32 s54, s53, 2")
        a("s_add_u32 s54, s54, s26")
        a("s_mul_i32 s54, s54, 96")
        a("s_mul_i32 s57, s52, 1152")
        a("s_mov_b32 exec_hi, 0xffff")
        for n in range(2):
            a("v_add_u32 v20, s54, v1")
            if n: a("v_add_u32 v20, 48, v20")
            a("v_mul_u32_u24 v21, 58255, v20")
            a("v_lshrrev_b32 v21, 19, v21")
            a("v_mul_u32_u24 v22, 9, v21")
            a("v_sub_u32 v22, v20, v22")
            a("v_mul_u32_u24 v21, 9216, v21")
            a("v_lshl_add_u32 v21, v22, 7, v21")
            a("buffer_load_dword v23, v21, s[68:71], s57 offen")
        return 2
    def loader_setup():
        a("s_lshl_b32 s30, s26, 2")
        a("v_add_u32 v10, s30, v2")
        a("v_and_b32 v10, 7, v10")
        a("v_and_b32 v11, 7, v1")
        a("v_xor_b32 v10, v10, v11")
        a("v_lshrrev_b32 v11, 3, v1")
        a("s_lshl_b32 s30, s24, 7")
        a("s_lshl_b32 s31, s26, 3")
        a("s_add_u32 s30, s30, s31")
        a("v_add_u32 v11, s30, v11")
        a("v_mul_u32_u24 v11, 1152, v11")
        a("v_lshl_add_u32 v5, v10, 4, v11")
        a("s_lshl_b32 s32, s26, 6")
        a("s_and_b32 s33, s26, 1")
        a("s_add_u32 s33, s33, 16")
        a("s_lshl_b32 s30, s33, 6")
        a("s_mul_i32 s31, s25, 288")
        for n in range(5):
            if n < 4:
                a(f"v_add_u32 v20, s32, v1")
                if n: a(f"v_add_u32 v20, {n*256}, v20")
            else:
                a(f"v_add_u32 v20, s30, v1")
            a("v_mul_u32_u24 v21, 3641, v20")
            a("v_lshrrev_b32 v21, 16, v21")
            a("v_mul_u32_u24 v22, 18, v21")
            a("v_sub_u32 v22, v20, v22")
            swap23(a, 21, 23, 24)
            a("v_mul_u32_u24 v23, 3456, v23")
            a("v_lshl_add_u32 v23, v22, 4, v23")
            a(f"v_add_u32 v{6+n}, s31, v23")
        a("s_lshl_b32 s46, s26, 10")
        a("s_lshl_b32 s45, s33, 10")
        a(f"s_add_u32 s45, s45, {XB}")
        a("s_mov_b32 s35, 0"); a("s_mov_b32 s36, 0")
    def dma():
        a("s_add_u32 s37, s34, s46")
        for m in range(4):
            a(f"s_add_u32 m0, s37, {m*4096}")
            a(f"s_add_u32 s38, s35, {m*32*1152}")
            a("buffer_load_dwordx4 v5, s[8:11], s38 offen lds")
        for n in range(5):
            if n < 4: a(f"s_add_u32 m0, s37, {XB + n*4096}")
            else:     a("s_add_u32 m0, s34, s45")
            a("s_nop 0")
            a(f"buffer_load_dwordx4 v{6+n}, s[12:15], s36 offen lds")
        a("s_add_u32 s35, s35, 128")
        a(f"s_add_u32 s36, s36, {64*3456}")
    def cons_setup():
        a("v_lshrrev_b32 v240, 1, v3")
        a("v_xor_b32 v241, v2, v240")
        a("s_lshl_b32 s30, s26, 5")
        a("v_add_u32 v242, s30, v3")
        a("v_lshlrev_b32 v242, 7, v242")
        a("v_lshl_add_u32 v8, v241, 4, v242")
        a("v_xor_b32 v241, 4, v241")
        a("v_lshl_add_u32 v9, v241, 4, v242")
        a("v_lshrrev_b32 v240, 1, v2")
        a("v_and_b32 v241, 1, v2")
        a("v_lshlrev_b32 v240, 4, v240")
        a("v_lshl_add_u32 v240, v241, 2, v240")
        a("v_lshrrev_b32 v241, 2, v3")
        a("v_add_u32 v240, v240, v241")
        a("v_mul_u32_u24 v240, 288, v240")
        a("v_and_b32 v241, 3, v3")
        a("v_lshl_add_u32 v10, v241, 3, v240")
        a(f"v_add_u32 v10, {XB}, v10")
        if 'k1pf' in FL:
            a("s_lshl_b32 s54, s53, 2")
            a("s_add_u32 s54, s54, s26")
            a("v_mul_u32_u24 v240, 96, v1")
            a("v_add_u32 v240, s54, v240")
            for n in range(3):
                if n: a("v_add_u32 v240, 6144, v240")
                a("v_lshlrev_b32 v241, 7, v240")
                a("buffer_load_dword v242, v241, s[12:15], 0 offen")
            a("v_cmp_gt_u32 vcc, 24, v1")
            a("v_mul_u32_u24 v240, 96, v1")
            a("v_add_u32 v240, s54, v240")
            a("v_lshlrev_b32 v241, 7, v240")
            a(f"s_mul_i32 s55, s52, {256*1152}")
            a("s_and_saveexec_b64 s[56:57], vcc")
            a("buffer_load_dword v242, v241, s[8:11], s55 offen")
            a("s_mov_b64 exec, s[56:57]")
        for r in range(112, 236): a(f"v_mov_b32 v{r}, 0")
        for r in range(236, 240): a(f"v_mov_b32 v{r}, 0x3f803f80")
        a("s_mov_b32 s42, 0")
    def mkbody(mode):
        def rd(ks, rel):
            b = 14 if rel else 11
            L = []
            for i in range(2):
                L.append(('r', (f"X{ks}{i}", rel), f"ds_read_b128 {vr(XF(ks,i),4)}, v{b+ks} offset:{i*2048}"))
            for j in range(9):
                for hh in range(2):
                    L.append(('r', (f"W{ks}{j}{hh}", rel), f"ds_read_b64_tr_b16 {vr(WF(ks,j)+2*hh,2)}, v{b+2} offset:{ks*32*288 + hh*8*288 + 32*j}"))
            return L
        def body():
            seq = []
            for ks in range(2):
                if ks == 1: seq.append(('x', '@BAR'))
                r = rd(1-ks, ks)
                ms = []
                for i in range(2):
                    X = vr(XF(ks,i),4)
                    ms.append(('m', [f"X{ks}{i}"], f"v_mfma_f32_16x16x32_bf16 {vr(S1(i),4)}, {vr(ONE,4)}, {X}, {vr(S1(i),4)}"))
                    ms.append(('m', [f"X{ks}{i}"], f"v_mfma_f32_16x16x32_bf16 {vr(S2(i),4)}, {X}, {X}, {vr(S2(i),4)}"))
                for j in range(9):
                    for i in range(2):
                        W = vr(WF(ks,j),4); X = vr(XF(ks,i),4); C = vr(ACC(i,j),4)
                        ops = f"{W}, {X}" if mode == "qk" else f"{X}, {W}"
                        G = 3 if 'nogrp' not in FL else 1
                        needs = [f"X{ks}{i}"] + [f"W{ks}{jj}{hh}" for jj in range(j, min(9, (j//G + 1)*G)) for hh in range(2)]
                        ms.append(('m', needs, f"v_mfma_f32_16x16x32_bf16 {C}, {ops}, {C}"))
                k = 0
                for m in ms:
                    seq.append(m)
                    if k < len(r): seq.append(r[k]); k += 1
                l = a.newlabel("cw")
                seq.append(('x', "s_and_b32 s43, s42, 3"))
                seq.append(('x', "s_add_u32 s42, s42, 1"))
                seq.append(('x', "s_cmp_eq_u32 s43, s26"))
                seq.append(('x', f"s_cbranch_scc0 {l}"))
                for j in range(9):
                    W = vr(WF(ks,j),4); C = vr(CW(j),4)
                    ops = f"{W}, {vr(ONE,4)}" if mode == "qk" else f"{vr(ONE,4)}, {W}"
                    seq.append(('x', f"v_mfma_f32_16x16x32_bf16 {C}, {ops}, {C}"))
                seq.append(('x', f"@LAB {l}"))
            return seq
        return body
    P = 296
    def mkepi(mode):
        def epilogue():
            a("s_nop 7")
            a("s_barrier")
            a("s_mul_i32 s40, s26, 576")
            if mode == "qk":
                a("v_lshlrev_b32 v24, 4, v2")
                a("v_add_u32 v25, s40, v24")
                for j in range(9): a(f"ds_write_b128 v25, {vr(CW(j),4)} offset:{j*64}")
            else:
                a("v_lshlrev_b32 v24, 2, v3")
                a("v_add_u32 v25, s40, v24")
                for j in range(9): a(f"ds_write_b32 v25, v{CW(j)} offset:{j*64}")
            a("v_and_b32 v26, 3, v3")
            a("v_lshrrev_b32 v27, 2, v3")
            a("v_lshl_add_u32 v27, v27, 4, v3")
            a("v_lshlrev_b32 v27, 2, v27")
            for i in range(2):
                a(f"v_cmp_eq_u32 vcc, 1, v26"); a("s_nop 1")
                a(f"v_cndmask_b32 v{28+i}, v{S2(i)}, v{S2(i)+1}, vcc")
                a(f"v_cmp_eq_u32 vcc, 2, v26"); a("s_nop 1")
                a(f"v_cndmask_b32 v{28+i}, v{28+i}, v{S2(i)+2}, vcc")
                a(f"v_cmp_eq_u32 vcc, 3, v26"); a("s_nop 1")
                a(f"v_cndmask_b32 v{28+i}, v{28+i}, v{S2(i)+3}, vcc")
                a(f"ds_bpermute_b32 v{30+i}, v27, v{28+i}")
            a(f"s_mov_b32 s44, {f32hex(1.0/576)}")
            a(f"s_mov_b32 s45, {f32hex(1e-5)}")
            a("s_waitcnt lgkmcnt(0)")
            for i in range(2):
                a(f"v_mul_f32 v{28+i}, s44, v{S1(i)}")
                a(f"v_mul_f32 v{30+i}, s44, v{30+i}")
                a(f"v_fma_f32 v{30+i}, -v{28+i}, v{28+i}, v{30+i}")
                a(f"v_max_f32 v{30+i}, 0, v{30+i}")
                a(f"v_add_f32 v{30+i}, s45, v{30+i}")
                a(f"v_rsq_f32 v{32+i}, v{30+i}")
            a("s_nop 0")
            if mode == "qk":
                a(f"s_mov_b32 s43, {f32hex(QSCALE)}")
                a("s_cmp_eq_u32 s41, 0")
                a("s_cselect_b32 s43, s43, 1.0")
                for i in range(2): a(f"v_mul_f32 v{32+i}, s43, v{32+i}")
            for i in range(2): a(f"v_mul_f32 v{34+i}, v{28+i}, v{32+i}")
            a("s_barrier")
            if 'e1' in FL: stamp_mid(a, 0)
            a("s_and_b32 s44, s25, 3")
            a("s_lshl_b32 s44, s44, 3")
            a("s_lshl_b32 s27, s24, 7")
            a("s_lshl_b32 s30, s26, 5")
            a("s_add_u32 s27, s27, s30")
            a("s_mul_i32 s47, s26, 12288")
            a("s_add_u32 s47, s47, 4096")
            a("s_lshr_b32 s48, s27, 9")
            a(f"s_mul_i32 s48, s48, {CHUNK}")
            a("s_and_b32 s49, s27, 511")
            a(f"s_mul_i32 s50, s44, {HB}")
            a("s_add_u32 s48, s48, s50")
            if mode == "qk":
                for j in range(9):
                    a(f"ds_read_b128 {vr(40+4*j,4)}, v24 offset:{j*64}")
                    a(f"ds_read_b128 {vr(76+4*j,4)}, v24 offset:{576 + j*64}")
                a("s_waitcnt lgkmcnt(0)")
                for k in range(36): a(f"v_add_f32 v{40+k}, v{40+k}, v{76+k}")
                for j in range(9):
                    a(f"ds_read_b128 {vr(76+4*j,4)}, v24 offset:{2*576 + j*64}")
                    a(f"ds_read_b128 {vr(184+4*j,4)}, v24 offset:{3*576 + j*64}")
                a("s_waitcnt lgkmcnt(0)")
                for k in range(36):
                    a(f"v_add_f32 v{76+k}, v{76+k}, v{184+k}")
                    a(f"v_add_f32 v{40+k}, v{40+k}, v{76+k}")
                a(f"v_mul_u32_u24 v36, {P}, v3")
                a("v_lshl_add_u32 v36, v2, 3, v36")
                a("v_add_u32 v36, s47, v36")
                for i in range(2):
                    for j in range(9):
                        c = ACC(i,j)
                        for r in range(4): a(f"v_mul_f32 v{96+r}, v{40+4*j+r}, v{34+i}")
                        for r in range(4): a(f"v_fma_f32 v{96+r}, v{c+r}, v{32+i}, -v{96+r}")
                        a(f"v_cvt_pk_bf16_f32 v{c}, v96, v97")
                        a(f"v_cvt_pk_bf16_f32 v{c+1}, v98, v99")
                        a(f"ds_write_b64 v36, {vr(c,2)} offset:{i*16*P + 32*j}")
                lq = a.newlabel("isq")
                a("s_waitcnt lgkmcnt(0)")
                if 'e2' in FL: stamp_mid(a, 0)
                a("s_cmp_eq_u32 s41, 0")
                a(f"s_cbranch_scc1 {lq}")
                a("v_and_b32 v37, 31, v1")
                a("v_lshrrev_b32 v38, 5, v1")
                a(f"v_mul_u32_u24 v39, {P}, v37")
                a("v_add_u32 v39, s47, v39")
                a("v_lshl_add_u32 v40, v38, 4, v39")
                a("v_lshlrev_b32 v41, 4, v1")
                a("s_lshr_b32 s50, s49, 5")
                a("s_lshl_b32 s50, s50, 10")
                a("s_add_u32 s50, s50, s48")
                for h in range(8):
                    b = 48 + 4*h
                    a(f"ds_read2_b32 {vr(b,2)}, v40 offset0:{9*h} offset1:{9*h+1}")
                    a(f"ds_read2_b32 {vr(b+2,2)}, v40 offset0:{9*h+2} offset1:{9*h+3}")
                a("v_mul_u32_u24 v42, 36, v38")
                a("v_add_u32 v42, v42, v39")
                for p in range(4): a(f"ds_read_b32 v{80+2*p}, v42 offset:{72*p + 32}")
                for p in range(4): a(f"v_mov_b32 v{81+2*p}, 0x00003f80")
                a(f"s_mov_b32 s51, {HB}")
                a("v_mul_lo_u32 v43, v38, s51")
                a("v_lshl_add_u32 v43, v37, 3, v43")
                a("s_lshl_b32 s51, s49, 3")
                a("s_add_u32 s51, s51, s48")
                a("s_add_u32 s51, s51, 16384")
                a("s_waitcnt lgkmcnt(0)")
                for h in range(8):
                    a(f"buffer_store_dwordx4 {vr(48+4*h,4)}, v41, s[20:23], s50 offen")
                    if h < 7: a(f"s_add_u32 s50, s50, {HB}")
                for p in range(4):
                    a(f"buffer_store_dwordx2 {vr(80+2*p,2)}, v43, s[20:23], s51 offen")
                    if p < 3: a(f"s_add_u32 s51, s51, {2*HB}")
                a(f"s_branch {a.name}_done")
                a.lab(lq)
                for n in range(3):
                    a(f"v_add_u32 v37, {64*n}, v1")
                    a("v_cmp_le_u32 vcc, 96, v37"); a("s_nop 1")
                    a("v_cndmask_b32 v38, 0, 1, vcc")
                    a("v_mul_u32_u24 v39, 96, v38")
                    a("v_sub_u32 v37, v37, v39")
                    a("v_mul_u32_u24 v39, 171, v37")
                    a("v_lshrrev_b32 v39, 9, v39")
                    a("v_mul_u32_u24 v40, 3, v39")
                    a("v_sub_u32 v40, v37, v40")
                    a(f"v_mul_u32_u24 v41, {P}, v39")
                    a("v_mul_u32_u24 v42, 36, v38")
                    a("v_add_u32 v41, v41, v42")
                    a("v_lshl_add_u32 v41, v40, 4, v41")
                    a(f"v_add_u32 v{44+n}, s47, v41")
                    a("v_mul_u32_u24 v41, 48, v39")
                    a("v_lshl_add_u32 v41, v40, 4, v41")
                    a("s_mov_b32 s51, 98304")
                    a("v_mul_lo_u32 v42, v38, s51")
                    a(f"v_add_u32 v{100+n}, v41, v42")
                for p in range(4):
                    for n in range(3):
                        b = 48 + (p*3+n)*4
                        a(f"ds_read2_b32 {vr(b,2)}, v{44+n} offset0:{18*p} offset1:{18*p+1}")
                        a(f"ds_read2_b32 {vr(b+2,2)}, v{44+n} offset0:{18*p+2} offset1:{18*p+3}")
                a("s_lshl_b32 s50, s44, 11")
                a("s_add_u32 s50, s50, s27")
                a("s_mul_i32 s50, s50, 48")
                a("s_waitcnt lgkmcnt(0)")
                if 'e3' in FL: stamp_mid(a, 0)
                for p in range(4):
                    for n in range(3):
                        a(f"buffer_store_dwordx4 {vr(48+(p*3+n)*4,4)}, v{100+n}, s[16:19], s50 offen")
                    if p < 3: a(f"s_add_u32 s50, s50, {2*98304}")
                a(f"s_branch {a.name}_done")
            else:
                for j in range(9):
                    for w in range(4): a(f"ds_read_b32 v{184+4*j+w}, v24 offset:{w*576 + j*64}")
                a("s_waitcnt lgkmcnt(0)")
                for j in range(9):
                    b = 184 + 4*j
                    a(f"v_add_f32 v{b}, v{b}, v{b+1}"); a(f"v_add_f32 v{b+2}, v{b+2}, v{b+3}")
                    a(f"v_add_f32 v{40+j}, v{b}, v{b+2}")
                a("s_lshl_b32 s45, s26, 8")
                a("s_add_u32 s45, s45, 2304")
                a("v_lshl_add_u32 v96, v3, 2, s45")
                for i in range(2):
                    a(f"ds_write_b32 v96, v{32+i} offset:{i*64}")
                    a(f"ds_write_b32 v96, v{34+i} offset:{128 + i*64}")
                a("v_lshl_add_u32 v97, v2, 4, s45")
                a("v_lshrrev_b32 v98, 2, v1")
                a("v_mul_u32_u24 v98, 1216, v98")
                a("v_and_b32 v99, 3, v1")
                a("v_mul_u32_u24 v99, 304, v99")
                a("v_add3_u32 v98, v98, v99, s47")
                a("v_cmp_gt_u32 vcc, 32, v1")
                a("s_and_saveexec_b64 s[52:53], vcc")
                a(f"ds_write_b128 v98, {vr(ONE,4)} offset:288")
                a("s_mov_b64 exec, s[52:53]")
                a("s_waitcnt lgkmcnt(0)")
                for i in range(2):
                    a(f"ds_read_b128 {vr(52+8*i,4)}, v97 offset:{i*64}")
                    a(f"ds_read_b128 {vr(56+8*i,4)}, v97 offset:{128+i*64}")
                a("v_and_b32 v98, 1, v2")
                a("v_mul_u32_u24 v98, 304, v98")
                a("v_lshrrev_b32 v99, 1, v2")
                a("v_lshl_add_u32 v98, v99, 3, v98")
                a("v_add_u32 v98, s47, v98")
                a("s_waitcnt lgkmcnt(0)")
                for j in range(9):
                    a(f"v_add_u32 v106, {16*j}, v3")
                    a("v_mul_u32_u24 v107, 3641, v106")
                    a("v_lshrrev_b32 v107, 16, v107")
                    a("v_mul_u32_u24 v108, 18, v107")
                    a("v_sub_u32 v108, v106, v108")
                    a("v_mul_u32_u24 v107, 1216, v107")
                    a("v_lshl_add_u32 v107, v108, 4, v107")
                    a("v_add_u32 v107, v107, v98")
                    for i in range(2):
                        c = ACC(i,j)
                        for r in range(4): a(f"v_mul_f32 v{100+r}, v{40+j}, v{56+8*i+r}")
                        for r in range(4): a(f"v_fma_f32 v{100+r}, v{c+r}, v{52+8*i+r}, -v{100+r}")
                        a(f"v_cvt_pk_bf16_f32 v{c}, v100, v101")
                        a(f"v_cvt_pk_bf16_f32 v{c+1}, v102, v103")
                        a(f"ds_write_b64 v107, {vr(c,2)} offset:{i*608}")
                a("v_lshl_add_u32 v96, v1, 4, s47")
                a("s_waitcnt lgkmcnt(0)")
                for n in range(10): a(f"ds_read_b128 {vr(40+4*n,4)}, v96 offset:{n*1024}")
                a("s_lshr_b32 s50, s49, 4")
                a("s_mul_i32 s50, s50, 608")
                a("s_add_u32 s50, s50, s48")
                a("s_add_u32 s50, s50, 20480")
                a(f"s_mov_b32 s51, {HB-1216}")
                for n in range(10):
                    a(f"v_add_u32 v100, {64*n}, v1")
                    a("v_mul_u32_u24 v101, 863, v100")
                    a("v_lshrrev_b32 v101, 16, v101")
                    a("v_mul_lo_u32 v101, v101, s51")
                    a(f"v_lshl_add_u32 v{84+n}, v100, 4, v101")
                a("s_waitcnt lgkmcnt(0)")
                for n in range(10):
                    if n == 9: a("s_and_saveexec_b64 s[52:53], vcc")
                    a(f"buffer_store_dwordx4 {vr(40+4*n,4)}, v{84+n}, s[20:23], s50 offen")
                a("s_mov_b64 exec, s[52:53]")
        return epilogue
    skeleton2(a, R, STG, NST, 9, loader_setup, dma, cons_setup, [("s_cmp_eq_u32 s41, 2", mkbody("qk"), mkepi("qk")), (None, mkbody("v"), mkepi("v"))], (8, 3), tail=tail)
    return a.text(), descriptor(a.name, 256, 0), f"; @launch kernel={a.name} grid=(256,1,1) block=(512,1,1) lds={R*STG}"


def k3():
    a = Asm("oproj_kernel"); header(a)
    R = 6; OB = 8192; STG = 20480; NST = 9
    ACC = lambda i, j: 72 + (i*3 + j)*4
    OF = lambda ks, i: 24 + (ks*2 + i)*4
    WF = lambda ks, j: 40 + (ks*3 + j)*4
    XR = lambda i, j: 96 + (i*3 + j)*2
    common_entry(a, 192, [(4, 0), (6, 16), (28, 80)])
    a("s_and_b32 s24, s2, 7")
    a("s_mul_i32 s24, s24, 24")
    a("s_lshr_b32 s25, s2, 3")
    a("s_add_u32 s24, s24, s25")
    a("s_mul_i32 s25, s24, 10923")
    a("s_lshr_b32 s25, s25, 16")
    a("s_mul_i32 s30, s25, 6")
    a("s_sub_u32 s24, s24, s30")
    a("s_waitcnt lgkmcnt(0)")
    srd_from_arg(a, 8, 0, S*D*2, 4)
    srd_from_arg(a, 12, 16, D*D*2, 6)
    srd_ws(a, 16, 28, WS_O, SZ_SD)
    srd_ws(a, 20, 28, WS_H, SZ_SD)
    srd_ws(a, 44, 28, WS_ST, SZ_ST)
    stamp_begin(a)
    def loader_setup():
        a("s_lshl_b32 s30, s26, 2")
        a("v_add_u32 v10, s30, v2")
        a("v_and_b32 v10, 7, v10")
        a("v_and_b32 v11, 7, v1")
        a("v_xor_b32 v10, v10, v11")
        a("v_lshrrev_b32 v11, 3, v1")
        a("s_lshl_b32 s30, s25, 6")
        a("s_lshl_b32 s31, s26, 3")
        a("s_add_u32 s30, s30, s31")
        a("v_add_u32 v11, s30, v11")
        a("v_mul_u32_u24 v11, 1152, v11")
        a("v_lshl_add_u32 v5, v10, 4, v11")
        a("s_mul_i32 s30, s26, 192")
        a("s_mul_i32 s31, s24, 192")
        for m in range(3):
            a("v_add_u32 v20, s30, v1")
            if m: a(f"v_add_u32 v20, {64*m}, v20")
            a("v_mul_u32_u24 v21, 43691, v20")
            a("v_lshrrev_b32 v21, 19, v21")
            a("v_mul_u32_u24 v22, 12, v21")
            a("v_sub_u32 v22, v20, v22")
            a("v_lshrrev_b32 v23, 2, v21")
            a("v_and_b32 v23, 2, v23")
            a("v_xor_b32 v22, v22, v23")
            a("v_mul_u32_u24 v21, 1152, v21")
            a("v_lshl_add_u32 v21, v22, 4, v21")
            a(f"v_add_u32 v{6+m}, s31, v21")
        a("s_lshl_b32 s46, s26, 10")
        a("s_mul_i32 s45, s26, 3072")
        a(f"s_add_u32 s45, s45, {OB}")
        a("s_mov_b32 s35, 0"); a("s_mov_b32 s36, 0")
    def dma():
        a("s_add_u32 s37, s34, s46")
        for m in range(2):
            a(f"s_add_u32 m0, s37, {m*4096}")
            a(f"s_add_u32 s38, s35, {m*32*1152}")
            a("buffer_load_dwordx4 v5, s[16:19], s38 offen lds")
        a("s_add_u32 s37, s34, s45")
        for m in range(3):
            a(f"s_add_u32 m0, s37, {m*1024}")
            a("s_nop 0")
            a(f"buffer_load_dwordx4 v{6+m}, s[12:15], s36 offen lds")
        a("s_add_u32 s35, s35, 128")
        a(f"s_add_u32 s36, s36, {64*1152}")
    def cons_setup():
        a("s_lshr_b32 s41, s26, 1")
        a("s_and_b32 s42, s26, 1")
        a("v_lshrrev_b32 v110, 1, v3")
        a("v_xor_b32 v111, v2, v110")
        a("s_lshl_b32 s30, s41, 5")
        a("v_add_u32 v112, s30, v3")
        a("v_lshlrev_b32 v112, 7, v112")
        a("v_lshl_add_u32 v6, v111, 4, v112")
        a("v_xor_b32 v111, 4, v111")
        a("v_lshl_add_u32 v7, v111, 4, v112")
        a("v_lshrrev_b32 v110, 2, v3")
        a("v_and_b32 v111, 3, v3")
        a("v_lshl_add_u32 v112, v2, 3, v110")
        a("v_mul_u32_u24 v112, 192, v112")
        a("v_and_b32 v113, 1, v111")
        a("v_lshl_add_u32 v112, v113, 3, v112")
        a(f"v_add_u32 v112, {OB}, v112")
        a("v_lshrrev_b32 v113, 1, v111")
        a("s_mul_i32 s30, s42, 6")
        a("v_add_u32 v113, s30, v113")
        a("v_and_b32 v114, 1, v2")
        a("v_lshlrev_b32 v114, 1, v114")
        for j in range(3):
            a(f"v_add_u32 v115, {2*j}, v113")
            a("v_xor_b32 v115, v115, v114")
            a(f"v_lshl_add_u32 v{8+j}, v115, 4, v112")
        for r in range(72, 96): a(f"v_mov_b32 v{r}, 0")
        a("s_lshl_b32 s27, s25, 6")
        a("s_lshl_b32 s30, s41, 5")
        a("s_add_u32 s27, s27, s30")
        a("v_add_u32 v110, s27, v3")
        a("v_mul_u32_u24 v111, 1152, v110")
        a("v_lshl_add_u32 v111, v2, 3, v111")
        a("s_mul_i32 s30, s24, 192")
        a("s_mul_i32 s31, s42, 96")
        a("s_add_u32 s30, s30, s31")
        a("v_add_u32 v111, s30, v111")
        a("s_mov_b32 s43, 18432")
        for i in range(2):
            for j in range(3):
                a(f"buffer_load_dwordx2 {vr(XR(i,j),2)}, v111, s[8:11], {'s43' if i else '0'} offen offset:{32*j}")
        a("v_mul_u32_u24 v110, 192, v110")
        a("v_lshl_add_u32 v110, v2, 3, v110")
        a(f"s_mul_i32 s30, s24, {2048*192}")
        a("s_add_u32 s30, s30, s31")
        a("v_add_u32 v108, s30, v110")
    def rd(ks, rel):
        b = 16 if rel else 11
        L = []
        for i in range(2):
            L.append(('r', (f"O{ks}{i}", rel), f"ds_read_b128 {vr(OF(ks,i),4)}, v{b+ks} offset:{i*2048}"))
        for j in range(3):
            for hh in range(2):
                L.append(('r', (f"W{ks}{j}{hh}", rel), f"ds_read_b64_tr_b16 {vr(WF(ks,j)+2*hh,2)}, v{b+2+j} offset:{ks*6144 + hh*768}"))
        return L
    def body():
        seq = []
        for ks in range(2):
            if ks == 1: seq.append(('x', '@BAR'))
            r = rd(1-ks, ks)
            ms = []
            for j in range(3):
                for i in range(2):
                    C = vr(ACC(i,j),4)
                    ms.append(('m', [f"O{ks}{i}", f"W{ks}{j}0", f"W{ks}{j}1"], f"v_mfma_f32_16x16x32_bf16 {C}, {vr(WF(ks,j),4)}, {vr(OF(ks,i),4)}, {C}"))
            k = 0
            for idx, m in enumerate(ms):
                seq.append(m)
                n = 2 if idx < 2 else 1
                seq += r[k:k+n]; k += n
        return seq
    def epilogue():
        a("s_waitcnt vmcnt(0)")
        a("s_nop 7")
        for r in range(24, 28): a(f"v_mov_b32 v{r}, 0")
        for i in range(2):
            for j in range(3):
                c = ACC(i,j); x = XR(i,j)
                a(f"v_lshlrev_b32 v40, 16, v{x}")
                a(f"v_and_b32 v41, 0xffff0000, v{x}")
                a(f"v_lshlrev_b32 v42, 16, v{x+1}")
                a(f"v_and_b32 v43, 0xffff0000, v{x+1}")
                for r in range(4): a(f"v_add_f32 v{40+r}, v{40+r}, v{c+r}")
                a(f"v_cvt_pk_bf16_f32 v{x}, v40, v41")
                a(f"v_cvt_pk_bf16_f32 v{x+1}, v42, v43")
                a(f"buffer_store_dwordx2 {vr(x,2)}, v108, s[20:23], 0 offen offset:{i*3072 + 32*j}")
                a(f"v_lshlrev_b32 v40, 16, v{x}")
                a(f"v_and_b32 v41, 0xffff0000, v{x}")
                a(f"v_lshlrev_b32 v42, 16, v{x+1}")
                a(f"v_and_b32 v43, 0xffff0000, v{x+1}")
                for r in range(4):
                    a(f"v_add_f32 v{24+i}, v{24+i}, v{40+r}")
                    a(f"v_fmac_f32 v{26+i}, v{40+r}, v{40+r}")
        a("v_xor_b32 v30, 16, v1"); a("v_lshlrev_b32 v30, 2, v30")
        a("v_xor_b32 v31, 32, v1"); a("v_lshlrev_b32 v31, 2, v31")
        for addr in ("v30", "v31"):
            for r in range(4): a(f"ds_bpermute_b32 v{32+r}, {addr}, v{24+r}")
            a("s_waitcnt lgkmcnt(0)")
            for r in range(4): a(f"v_add_f32 v{24+r}, v{24+r}, v{32+r}")
        X = R*STG
        a("s_lshl_b32 s30, s26, 8")
        a(f"s_add_u32 s30, s30, {X}")
        a("v_lshl_add_u32 v36, v3, 3, s30")
        for i in range(2):
            a(f"v_mov_b32 v{40+2*i}, v{24+i}"); a(f"v_mov_b32 v{41+2*i}, v{26+i}")
            a(f"ds_write_b64 v36, {vr(40+2*i,2)} offset:{i*128}")
        a("s_waitcnt lgkmcnt(0)")
        a("s_barrier")
        a("s_cmp_eq_u32 s42, 0")
        a(f"s_cbranch_scc0 {a.name}_done")
        for i in range(2): a(f"ds_read_b64 {vr(44+2*i,2)}, v36 offset:{256 + i*128}")
        a("s_lshl_b32 s30, s24, 11")
        a("s_add_u32 s30, s30, s27")
        a("v_add_u32 v37, s30, v3")
        a("v_lshlrev_b32 v37, 3, v37")
        a("v_cmp_gt_u32 vcc, 16, v1")
        a("s_waitcnt lgkmcnt(0)")
        for r in range(4): a(f"v_add_f32 v{40+r}, v{40+r}, v{44+r}")
        a("s_and_saveexec_b64 s[52:53], vcc")
        for i in range(2): a(f"buffer_store_dwordx2 {vr(40+2*i,2)}, v37, s[44:47], 0 offen offset:{i*128}")
        a("s_mov_b64 exec, s[52:53]")
    skeleton(a, R, STG, NST, 5, loader_setup, dma, cons_setup, body, (6, 5), epilogue)
    return a.text(), descriptor(a.name, 120, 0), f"; @launch kernel={a.name} grid=(192,1,1) block=(512,1,1) lds={R*STG + 1024}"


def k3b():
    a = Asm("ln_kernel"); header(a)
    a("s_cmp_ge_u32 s2, 576")
    a(f"s_cbranch_scc1 {a.name}_end")
    a("s_load_dwordx2 s[28:29], s[0:1], 80")
    a("s_lshl_b32 s3, s2, 8")
    a("v_add_u32 v1, s3, v0")
    a("v_lshlrev_b32 v2, 4, v1")
    a("s_mul_i32 s4, s2, 683")
    a("s_lshr_b32 s4, s4, 16")
    a("s_mul_i32 s4, s4, 24576")
    a("v_subrev_u32 v3, s4, v1")
    a("v_mul_u32_u24 v3, 43691, v3")
    a("v_lshrrev_b32 v3, 19, v3")
    a("v_lshlrev_b32 v3, 3, v3")
    a("s_waitcnt lgkmcnt(0)")
    srd_ws(a, 8, 28, WS_H, SZ_SD)
    srd_ws(a, 12, 28, WS_G, SZ_SD)
    srd_ws(a, 16, 28, WS_ST, SZ_ST)
    a("buffer_load_dwordx4 v[4:7], v2, s[8:11], 0 offen")
    for p in range(6):
        a(f"s_mov_b32 s20, {p*16384}")
        a(f"buffer_load_dwordx2 {vr(8+2*p,2)}, v3, s[16:19], s20 offen")
    a(f"s_mov_b32 s41, {f32hex(1.0/576)}")
    a(f"s_mov_b32 s42, {f32hex(1e-5)}")
    a("s_waitcnt vmcnt(0)")
    b = 8
    for c in range(2):
        a(f"v_add_f32 v{b+c}, v{b+c}, v{b+2+c}")
        a(f"v_add_f32 v{b+4+c}, v{b+4+c}, v{b+6+c}")
        a(f"v_add_f32 v{b+8+c}, v{b+8+c}, v{b+10+c}")
        a(f"v_add_f32 v{b+c}, v{b+c}, v{b+4+c}")
        a(f"v_add_f32 v{b+c}, v{b+c}, v{b+8+c}")
    a(f"v_mul_f32 v{b}, s41, v{b}")
    a(f"v_mul_f32 v{b+1}, s41, v{b+1}")
    a(f"v_fma_f32 v{b+1}, -v{b}, v{b}, v{b+1}")
    a(f"v_max_f32 v{b+1}, 0, v{b+1}")
    a(f"v_add_f32 v{b+2}, s42, v{b+1}")
    a(f"v_rcp_f32 v{b+3}, v{b+2}")
    a(f"v_rsq_f32 v{b+4}, v{b+2}")
    a("s_nop 0")
    a(f"v_mul_f32 v{b+3}, v{b+3}, v{b+1}")
    a(f"v_add_f32 v{b+3}, s42, v{b+3}")
    a(f"v_rsq_f32 v{b+3}, v{b+3}")
    a("s_nop 0")
    a(f"v_mul_f32 v{b+6}, v{b+3}, v{b+4}")
    a(f"v_mul_f32 v{b+7}, v{b+6}, v{b}")
    for r in range(4):
        a(f"v_lshlrev_b32 v20, 16, v{4+r}")
        a(f"v_and_b32 v21, 0xffff0000, v{4+r}")
        a(f"v_fma_f32 v20, v20, v14, -v15")
        a(f"v_fma_f32 v21, v21, v14, -v15")
        a(f"v_cvt_pk_bf16_f32 v{4+r}, v20, v21")
    a("buffer_store_dwordx4 v[4:7], v2, s[12:15], 0 offen")
    a.lab(f"{a.name}_end")
    a("s_endpgm")
    return a.text(), descriptor(a.name, 24, 0), f"; @launch kernel={a.name} grid=(576,1,1) block=(256,1,1) lds=0"


def build(kernels):
    hdr = "; generated by gen.py\n"
    texts, descs, launches = [], [], []
    for k in kernels:
        t, d, l = k()
        texts.append(t); descs.append(d); launches.append(l)
    if 'dup3' in FL: launches.append(launches[2])
    if 'dup45' in FL: launches = launches[:4] + [launches[3], launches[4], launches[4], launches[5]]
    out = hdr + "\n".join(launches) + "\n"
    out += '.amdgcn_target "amdgcn-amd-amdhsa--gfx950"\n.text\n'
    out += "\n".join(texts)
    out += '.section .rodata,"a"\n' + "\n".join(descs)
    return out

if __name__ == "__main__":
    ks = [k1, k2, k3, k3b, k4, k5, k6]
    out = build(ks)
    open(sys.argv[1] if len(sys.argv) > 1 else "out.s", "w").write(out)
```

```python
import sys, math, os
FL = os.environ.get('FLAGS', '').split(',')

S, D, F, H, DH = 2048, 576, 4608, 32, 18
WS_Q  = 0x0        ; SZ_Q  = 32*2048*48
WS_KV = 0x300000   ; HB = 159744 ; SZ_KV = 32*HB + 8192
WS_O  = 0x800000   ; SZ_SD = 2048*576*2
WS_H  = 0xA80000
WS_G  = 0xD00000
WS_ST = 0xF80000   ; SZ_ST = 6*2048*8
WS_U  = 0x1000000  ; SZ_U = 576*4608*2
WS_P  = 0x1800000  ; SZ_P = 4*2048*576*4
CHUNK = 39936
LOG2E = 1.4426950408889634
QSCALE = (18 ** -0.5) * LOG2E

import struct
def f32hex(x):
    return "0x%08x" % struct.unpack("<I", struct.pack("<f", x))[0]

class Asm:
    def __init__(s, name):
        s.name = name; s.t = []; s.nl = 0
    def __call__(s, line):
        if s.name in ('mlp1_kernel', 'mlp2_kernel'):
            if 'gnomfma' in FL and line.startswith('v_mfma'): return
            if 'gnords' in FL and line.startswith('ds_read'): return
            if 'gnodma' in FL and line.startswith('buffer_load') and line.endswith('lds'): return
            if 'gnobar' in FL and line.startswith('s_barrier'): return
            if 'gnopk' in FL and (line.startswith('v_pk_fma') or line.startswith('v_cvt_pk_bf16_f32 v3') or line.startswith('v_cvt_pk_bf16_f32 v4') or line.startswith('v_cvt_pk_bf16_f32 v5') or line.startswith('v_cvt_pk_bf16_f32 v6') or line.startswith('v_cvt_pk_bf16_f32 v7') or line.startswith('v_lshlrev_b32 v28') or line.startswith('v_and_b32 v29') or line.startswith('v_cvt_pk_bf16_f32 v8') or line.startswith('v_cvt_pk_bf16_f32 v9') or line.startswith('v_cvt_pk_bf16_f32 v10') or line.startswith('v_cvt_pk_bf16_f32 v11')): return
            if 'gnowr' in FL and line.startswith('ds_write_b128'): return
            if 'gnohl' in FL and line.startswith('buffer_load_dwordx4 v['): return
        if s.name == 'qkv_kernel':
            if 'k1nostore' in FL and line.startswith('buffer_store'): return
            if 'k1nomfma' in FL and line.startswith('v_mfma'): return
            if 'k1nodot' in FL and line.startswith('v_dot2c'): return
            if 'k1notr' in FL and line.startswith('ds_read_b64_tr'): return
            if 'k1noa' in FL and line.startswith('buffer_load_dwordx4 v['): return
            if 'k1nodma' in FL and line.startswith('buffer_load') and line.endswith('lds'): return
            if 'k1nobar' in FL and line.startswith('s_barrier'): return
        s.t.append("    " + line)
    def lab(s, l):
        s.t.append(l + ":")
    def newlabel(s, p="L"):
        s.nl += 1
        return f"{s.name}_{p}{s.nl}"
    def text(s):
        return "\n".join(s.t) + "\n"

def vr(b, n):  return f"v[{b}:{b+n-1}]"
def ar(b, n):  return f"a[{b}:{b+n-1}]"
def sr(b, n):  return f"s[{b}:{b+n-1}]"

def srd_from_arg(a, sreg, argoff, size, tmp):
    a(f"s_mov_b32 s{sreg}, s{tmp}")
    a(f"s_mov_b32 s{sreg+1}, s{tmp+1}")
    a(f"s_mov_b32 s{sreg+2}, {size}")
    a(f"s_mov_b32 s{sreg+3}, 0x00020000")

def srd_ws(a, sreg, wsreg, off, size):
    a(f"s_add_u32 s{sreg}, s{wsreg}, {off}")
    a(f"s_addc_u32 s{sreg+1}, s{wsreg+1}, 0")
    a(f"s_mov_b32 s{sreg+2}, {size}")
    a(f"s_mov_b32 s{sreg+3}, 0x00020000")

def stamp_begin(a, wsreg=28):
    if 'stamp_' + a.name[:4] in FL:
        srd_ws(a, 80, wsreg, 0x3000000, 0x100000)
        a("s_memtime s[84:85]"); a("s_memrealtime s[86:87]")
def stamp_mid(a, k):
    if 'stamp_' + a.name[:4] in FL:
        a(f"s_memtime s[{88+2*k}:{89+2*k}]")
def stamp_end(a, nwaves, wavereg=26):
    if 'stamp_' + a.name[:4] in FL:
        a("s_memtime s[92:93]"); a("s_memrealtime s[94:95]"); a("s_waitcnt lgkmcnt(0)")
        a("s_sub_u32 s88, s88, s84"); a("s_sub_u32 s92, s92, s84"); a("s_sub_u32 s94, s94, s86"); a("s_sub_u32 s90, s90, s84")
        a("v_mov_b32 v16, s88"); a("v_mov_b32 v17, s92"); a("v_mov_b32 v18, s94"); a("v_mov_b32 v19, s90")
        a(f"s_mul_i32 s70, s2, {nwaves}"); a(f"s_add_u32 s70, s70, s{wavereg}"); a("s_lshl_b32 s70, s70, 4")
        a("v_mov_b32 v20, s70")
        a("buffer_store_dwordx4 v[16:19], v20, s[80:83], 0 offen")

def prefetch(a, srd, nlines, nshare, share_sgpr, addr_fn, vt=250, wave_sgpr=26, nwaves=4, dst=255):
    if 'pf' not in FL: return
    per = (nlines + nshare - 1)//nshare
    nt = (per + 64*nwaves - 1)//(64*nwaves)
    a(f"s_lshl_b32 s60, s{wave_sgpr}, 6")
    for t in range(nt):
        a(f"v_add_u32 v{vt}, s60, v1")
        if t: a(f"v_add_u32 v{vt}, {t*nwaves*64}, v{vt}")
        if nshare > 1:
            a(f"v_mul_u32_u24 v{vt}, {nshare}, v{vt}")
            a(f"v_add_u32 v{vt}, s{share_sgpr}, v{vt}")
        addr_fn(vt, vt+1)
        a(f"buffer_load_dword v{dst}, v{vt+1}, s[{srd}:{srd+3}], 0 offen")

def header(a):
    a.t.append(f".globl {a.name}\n.p2align 8\n.type {a.name},@function\n{a.name}:")

def descriptor(name, vgpr, agpr, sgpr=96):
    acc = (vgpr + 3) // 4 * 4
    return f""".p2align 6
.amdhsa_kernel {name}
  .amdhsa_next_free_vgpr {acc + agpr if agpr else vgpr}
  .amdhsa_next_free_sgpr {sgpr}
  .amdhsa_accum_offset {acc}
  .amdhsa_group_segment_fixed_size 0
  .amdhsa_kernarg_size 88
  .amdhsa_user_sgpr_count 2
  .amdhsa_user_sgpr_kernarg_segment_ptr 1
  .amdhsa_system_sgpr_workgroup_id_x 1
.end_amdhsa_kernel
"""

def interleave(main, *fill):
    out = []
    n = len(main)
    pos = [0]*len(fill)
    for idx, m in enumerate(main):
        out.append(m)
        for fi, f in enumerate(fill):
            tgt = (idx+1)*len(f)//n
            while pos[fi] < tgt:
                out.append(f[pos[fi]]); pos[fi] += 1
    return out

def k2():
    a = Asm("attn_kernel"); header(a)
    Q1, Q2 = 8, 12
    KF1 = lambda b: 16 + 8*b
    KF2 = lambda b: 20 + 8*b
    VF = lambda b, t: 32 + 8*b + 4*t
    SS = lambda b: 48 + 16*b
    PP = lambda b: 80 + 8*b
    E = 96; O = 112
    a("s_cmp_ge_u32 s2, 256")
    a(f"s_cbranch_scc1 {a.name}_end")
    a("s_load_dwordx2 s[28:29], s[0:1], 80")
    a("s_load_dwordx2 s[4:5], s[0:1], 32")
    a("s_load_dwordx2 s[6:7], s[0:1], 48")
    a("s_load_dwordx2 s[64:65], s[0:1], 16")
    a("s_and_b32 s24, s2, 7")
    a("s_lshl_b32 s24, s24, 2")
    a("s_lshr_b32 s25, s2, 3")
    a("s_and_b32 s25, s25, 3")
    a("s_add_u32 s24, s24, s25")
    a("s_lshr_b32 s25, s2, 5")
    a("v_and_b32 v1, 63, v0")
    a("v_lshrrev_b32 v2, 5, v1")
    a("v_and_b32 v3, 31, v1")
    a("v_lshrrev_b32 v4, 6, v0")
    a("s_nop 1")
    a("v_readfirstlane_b32 s26, v4")
    a("s_waitcnt lgkmcnt(0)")
    srd_ws(a, 8, 28, WS_Q, SZ_Q)
    srd_ws(a, 12, 28, WS_KV, SZ_KV)
    srd_ws(a, 16, 28, WS_O, SZ_SD)
    srd_from_arg(a, 44, 32, S*F*2, 4)
    srd_from_arg(a, 48, 48, S*F*2, 6)
    srd_from_arg(a, 76, 16, D*D*2, 64)
    if 'stamp' in FL:
        srd_ws(a, 20, 28, 0x3000000, 0x100000)
        a("s_memtime s[72:73]"); a("s_memrealtime s[74:75]")
    lpf = f"{a.name}_nopf"
    NPF = 4
    a("s_cmp_ge_u32 s26, 8")
    a(f"s_cbranch_scc0 {lpf}")
    a("s_and_b32 s52, s2, 7")
    a("s_lshr_b32 s53, s2, 3")
    a("s_mul_i32 s53, s53, 576")
    a("s_sub_u32 s54, s26, 8")
    a(f"s_mul_i32 s54, s54, {576//NPF}")
    a("s_add_u32 s53, s53, s54")
    a("s_lshr_b32 s56, s52, 1")
    a(f"s_mul_i32 s56, s56, {1152*4096}")
    a("s_and_b32 s57, s52, 1")
    a("s_lshl_b32 s57, s57, 11")
    a("s_add_u32 s56, s56, s57")
    a("s_mul_i32 s57, s52, 1152")
    a(f"s_mul_i32 s30, s24, {HB}")
    a("s_sub_u32 s31, s26, 8")
    a("s_lshl_b32 s31, s31, 10")
    a("s_add_u32 s31, s31, 40960")
    a("s_add_u32 s30, s30, s31")
    a("v_lshl_add_u32 v4, v1, 4, s30")
    a("s_barrier")
    for n in range(30):
        a(f"s_add_u32 m0, s31, {n*4096}")
        a(f"s_mov_b32 s32, {n*4096}")
        a(f"buffer_load_dwordx4 v4, s[12:15], s32 offen lds")
    if 'pfearly' not in FL:
        a("s_waitcnt vmcnt(0)")
        a("s_barrier")
    LPI = 48
    a("s_mov_b32 exec_hi, 0xffff")
    if 'noapf' not in FL:
        a("s_lshr_b32 s58, s2, 3")
        a("s_lshl_b32 s58, s58, 2")
        a("s_add_u32 s58, s58, s26")
        a("s_sub_u32 s58, s58, 8")
        a("s_mul_i32 s58, s58, 41")
        a("v_add_u32 v5, s58, v1")
        a("v_lshlrev_b32 v6, 7, v5")
        a("buffer_load_dword v10, v6, s[76:79], 0 offen")
    a("s_lshr_b32 s58, s2, 3")
    a("s_lshl_b32 s58, s58, 2")
    a("s_add_u32 s58, s58, s26")
    a("s_sub_u32 s58, s58, 8")
    xp = 'xpf' in FL
    a(f"s_mul_i32 s59, s58, {96 if xp else 144}")
    if xp: a("s_add_u32 s59, s59, 6144")
    for n in range((2 if xp else 3) if 'noapf' not in FL else 0):
        a("v_add_u32 v20, s59, v1")
        if n: a(f"v_add_u32 v20, {48*n}, v20")
        a("v_mul_u32_u24 v21, 58255, v20")
        a("v_lshrrev_b32 v21, 19, v21")
        a("v_mul_u32_u24 v22, 9, v21")
        a("v_sub_u32 v22, v20, v22")
        a("v_mul_u32_u24 v21, 9216, v21")
        a("v_lshl_add_u32 v21, v22, 7, v21")
        a("buffer_load_dword v23, v21, s[44:47], s57 offen")
    a(f"s_mul_i32 s59, s58, {108 if xp else 144}")
    for n in range(3 if 'noapf' not in FL else 0):
        a("v_add_u32 v5, s59, v1")
        if n: a(f"v_add_u32 v5, {(36 if xp else 48)*n}, v5")
        a("v_lshrrev_b32 v6, 4, v5")
        a("v_lshlrev_b32 v6, 12, v6")
        a("v_and_b32 v7, 15, v5")
        a("v_lshl_add_u32 v6, v7, 7, v6")
        a("buffer_load_dword v9, v6, s[48:51], s56 offen")
    if 'pfearly' in FL:
        a(f"s_waitcnt vmcnt({7 if 'noapf' not in FL else 0})")
        a("s_barrier")
    a("s_endpgm")
    a.lab(lpf)
    a("s_lshl_b32 s27, s25, 8")
    a("s_lshl_b32 s30, s26, 5")
    a("s_add_u32 s27, s27, s30")
    a("s_lshl_b32 s30, s24, 11")
    a("s_add_u32 s30, s30, s27")
    a("v_add_u32 v128, s30, v3")
    a("v_mul_u32_u24 v128, 48, v128")
    a("v_lshl_add_u32 v129, v2, 4, v128")
    a(f"buffer_load_dwordx4 {vr(Q1,4)}, v129, s[8:11], 0 offen")
    a(f"buffer_load_dword v{Q2}, v128, s[8:11], 0 offen offset:32")
    a(f"s_mul_i32 s30, s24, {HB}")
    a("s_lshl_b32 s31, s26, 10")
    a("s_add_u32 s30, s30, s31")
    a("v_lshl_add_u32 v4, v1, 4, s30")
    for n in range(5):
        a(f"s_add_u32 m0, s31, {n*8192}")
        a(f"s_mov_b32 s32, {n*8192}")
        a(f"buffer_load_dwordx4 v4, s[12:15], s32 offen lds")
    a("v_lshlrev_b32 v5, 4, v1")
    a("v_lshlrev_b32 v6, 3, v3")
    a("v_add_u32 v6, 16384, v6")
    a("v_min_u32 v7, 18, v3")
    a("v_lshlrev_b32 v7, 4, v7")
    a("v_mul_u32_u24 v130, 304, v2")
    a("v_add_u32 v7, v7, v130")
    a("v_add_u32 v7, 20480, v7")
    a("v_mov_b32 v131, v5"); a("v_mov_b32 v132, v6"); a("v_mov_b32 v133, v7")
    for r in list(range(KF2(0)+2, KF2(0)+4)) + list(range(KF2(1)+2, KF2(1)+4)) + list(range(32, 48)) + list(range(80, 96)) + list(range(O, O+16)) + [Q2+1, Q2+2, Q2+3]:
        a(f"v_mov_b32 v{r}, 0")
    a("v_cmp_gt_u32 s[34:35], 32, v1")
    a("s_waitcnt vmcnt(0)")
    a(f"v_cndmask_b32 v{Q2}, 0, v{Q2}, s[34:35]")
    a("s_barrier")
    if 'stamp' in FL: a("s_memtime s[64:65]")
    def kread(t, b):
        off = (t // 16)*CHUNK; tt = t % 16
        return [f"ds_read_b128 {vr(KF1(b),4)}, v5 offset:{off + tt*1024}",
                f"ds_read_b64 {vr(KF2(b),2)}, v6 offset:{off + tt*256}"]
    def vread(t, b):
        return [f"ds_read_b128 {vr(VF(b,0),4)}, v7 offset:{t*1216}",
                f"ds_read_b128 {vr(VF(b,1),4)}, v7 offset:{t*1216 + 608}"]
    def qk(b):
        return [f"v_mfma_f32_32x32x16_bf16 {vr(SS(b),16)}, {vr(KF1(b),4)}, {vr(Q1,4)}, 0",
                f"v_mfma_f32_32x32x16_bf16 {vr(SS(b),16)}, {vr(KF2(b),4)}, {vr(Q2,4)}, {vr(SS(b),16)}"]
    def pv(b):
        return [f"v_mfma_f32_32x32x16_bf16 {vr(O,16)}, {vr(VF(b,0),4)}, {vr(PP(b),4)}, {vr(O,16)}",
                f"v_mfma_f32_32x32x16_bf16 {vr(O,16)}, {vr(VF(b,1),4)}, {vr(PP(b)+4,4)}, {vr(O,16)}"]
    for x in kread(0, 0) + kread(1, 1): a(x)
    a("s_waitcnt lgkmcnt(0)")
    for x in qk(0): a(x)
    a("s_nop 7"); a("s_nop 7")
    a(f"v_max_f32 v134, v{SS(0)}, v{SS(0)+1}")
    for r in range(2, 16): a(f"v_max_f32 v134, v134, v{SS(0)+r}")
    a("v_mov_b32 v135, v134")
    a("s_nop 1")
    a("v_permlane32_swap_b32 v134, v135")
    a("s_nop 1")
    a("v_max_f32 v134, v134, v135")
    a("v_sub_f32 v134, 0, v134")
    a("v_cvt_pk_bf16_f32 v134, v134, 0")
    a("s_nop 0")
    a(f"v_cndmask_b32 v{Q2+1}, 0, v134, s[34:35]")
    a("s_nop 1")
    for x in qk(0): a(x)
    a("s_mov_b32 s33, 0")
    if 'aprio' in FL:
        l = a.newlabel("pr")
        a("s_cmp_ge_u32 s26, 4")
        a(f"s_cbranch_scc0 {l}")
        a("s_setprio 1")
        a.lab(l)
    a("s_nop 7"); a("s_nop 3")
    a.lab(f"{a.name}_loop")
    for t in range(16):
        b = t % 2; nb = 1 - b
        if t == 14:
            l = a.newlabel("nb")
            a("s_cmp_eq_u32 s33, 0")
            a(f"s_cbranch_scc0 {l}")
            a("s_waitcnt vmcnt(0)")
            a("s_barrier")
            a.lab(l)
        a("s_waitcnt lgkmcnt(0)")
        e = [f"v_exp_f32 v{E+r}, v{SS(b)+r}" for r in range(16)]
        c = [f"v_cvt_pk_bf16_f32 v{PP(b)+r}, v{E+2*r}, v{E+2*r+1}" for r in range(8)]
        m1 = qk(nb); m2 = pv(nb)
        kr = kread(t+2, b); vrd = vread(t, b)
        if 'aord2' in FL:
            seq = [m1[0], kr[0]] + e[0:3] + [kr[1]] + e[3:5] + [m1[1], vrd[0]] + e[5:8] + [c[0], vrd[1], c[1]] + e[8:9] + [m2[0]] + e[9:12] + [c[2], c[3]] + e[12:13] + [m2[1]] + e[13:16] + [c[4], c[5], c[6], c[7]]
        elif 'aord3' in FL:
            seq = [kr[0], kr[1], vrd[0], vrd[1], m1[0]] + e[0:5] + [m1[1]] + e[5:8] + [c[0], c[1], c[2], m2[0]] + e[8:13] + [m2[1]] + e[13:16] + [c[3], c[4], c[5], c[6], c[7]]
        else:
            seq = [m1[0], kr[0], kr[1]] + e[0:4] + [vrd[0], m1[1], vrd[1]] + e[4:8] + [c[0], c[1], m2[0]] + e[8:12] + [c[2], c[3], m2[1]] + e[12:16] + [c[4], c[5], c[6], c[7]]
        for x in seq: a(x)
    a(f"v_add_u32 v5, {CHUNK}, v5"); a(f"v_add_u32 v6, {CHUNK}, v6"); a(f"v_add_u32 v7, {CHUNK}, v7")
    a("s_add_u32 s33, s33, 1")
    a("s_cmp_lt_u32 s33, 4")
    a(f"s_cbranch_scc1 {a.name}_loop")
    a("s_waitcnt lgkmcnt(0)")
    for x in pv(1): a(x)
    if 'stamp' in FL:
        a("s_memtime s[66:67]"); a("s_memrealtime s[68:69]"); a("s_waitcnt lgkmcnt(0)")
        a("s_sub_u32 s64, s64, s72"); a("s_sub_u32 s66, s66, s72"); a("s_sub_u32 s68, s68, s74")
        a("v_mov_b32 v140, s64"); a("v_mov_b32 v141, s66"); a("v_mov_b32 v142, s68"); a("v_mov_b32 v143, s72")
        a("s_lshl_b32 s70, s2, 3"); a("s_add_u32 s70, s70, s26"); a("s_lshl_b32 s70, s70, 4")
        a("v_mov_b32 v139, s70")
        a("buffer_store_dwordx4 v[140:143], v139, s[20:23], 0 offen")
    a.lab(f"{a.name}_fin")
    a("s_nop 7"); a("s_nop 7")
    a(f"v_mov_b32 v134, v{O+10}")
    a(f"v_mov_b32 v135, v{O+10}")
    a("s_nop 1")
    a("v_permlane32_swap_b32 v134, v135")
    a(f"s_mov_b32 s36, {f32hex(2.0**40)}")
    a("s_nop 0")
    a("v_cmp_nlt_f32 vcc, v134, s36") if False else a("v_cmp_ngt_f32 vcc, s36, v134")
    a("s_cmp_eq_u32 s33, 99")
    a(f"s_cbranch_scc1 {a.name}_store")
    a(f"s_cbranch_vccnz {a.name}_slow")
    a.lab(f"{a.name}_store")
    a("v_rcp_f32 v134, v134")
    a("s_nop 0")
    for r in range(10): a(f"v_mul_f32 v{O+r}, v{O+r}, v134")
    for r in range(5): a(f"v_cvt_pk_bf16_f32 v{E+r}, v{O+2*r}, v{O+2*r+1}")
    a("v_add_u32 v128, s27, v3")
    a("v_mul_u32_u24 v128, 1152, v128")
    a("v_lshl_add_u32 v128, v2, 3, v128")
    a("s_mul_i32 s30, s24, 36")
    a(f"buffer_store_dwordx2 {vr(E,2)}, v128, s[16:19], s30 offen")
    a(f"buffer_store_dwordx2 {vr(E+2,2)}, v128, s[16:19], s30 offen offset:16")
    a("s_and_saveexec_b64 s[38:39], s[34:35]")
    a(f"buffer_store_dword v{E+4}, v128, s[16:19], s30 offen offset:32")
    a("s_endpgm")
    a.lab(f"{a.name}_slow")
    a("v_mov_b32 v5, v131"); a("v_mov_b32 v6, v132"); a("v_mov_b32 v7, v133")
    a(f"v_mov_b32 v{Q2+1}, 0")
    for r in range(16): a(f"v_mov_b32 v{O+r}, 0")
    a("v_mov_b32 v136, 0xff800000")
    a("s_mov_b32 s33, 0")
    a.lab(f"{a.name}_sl1")
    a("s_mov_b32 s37, 0")
    a.lab(f"{a.name}_sl2")
    for x in kread(0, 0) + vread(0, 0): a(x)
    a("s_waitcnt lgkmcnt(0)")
    for x in qk(0): a(x)
    a("s_nop 7"); a("s_nop 7")
    a(f"v_max_f32 v134, v{SS(0)}, v{SS(0)+1}")
    for r in range(2, 16): a(f"v_max_f32 v134, v134, v{SS(0)+r}")
    a("v_mov_b32 v135, v134")
    a("s_nop 1")
    a("v_permlane32_swap_b32 v134, v135")
    a("s_nop 1")
    a("v_max_f32 v134, v134, v135")
    a("v_max_f32 v134, v134, v136")
    a("v_sub_f32 v135, v136, v134")
    a("v_exp_f32 v135, v135")
    a("v_mov_b32 v136, v134")
    for r in range(16): a(f"v_sub_f32 v{E+r}, v{SS(0)+r}, v134")
    for r in range(16): a(f"v_exp_f32 v{E+r}, v{E+r}")
    for r in range(16): a(f"v_mul_f32 v{O+r}, v{O+r}, v135")
    for r in range(8): a(f"v_cvt_pk_bf16_f32 v{PP(0)+r}, v{E+2*r}, v{E+2*r+1}")
    a("s_nop 1")
    for x in pv(0): a(x)
    a("s_nop 7"); a("s_nop 7")
    a("v_add_u32 v5, 1024, v5"); a("v_add_u32 v6, 256, v6"); a("v_add_u32 v7, 1216, v7")
    a("s_add_u32 s37, s37, 1")
    a("s_cmp_lt_u32 s37, 16")
    a(f"s_cbranch_scc1 {a.name}_sl2")
    a(f"v_add_u32 v5, {CHUNK-16*1024}, v5"); a(f"v_add_u32 v6, {CHUNK-16*256}, v6"); a(f"v_add_u32 v7, {CHUNK-16*1216}, v7")
    a("s_add_u32 s33, s33, 1")
    a("s_cmp_lt_u32 s33, 4")
    a(f"s_cbranch_scc1 {a.name}_sl1")
    a("s_mov_b32 s33, 99")
    a(f"s_branch {a.name}_fin")
    a.lab(f"{a.name}_end")
    a("s_endpgm")
    return a.text(), descriptor(a.name, 144, 0), f"; @launch kernel={a.name} grid=(256,1,1) block=(768,1,1) lds=163840"

def swap23(a, p, t1, t2):
    a(f"v_and_b32 v{t1}, 0x33, v{p}")
    a(f"v_and_b32 v{t2}, 4, v{p}")
    a(f"v_lshlrev_b32 v{t2}, 1, v{t2}")
    a(f"v_or_b32 v{t1}, v{t1}, v{t2}")
    a(f"v_and_b32 v{t2}, 8, v{p}")
    a(f"v_lshrrev_b32 v{t2}, 1, v{t2}")
    a(f"v_or_b32 v{t1}, v{t1}, v{t2}")

def sched_waits(seq):
    issued = []
    out = []
    known = 0
    for it in range(2):
        for item in seq:
            if item[0] == 'r':
                name, rel = item[1]
                issued.append((name, it + rel))
                if it == 1: out.append(item[2])
            elif item[0] == 'm':
                if it == 1:
                    idx = max(i for i, (n, t) in enumerate(issued) if t == it and n in item[1])
                    assert len([1 for (n, t) in issued if t == it and n in item[1]]) == len(item[1]), item
                    if idx + 1 > known:
                        cnt = min(len(issued) - (idx + 1), 15)
                        out.append(f"s_waitcnt lgkmcnt({cnt})")
                        known = idx + 1
                    out.append(item[2])
            else:
                if it == 1: out.append(item[1])
    return out

def skeleton(a, R, STG, NST, NLD, loader_setup, dma, cons_setup, body, nbase, epilogue, custom_loader=None):
    skeleton2(a, R, STG, NST, NLD, loader_setup, dma, cons_setup, [(None, body, epilogue)], nbase, custom_loader)

def skeleton2(a, R, STG, NST, NLD, loader_setup, dma, cons_setup, variants, nbase, custom_loader=None, tail=None):
    a("s_cmp_ge_u32 s26, 4")
    a(f"s_cbranch_scc0 {a.name}_cons")
    a("s_sub_u32 s26, s26, 4")
    if custom_loader:
        a("s_cmp_ge_u32 s26, 4")
        a(f"s_cbranch_scc0 {a.name}_std")
        a("s_sub_u32 s26, s26, 4")
        custom_loader()
        a("s_endpgm")
        a.lab(f"{a.name}_std")
    std_loader(a, R, STG, NST, NLD, loader_setup, dma, tail)
    cons_part(a, R, STG, NST, cons_setup, variants, nbase)

def std_loader(a, R, STG, NST, NLD, loader_setup, dma, tail=None):
    loader_setup()
    a("s_mov_b32 s34, 0")
    def dma_adv():
        dma()
        a(f"s_add_u32 s34, s34, {STG}")
        a(f"s_cmp_eq_u32 s34, {R*STG}")
        a("s_cselect_b32 s34, 0, s34")
    for st in range(R-1): dma_adv()
    a(f"s_waitcnt vmcnt({(R-2)*NLD})")
    a("s_barrier")
    a("s_mov_b32 s40, 0")
    a.lab(f"{a.name}_lloop")
    a(f"s_waitcnt vmcnt({(R-3)*NLD})")
    a("s_barrier")
    dma_adv()
    a("s_add_u32 s40, s40, 1")
    a(f"s_cmp_lt_u32 s40, {NST-R+1}")
    a(f"s_cbranch_scc1 {a.name}_lloop")
    extra = tail() if tail else 0
    for k in range(R-1):
        a(f"s_waitcnt vmcnt({max(R-3-k,0)*NLD + extra})")
        a("s_barrier")
    a("s_endpgm")

def cons_part(a, R, STG, NST, cons_setup, variants, nbase):
    a.lab(f"{a.name}_cons")
    cons_setup()
    nb0, n = nbase
    for r in range(n):
        a(f"v_mov_b32 v{nb0+n+r}, v{nb0+r}")
        a(f"v_mov_b32 v{nb0+2*n+r}, v{nb0+r}")
    a("s_mov_b32 s39, 0")
    a("s_mov_b32 s40, 0")
    a("s_barrier")
    stamp_mid(a, 0)
    for vi, (cmp, body, epilogue) in enumerate(variants):
        if vi: a.lab(f"{a.name}_var{vi}")
        if cmp:
            a(cmp); a(f"s_cbranch_scc1 {a.name}_var{vi+1}")
        seq = body()
        for item in seq:
            if item[0] == 'r' and item[1][1] == 1: a(item[2])
        a.lab(f"{a.name}_loop{vi}")
        a(f"s_add_u32 s39, s39, {STG}")
        a(f"s_cmp_eq_u32 s39, {R*STG}")
        a("s_cselect_b32 s39, 0, s39")
        for r in range(n):
            a(f"v_mov_b32 v{nb0+n+r}, v{nb0+2*n+r}")
            a(f"v_add_u32 v{nb0+2*n+r}, s39, v{nb0+r}")
        for x in sched_waits(seq):
            if x == '@BAR': a("s_barrier")
            elif x.startswith('@LAB '): a.lab(x[5:])
            else: a(x)
        a("s_add_u32 s40, s40, 1")
        a(f"s_cmp_lt_u32 s40, {NST}")
        a(f"s_cbranch_scc1 {a.name}_loop{vi}")
        a("s_waitcnt lgkmcnt(0)")
        stamp_mid(a, 1)
        epilogue()
    a.lab(f"{a.name}_done")
    stamp_end(a, 8)
    a.lab(f"{a.name}_end")
    a("s_endpgm")

def common_entry(a, nwg, args):
    a(f"s_cmp_ge_u32 s2, {nwg}")
    a(f"s_cbranch_scc1 {a.name}_end")
    for reg, off in args: a(f"s_load_dwordx2 s[{reg}:{reg+1}], s[0:1], {off}")
    a("v_and_b32 v1, 63, v0")
    a("v_lshrrev_b32 v2, 4, v1")
    a("v_and_b32 v3, 15, v1")
    a("v_lshrrev_b32 v4, 6, v0")
    a("s_nop 1")
    a("v_readfirstlane_b32 s26, v4")

def k4():
    a = Asm("mlp1_kernel"); header(a)
    R = 5; STG = 28672; NST = 32
    ACC = lambda b: 96 + 16*b
    WF = lambda ks: 24 + ks*4
    GF = lambda ks, b: 40 + (ks*3 + b)*4
    common_entry(a, 256 if 'xpf' in FL else 216, [(4, 32), (6, 40), (28, 80), (64, 48)])
    a("s_and_b32 s24, s2, 7")
    a("s_mul_i32 s24, s24, 27")
    a("s_lshr_b32 s25, s2, 3")
    a("s_add_u32 s24, s24, s25")
    a("s_mul_i32 s25, s24, 10923")
    a("s_lshr_b32 s25, s25, 16")
    a("s_mul_i32 s30, s25, 6")
    a("s_sub_u32 s24, s24, s30")
    a("s_waitcnt lgkmcnt(0)")
    srd_from_arg(a, 8, 32, S*F*2, 4)
    srd_from_arg(a, 12, 40, F*2, 6)
    srd_ws(a, 16, 28, WS_G, SZ_SD)
    srd_ws(a, 20, 28, WS_U, SZ_U)
    srd_from_arg(a, 68, 48, S*F*2, 64)
    lx = f"{a.name}_work"
    a("s_cmp_ge_u32 s2, 216")
    a(f"s_cbranch_scc0 {lx}")
    a("s_and_b32 s52, s2, 7")
    a("s_lshr_b32 s53, s2, 3")
    a("s_sub_u32 s54, s53, 27")
    a("s_lshl_b32 s54, s54, 3")
    a("s_add_u32 s54, s54, s26")
    a("s_mul_i32 s54, s54, 116")
    a("s_add_u32 s54, s54, 13824")
    a("s_lshr_b32 s56, s52, 1")
    a(f"s_mul_i32 s56, s56, {1152*4096}")
    a("s_and_b32 s57, s52, 1")
    a("s_lshl_b32 s57, s57, 11")
    a("s_add_u32 s56, s56, s57")
    a("s_mov_b32 exec_hi, 0xffff")
    for n in range(3 if 'xpf' in FL else 0):
        a("v_add_u32 v5, s54, v1")
        if n: a(f"v_add_u32 v5, {40*n}, v5")
        a("v_min_u32 v5, 18431, v5")
        a("v_lshrrev_b32 v6, 4, v5")
        a("v_lshlrev_b32 v6, 12, v6")
        a("v_and_b32 v7, 15, v5")
        a("v_lshl_add_u32 v6, v7, 7, v6")
        a("buffer_load_dword v9, v6, s[68:71], s56 offen")
    a("s_endpgm")
    a.lab(lx)
    stamp_begin(a)
    def loader_setup():
        a("s_lshl_b32 s30, s26, 4")
        a("v_add_u32 v10, s30, v2")
        a("v_mul_u32_u24 v10, 9216, v10")
        a("v_lshlrev_b32 v11, 2, v2")
        a("v_xor_b32 v11, v11, v3")
        a("v_lshl_add_u32 v10, v11, 4, v10")
        a("s_lshl_b32 s30, s25, 8")
        a("v_add_u32 v5, s30, v10")
        a("s_mul_i32 s30, s26, 3072")
        a(f"s_mul_i32 s31, s24, {2048*192}")
        a("s_add_u32 s30, s30, s31")
        a("v_lshl_add_u32 v6, v1, 4, s30")
        a("s_lshl_b32 s32, s26, 12")
        a("s_mul_i32 s33, s26, 3072")
        a("s_add_u32 s33, s33, 16384")
        a("s_mov_b32 s35, 0"); a("s_mov_b32 s36, 0")
    def dma():
        a("s_add_u32 s37, s34, s32")
        for m in range(4):
            a(f"s_add_u32 m0, s37, {m*1024}")
            a(f"s_add_u32 s38, s35, {m*36864}")
            a("buffer_load_dwordx4 v5, s[8:11], s38 offen lds")
        a("s_add_u32 m0, s34, s33")
        a("s_nop 0")
        for m in range(3):
            a(f"buffer_load_dwordx4 v6, s[16:19], s36 offen offset:{m*1024} lds")
        a(f"s_add_u32 s35, s35, {64*9216}")
        a(f"s_add_u32 s36, s36, {64*192}")
    def cons_setup():
        a("v_lshrrev_b32 v150, 2, v3")
        a("v_and_b32 v151, 3, v3")
        a("v_lshrrev_b32 v152, 1, v2")
        a("v_and_b32 v153, 1, v2")
        a("v_lshl_add_u32 v154, v152, 3, v150")
        a("v_lshrrev_b32 v155, 1, v151")
        a("v_lshl_add_u32 v155, v153, 1, v155")
        a("s_lshl_b32 s30, s26, 2")
        a("v_add_u32 v155, s30, v155")
        a("v_lshlrev_b32 v156, 2, v150")
        a("v_xor_b32 v155, v155, v156")
        a("v_lshlrev_b32 v155, 4, v155")
        a("v_lshl_add_u32 v155, v154, 8, v155")
        a("v_and_b32 v156, 1, v151")
        a("v_lshl_add_u32 v10, v156, 3, v155")
        a("v_mul_u32_u24 v155, 192, v154")
        a("v_lshl_add_u32 v155, v153, 5, v155")
        a("v_lshl_add_u32 v155, v151, 3, v155")
        a("v_add_u32 v11, 16384, v155")
        a("v_lshrrev_b32 v4, 5, v1")
        a("s_lshl_b32 s30, s25, 8")
        a("s_lshl_b32 s31, s26, 6")
        a("s_add_u32 s30, s30, s31")
        a("v_lshl_add_u32 v150, v4, 3, s30")
        for qd in range(4): a(f"buffer_load_dwordx2 {vr(160+2*qd,2)}, v150, s[12:15], 0 offen offset:{16*qd}")
        for r in range(96, 144): a(f"v_mov_b32 v{r}, 0")
    def rd(ks, rel):
        wb, gb = ("v14", "v15") if rel else ("v12", "v13")
        L = []
        for hh in range(2):
            L.append(('r', (f"W{ks}{hh}", rel), f"ds_read_b64_tr_b16 {vr(WF(ks)+2*hh,2)}, {wb} offset:{ks*4096 + hh*1024}"))
        for b in range(3):
            for hh in range(2):
                L.append(('r', (f"G{ks}{b}{hh}", rel), f"ds_read_b64_tr_b16 {vr(GF(ks,b)+2*hh,2)}, {gb} offset:{ks*3072 + hh*768 + 64*b}"))
        return L
    def body():
        seq = []
        for ks in range(4):
            if ks == 2: seq.append(('x', '@BAR'))
            r = rd((ks+2) % 4, 1 if ks >= 2 else 0)
            for b in range(3):
                seq.append(('m', [f"W{ks}0", f"W{ks}1", f"G{ks}{b}0", f"G{ks}{b}1"],
                            f"v_mfma_f32_32x32x16_bf16 {vr(ACC(b),16)}, {vr(WF(ks),4)}, {vr(GF(ks,b),4)}, {vr(ACC(b),16)}"))
                seq += r[3*b:3*b+3]
        return seq
    def epilogue():
        P = 80
        a("s_barrier")
        a(f"s_mul_i32 s47, s26, {96*P}")
        a("v_and_b32 v151, 31, v1")
        a(f"v_mul_u32_u24 v151, {P}, v151")
        a("v_lshl_add_u32 v151, v4, 3, v151")
        a("v_add_u32 v16, s47, v151")
        a("v_lshrrev_b32 v151, 2, v1")
        a("v_and_b32 v152, 3, v1")
        a(f"v_mul_u32_u24 v153, {P}, v151")
        a("v_lshl_add_u32 v153, v152, 4, v153")
        a("v_add_u32 v18, s47, v153")
        a("v_lshlrev_b32 v153, 7, v151")
        a("v_lshl_add_u32 v19, v152, 4, v153")
        a("s_lshr_b32 s31, s26, 1")
        a("s_lshl_b32 s30, s25, 1")
        a("s_add_u32 s31, s31, s30")
        a("s_mul_i32 s31, s31, 73728")
        a("s_and_b32 s30, s26, 1")
        a("s_lshl_b32 s30, s30, 6")
        a("s_add_u32 s31, s31, s30")
        a(f"s_mul_i32 s30, s24, {96*128}")
        a("s_add_u32 s42, s31, s30")
        a("s_add_u32 s43, s42, 4096")
        a("s_add_u32 s44, s42, 8192")
        a("s_waitcnt vmcnt(0)")
        for qd in range(4):
            for p in range(2):
                a(f"v_lshlrev_b32 v{32+4*qd+2*p}, 16, v{160+2*qd+p}")
                a(f"v_and_b32 v{33+4*qd+2*p}, 0xffff0000, v{160+2*qd+p}")
        c0 = -2.0*math.sqrt(2.0/math.pi)*LOG2E
        a(f"s_mov_b32 s41, {f32hex(c0*0.044715)}")
        a(f"v_mov_b32 v17, {f32hex(c0)}")
        for b in range(3):
            for qp in range(2):
                cs = [ACC(b) + 4*(2*qp) + r for r in range(8)]
                bs = [32 + 4*(2*qp) + r for r in range(8)]
                for r in range(8): a(f"v_add_f32 v{cs[r]}, v{cs[r]}, v{bs[r]}")
                for r in range(8): a(f"v_mul_f32 v{150+r}, v{cs[r]}, v{cs[r]}")
                for r in range(8): a(f"v_fma_f32 v{150+r}, v{150+r}, s41, v17")
                for r in range(8): a(f"v_mul_f32 v{150+r}, v{150+r}, v{cs[r]}")
                for r in range(8): a(f"v_exp_f32 v{150+r}, v{150+r}")
                for r in range(8): a(f"v_add_f32 v{150+r}, 1.0, v{150+r}")
                for r in range(8): a(f"v_rcp_f32 v{150+r}, v{150+r}")
                for r in range(8): a(f"v_mul_f32 v{cs[r]}, v{cs[r]}, v{150+r}")
                for q2 in range(2):
                    c = cs[4*q2]
                    a(f"v_cvt_pk_bf16_f32 v{c}, v{c}, v{c+1}")
                    a(f"v_cvt_pk_bf16_f32 v{c+1}, v{c+2}, v{c+3}")
                    a(f"ds_write_b64 v16, {vr(c,2)} offset:{b*32*P + 16*(2*qp+q2)}")
        a("s_waitcnt lgkmcnt(0)")
        for n in range(6): a(f"ds_read_b128 {vr(48+4*n,4)}, v18 offset:{n*16*P}")
        for n in range(6):
            a(f"s_waitcnt lgkmcnt({5-n})")
            a(f"buffer_store_dwordx4 {vr(48+4*n,4)}, v19, s[20:23], s{42 + n//2} offen offset:{(n%2)*2048}")
    skeleton(a, R, STG, NST, 7, loader_setup, dma, cons_setup, body, (10, 2), epilogue)
    return a.text(), descriptor(a.name, 168, 0), f"; @launch kernel={a.name} grid=({256 if 'xpf' in FL else 216},1,1) block=(512,1,1) lds={R*STG}"

def k5():
    a = Asm("mlp2_kernel"); header(a)
    R = 4; STG = 34816; NST = 18; UB = 18432
    ACC = lambda j, t: 112 + (j*2 + t)*4
    UF = lambda buf, j: 24 + (buf*9 + j)*4
    WF = lambda buf, t: 96 + (buf*2 + t)*4
    common_entry(a, 256, [(4, 48), (28, 80)])
    a("s_and_b32 s24, s2, 7")
    a("s_lshl_b32 s24, s24, 5")
    a("s_lshr_b32 s25, s2, 3")
    a("s_add_u32 s27, s24, s25")
    a("s_and_b32 s24, s27, 3")
    a("s_lshr_b32 s25, s27, 2")
    a("s_and_b32 s25, s25, 15")
    a("s_lshr_b32 s27, s27, 6")
    a("s_waitcnt lgkmcnt(0)")
    srd_from_arg(a, 8, 48, F*S*2, 4)
    srd_ws(a, 16, 28, WS_U, SZ_U)
    srd_ws(a, 20, 28, WS_P, SZ_P)
    stamp_begin(a)
    def loader_setup():
        a("s_lshl_b32 s30, s26, 2")
        a("v_add_u32 v10, s30, v2")
        a("v_and_b32 v10, 7, v10")
        a("v_and_b32 v11, 7, v1")
        a("v_xor_b32 v10, v10, v11")
        a("v_lshrrev_b32 v11, 3, v1")
        a("v_lshlrev_b32 v11, 7, v11")
        a("v_lshl_add_u32 v5, v10, 4, v11")
        a("s_and_b32 s30, s26, 1")
        a("s_add_u32 s45, s30, 16")
        a("s_lshl_b32 s45, s45, 10")
        a("s_lshl_b32 s46, s26, 10")
        a("s_lshl_b32 s30, s26, 4")
        a("v_add_u32 v10, s30, v2")
        a("v_lshlrev_b32 v10, 12, v10")
        a("s_lshl_b32 s30, s25, 8")
        a("v_add_u32 v10, s30, v10")
        a("v_lshlrev_b32 v11, 1, v2")
        a("v_xor_b32 v11, v11, v3")
        a("v_lshl_add_u32 v6, v11, 4, v10")
        a("v_xor_b32 v11, 8, v11")
        a("v_lshl_add_u32 v7, v11, 4, v10")
        a("s_lshl_b32 s32, s26, 12")
        a(f"s_add_u32 s32, s32, {UB}")
        a(f"s_mul_i32 s35, s27, {18*73728}")
        a(f"s_mul_i32 s30, s24, {UB}")
        a("s_add_u32 s35, s35, s30")
        a(f"s_mul_i32 s36, s27, {1152*4096}")
    def dma():
        a("s_add_u32 s37, s34, s46")
        a("s_add_u32 s47, s35, s46")
        for m in range(4):
            a(f"s_add_u32 m0, s37, {m*4096}")
            a(f"s_add_u32 s38, s47, {m*4096}")
            a("buffer_load_dwordx4 v5, s[16:19], s38 offen lds")
        a("s_add_u32 m0, s34, s45")
        a("s_add_u32 s38, s35, s45")
        a("buffer_load_dwordx4 v5, s[16:19], s38 offen lds")
        a("s_add_u32 s37, s34, s32")
        for m in range(4):
            a(f"s_add_u32 m0, s37, {m*1024}")
            a(f"s_add_u32 s38, s36, {m*4*4096}")
            a(f"buffer_load_dwordx4 v{6 + (m>>1)}, s[8:11], s38 offen lds")
        a("s_add_u32 s35, s35, 73728")
        a(f"s_add_u32 s36, s36, {64*4096}")
    def cons_setup():
        a("v_lshrrev_b32 v200, 1, v3")
        a("v_xor_b32 v201, v2, v200")
        a("v_lshlrev_b32 v202, 7, v3")
        a("v_lshl_add_u32 v8, v201, 4, v202")
        a("v_xor_b32 v201, 4, v201")
        a("v_lshl_add_u32 v9, v201, 4, v202")
        a("v_lshrrev_b32 v200, 2, v3")
        a("v_and_b32 v201, 3, v3")
        a("v_lshl_add_u32 v202, v2, 3, v200")
        a("v_and_b32 v203, 1, v2")
        a("v_lshl_add_u32 v203, v203, 2, v200")
        a("v_lshlrev_b32 v203, 1, v203")
        a("v_lshrrev_b32 v204, 1, v201")
        a("s_lshl_b32 s30, s26, 2")
        a("v_add_u32 v204, s30, v204")
        a("v_xor_b32 v205, v204, v203")
        a("v_lshlrev_b32 v205, 4, v205")
        a("v_lshl_add_u32 v205, v202, 8, v205")
        a("v_and_b32 v206, 1, v201")
        a("v_lshl_add_u32 v205, v206, 3, v205")
        a(f"v_add_u32 v10, {UB}, v205")
        a("v_xor_b32 v11, 32, v10")
        for r in range(112, 184): a(f"v_mov_b32 v{r}, 0")
    def rd(ks, rel):
        b = 16 if rel else 12
        L = []
        for t in range(2):
            for hh in range(2):
                L.append(('r', (f"W{ks}{t}{hh}", rel), f"ds_read_b64_tr_b16 {vr(WF(ks,t)+2*hh,2)}, v{b+2+t} offset:{ks*8192 + hh*1024}"))
        for j in range(9):
            L.append(('r', (f"U{ks}{j}", rel), f"ds_read_b128 {vr(UF(ks,j),4)}, v{b+ks} offset:{j*2048}"))
        return L
    def body():
        seq = []
        for ks in range(2):
            if ks == 1: seq.append(('x', '@BAR'))
            r = rd(1-ks, ks)
            k = 0
            for j in range(9):
                for t in range(2):
                    C = vr(ACC(j,t),4)
                    G = 3 if 'nogrp' not in FL else 1
                    needs = [f"U{ks}{jj}" for jj in range(j, min(9, (j//G + 1)*G))] + [f"W{ks}00", f"W{ks}01", f"W{ks}10", f"W{ks}11"]
                    seq.append(('m', needs, f"v_mfma_f32_16x16x32_bf16 {C}, {vr(UF(ks,j),4)}, {vr(WF(ks,t),4)}, {C}"))
                    if k < len(r): seq.append(r[k]); k += 1
        return seq
    def epilogue():
        P = 304
        a("s_barrier")
        a(f"s_mul_i32 s47, s26, {32*P}")
        a(f"v_mul_u32_u24 v200, {P}, v3")
        a("v_lshl_add_u32 v200, v2, 3, v200")
        a("v_add_u32 v200, s47, v200")
        for j in range(9):
            for t in range(2):
                c = ACC(j,t)
                a(f"v_cvt_pk_bf16_f32 v{c}, v{c}, v{c+1}")
                a(f"v_cvt_pk_bf16_f32 v{c+1}, v{c+2}, v{c+3}")
                a(f"ds_write_b64 v200, {vr(c,2)} offset:{t*16*P + 32*j}")
        a("s_lshl_b32 s30, s27, 11")
        a("s_lshl_b32 s31, s25, 7")
        a("s_add_u32 s30, s30, s31")
        a("s_lshl_b32 s31, s26, 5")
        a("s_add_u32 s30, s30, s31")
        a("s_mul_i32 s30, s30, 1152")
        a("s_mul_i32 s31, s24, 288")
        a("s_add_u32 s30, s30, s31")
        for n in range(9):
            a(f"v_add_u32 v201, {64*n}, v1")
            a("v_mul_u32_u24 v202, 3641, v201")
            a("v_lshrrev_b32 v202, 16, v202")
            a("v_mul_u32_u24 v203, 18, v202")
            a("v_sub_u32 v203, v201, v203")
            a("v_lshlrev_b32 v203, 4, v203")
            a(f"v_mad_u32_u24 v{24+n}, v202, s48, v203") if False else None
            a(f"v_mul_u32_u24 v204, {P}, v202")
            a(f"v_add3_u32 v{24+n}, v204, v203, s47")
            a("v_mul_u32_u24 v204, 1152, v202")
            a(f"v_add_u32 v{40+n}, v204, v203")
        a("s_waitcnt lgkmcnt(0)")
        for n in range(9): a(f"ds_read_b128 {vr(56+4*n,4)}, v{24+n}")
        for n in range(9):
            a(f"s_waitcnt lgkmcnt({8-n})")
            a(f"buffer_store_dwordx4 {vr(56+4*n,4)}, v{40+n}, s[20:23], s30 offen")
    skeleton(a, R, STG, NST, 9, loader_setup, dma, cons_setup, body, (8, 4), epilogue)
    return a.text(), descriptor(a.name, 208, 0), f"; @launch kernel={a.name} grid=(256,1,1) block=(512,1,1) lds={R*STG}"

def k6():
    a = Asm("final_kernel"); header(a)
    a("s_cmp_ge_u32 s2, 576")
    a(f"s_cbranch_scc1 {a.name}_end")
    a("s_load_dwordx2 s[4:5], s[0:1], 56")
    a("s_load_dwordx2 s[6:7], s[0:1], 64")
    a("s_load_dwordx2 s[28:29], s[0:1], 80")
    a("s_lshl_b32 s3, s2, 8")
    a("v_add_u32 v1, s3, v0")
    a("v_lshlrev_b32 v2, 4, v1")
    a("s_mov_b32 s30, 0x38e38e4")
    a("v_mul_hi_u32 v4, v1, s30")
    a("v_mul_u32_u24 v12, 72, v4")
    a("v_sub_u32 v12, v1, v12")
    a("v_mul_u32_u24 v13, 43691, v12")
    a("v_lshrrev_b32 v13, 19, v13")
    a("v_mul_u32_u24 v14, 12, v13")
    a("v_sub_u32 v12, v12, v14")
    a("s_mov_b32 s31, 393216")
    a("v_mul_lo_u32 v13, v13, s31")
    a("v_mul_u32_u24 v14, 192, v4")
    a("v_add_u32 v13, v13, v14")
    a("v_lshl_add_u32 v12, v12, 4, v13")
    a("v_lshlrev_b32 v4, 1, v4")
    a("s_waitcnt lgkmcnt(0)")
    srd_from_arg(a, 8, 56, S*2, 4)
    srd_from_arg(a, 12, 64, S*D*2, 6)
    srd_ws(a, 16, 28, WS_H, SZ_SD)
    srd_ws(a, 20, 28, WS_P, SZ_P)
    for p in range(4):
        a(f"s_mov_b32 s{32+p}, {p*S*D*2}")
        a(f"buffer_load_dwordx4 {vr(16+4*p,4)}, v2, s[20:23], s{32+p} offen")
    a("buffer_load_dwordx4 v[32:35], v12, s[16:19], 0 offen")
    a("buffer_load_ushort v5, v4, s[8:11], 0 offen")
    a("v_mov_b32 v10, 0x00003f80"); a("v_mov_b32 v11, 0x3f800000")
    a("s_waitcnt vmcnt(0)")
    for r in range(8): a(f"v_lshlrev_b32 v{40+r}, 16, v5")
    for sreg in (16, 20, 24, 28, 32):
        for r in range(8): a(f"v_dot2c_f32_bf16 v{40+r}, v{sreg + r//2}, v{10 + r%2}")
    a("s_nop 2")
    for r in range(4): a(f"v_cvt_pk_bf16_f32 v{8+r if False else 16+r}, v{40+2*r}, v{41+2*r}")
    a("buffer_store_dwordx4 v[16:19], v2, s[12:15], 0 offen")
    a.lab(f"{a.name}_end")
    a("s_endpgm")
    return a.text(), descriptor(a.name, 48, 0), f"; @launch kernel={a.name} grid=(576,1,1) block=(256,1,1) lds=0"

def k1():
    a = Asm("qkv_kernel"); header(a)
    R = 4; XB = 16384; STG = 34816; NST = 9
    ACC = lambda i, j: 112 + (i*9 + j)*4
    XF = lambda ks, i: 24 + (ks*2 + i)*4
    WF = lambda ks, j: 40 + (ks*9 + j)*4
    CW = lambda j: 184 + 4*j
    S1 = lambda i: 220 + 4*i
    S2 = lambda i: 228 + 4*i
    ONE = 236
    T = 240
    common_entry(a, 256 if 'xpf' in FL else 192, [(4, 0), (6, 8), (28, 80), (64, 32)])
    a("s_and_b32 s52, s2, 7")
    a("s_lshr_b32 s53, s2, 3")
    a("s_mul_i32 s30, s52, 24")
    a("s_add_u32 s30, s30, s53")
    a("s_mul_i32 s24, s30, 5462")
    a("s_lshr_b32 s24, s24, 16")
    a("s_mul_i32 s25, s24, 12")
    a("s_sub_u32 s25, s30, s25")
    a("s_lshr_b32 s41, s25, 2")
    a("s_waitcnt lgkmcnt(0)")
    srd_from_arg(a, 8, 0, S*D*2, 4)
    srd_from_arg(a, 12, 8, D*3*D*2, 6)
    srd_ws(a, 16, 28, WS_Q, SZ_Q)
    srd_ws(a, 20, 28, WS_KV, SZ_KV)
    srd_from_arg(a, 68, 32, S*F*2, 64)
    lx = f"{a.name}_work"
    a("s_cmp_ge_u32 s2, 192")
    a(f"s_cbranch_scc0 {lx}")
    a("s_sub_u32 s54, s53, 24")
    a("s_lshl_b32 s54, s54, 3")
    a("s_add_u32 s54, s54, s26")
    a("s_mul_i32 s54, s54, 96")
    a("s_mul_i32 s57, s52, 1152")
    a("s_mov_b32 exec_hi, 0xffff")
    for n in range(2 if 'xpf' in FL else 0):
        a("v_add_u32 v20, s54, v1")
        if n: a("v_add_u32 v20, 48, v20")
        a("v_mul_u32_u24 v21, 58255, v20")
        a("v_lshrrev_b32 v21, 19, v21")
        a("v_mul_u32_u24 v22, 9, v21")
        a("v_sub_u32 v22, v20, v22")
        a("v_mul_u32_u24 v21, 9216, v21")
        a("v_lshl_add_u32 v21, v22, 7, v21")
        a("buffer_load_dword v23, v21, s[68:71], s57 offen")
    a("s_endpgm")
    a.lab(lx)
    stamp_begin(a)
    def tail():
        if 'k1tail' not in FL: return 0
        a("s_lshl_b32 s54, s53, 2")
        a("s_add_u32 s54, s54, s26")
        a("s_mul_i32 s54, s54, 96")
        a("s_mul_i32 s57, s52, 1152")
        a("s_mov_b32 exec_hi, 0xffff")
        for n in range(2):
            a("v_add_u32 v20, s54, v1")
            if n: a("v_add_u32 v20, 48, v20")
            a("v_mul_u32_u24 v21, 58255, v20")
            a("v_lshrrev_b32 v21, 19, v21")
            a("v_mul_u32_u24 v22, 9, v21")
            a("v_sub_u32 v22, v20, v22")
            a("v_mul_u32_u24 v21, 9216, v21")
            a("v_lshl_add_u32 v21, v22, 7, v21")
            a("buffer_load_dword v23, v21, s[68:71], s57 offen")
        return 2
    def loader_setup():
        a("s_lshl_b32 s30, s26, 2")
        a("v_add_u32 v10, s30, v2")
        a("v_and_b32 v10, 7, v10")
        a("v_and_b32 v11, 7, v1")
        a("v_xor_b32 v10, v10, v11")
        a("v_lshrrev_b32 v11, 3, v1")
        a("s_lshl_b32 s30, s24, 7")
        a("s_lshl_b32 s31, s26, 3")
        a("s_add_u32 s30, s30, s31")
        a("v_add_u32 v11, s30, v11")
        a("v_mul_u32_u24 v11, 1152, v11")
        a("v_lshl_add_u32 v5, v10, 4, v11")
        a("s_lshl_b32 s32, s26, 6")
        a("s_and_b32 s33, s26, 1")
        a("s_add_u32 s33, s33, 16")
        a("s_lshl_b32 s30, s33, 6")
        a("s_mul_i32 s31, s25, 288")
        for n in range(5):
            if n < 4:
                a(f"v_add_u32 v20, s32, v1")
                if n: a(f"v_add_u32 v20, {n*256}, v20")
            else:
                a(f"v_add_u32 v20, s30, v1")
            a("v_mul_u32_u24 v21, 3641, v20")
            a("v_lshrrev_b32 v21, 16, v21")
            a("v_mul_u32_u24 v22, 18, v21")
            a("v_sub_u32 v22, v20, v22")
            swap23(a, 21, 23, 24)
            a("v_mul_u32_u24 v23, 3456, v23")
            a("v_lshl_add_u32 v23, v22, 4, v23")
            a(f"v_add_u32 v{6+n}, s31, v23")
        a("s_lshl_b32 s46, s26, 10")
        a("s_lshl_b32 s45, s33, 10")
        a(f"s_add_u32 s45, s45, {XB}")
        a("s_mov_b32 s35, 0"); a("s_mov_b32 s36, 0")
    def dma():
        a("s_add_u32 s37, s34, s46")
        for m in range(4):
            a(f"s_add_u32 m0, s37, {m*4096}")
            a(f"s_add_u32 s38, s35, {m*32*1152}")
            a("buffer_load_dwordx4 v5, s[8:11], s38 offen lds")
        for n in range(5):
            if n < 4: a(f"s_add_u32 m0, s37, {XB + n*4096}")
            else:     a("s_add_u32 m0, s34, s45")
            a("s_nop 0")
            a(f"buffer_load_dwordx4 v{6+n}, s[12:15], s36 offen lds")
        a("s_add_u32 s35, s35, 128")
        a(f"s_add_u32 s36, s36, {64*3456}")
    def cons_setup():
        a("v_lshrrev_b32 v240, 1, v3")
        a("v_xor_b32 v241, v2, v240")
        a("s_lshl_b32 s30, s26, 5")
        a("v_add_u32 v242, s30, v3")
        a("v_lshlrev_b32 v242, 7, v242")
        a("v_lshl_add_u32 v8, v241, 4, v242")
        a("v_xor_b32 v241, 4, v241")
        a("v_lshl_add_u32 v9, v241, 4, v242")
        a("v_lshrrev_b32 v240, 1, v2")
        a("v_and_b32 v241, 1, v2")
        a("v_lshlrev_b32 v240, 4, v240")
        a("v_lshl_add_u32 v240, v241, 2, v240")
        a("v_lshrrev_b32 v241, 2, v3")
        a("v_add_u32 v240, v240, v241")
        a("v_mul_u32_u24 v240, 288, v240")
        a("v_and_b32 v241, 3, v3")
        a("v_lshl_add_u32 v10, v241, 3, v240")
        a(f"v_add_u32 v10, {XB}, v10")
        if 'k1pf' in FL:
            a("s_lshl_b32 s54, s53, 2")
            a("s_add_u32 s54, s54, s26")
            a("v_mul_u32_u24 v240, 96, v1")
            a("v_add_u32 v240, s54, v240")
            for n in range(3):
                if n: a("v_add_u32 v240, 6144, v240")
                a("v_lshlrev_b32 v241, 7, v240")
                a("buffer_load_dword v242, v241, s[12:15], 0 offen")
            a("v_cmp_gt_u32 vcc, 24, v1")
            a("v_mul_u32_u24 v240, 96, v1")
            a("v_add_u32 v240, s54, v240")
            a("v_lshlrev_b32 v241, 7, v240")
            a(f"s_mul_i32 s55, s52, {256*1152}")
            a("s_and_saveexec_b64 s[56:57], vcc")
            a("buffer_load_dword v242, v241, s[8:11], s55 offen")
            a("s_mov_b64 exec, s[56:57]")
        for r in range(112, 236): a(f"v_mov_b32 v{r}, 0")
        for r in range(236, 240): a(f"v_mov_b32 v{r}, 0x3f803f80")
        a("s_mov_b32 s42, 0")
    def mkbody(mode):
        def rd(ks, rel):
            b = 14 if rel else 11
            L = []
            for i in range(2):
                L.append(('r', (f"X{ks}{i}", rel), f"ds_read_b128 {vr(XF(ks,i),4)}, v{b+ks} offset:{i*2048}"))
            for j in range(9):
                for hh in range(2):
                    L.append(('r', (f"W{ks}{j}{hh}", rel), f"ds_read_b64_tr_b16 {vr(WF(ks,j)+2*hh,2)}, v{b+2} offset:{ks*32*288 + hh*8*288 + 32*j}"))
            return L
        def body():
            seq = []
            for ks in range(2):
                if ks == 1: seq.append(('x', '@BAR'))
                r = rd(1-ks, ks)
                ms = []
                for i in range(2):
                    X = vr(XF(ks,i),4)
                    ms.append(('m', [f"X{ks}{i}"], f"v_mfma_f32_16x16x32_bf16 {vr(S1(i),4)}, {vr(ONE,4)}, {X}, {vr(S1(i),4)}"))
                    ms.append(('m', [f"X{ks}{i}"], f"v_mfma_f32_16x16x32_bf16 {vr(S2(i),4)}, {X}, {X}, {vr(S2(i),4)}"))
                for j in range(9):
                    for i in range(2):
                        W = vr(WF(ks,j),4); X = vr(XF(ks,i),4); C = vr(ACC(i,j),4)
                        ops = f"{W}, {X}" if mode == "qk" else f"{X}, {W}"
                        G = 3 if 'nogrp' not in FL else 1
                        needs = [f"X{ks}{i}"] + [f"W{ks}{jj}{hh}" for jj in range(j, min(9, (j//G + 1)*G)) for hh in range(2)]
                        ms.append(('m', needs, f"v_mfma_f32_16x16x32_bf16 {C}, {ops}, {C}"))
                k = 0
                for m in ms:
                    seq.append(m)
                    if k < len(r): seq.append(r[k]); k += 1
                l = a.newlabel("cw")
                seq.append(('x', "s_and_b32 s43, s42, 3"))
                seq.append(('x', "s_add_u32 s42, s42, 1"))
                seq.append(('x', "s_cmp_eq_u32 s43, s26"))
                seq.append(('x', f"s_cbranch_scc0 {l}"))
                for j in range(9):
                    W = vr(WF(ks,j),4); C = vr(CW(j),4)
                    ops = f"{W}, {vr(ONE,4)}" if mode == "qk" else f"{vr(ONE,4)}, {W}"
                    seq.append(('x', f"v_mfma_f32_16x16x32_bf16 {C}, {ops}, {C}"))
                seq.append(('x', f"@LAB {l}"))
            return seq
        return body
    P = 296
    def mkepi(mode):
        def epilogue():
            a("s_nop 7")
            a("s_barrier")
            a("s_mul_i32 s40, s26, 576")
            if mode == "qk":
                a("v_lshlrev_b32 v24, 4, v2")
                a("v_add_u32 v25, s40, v24")
                for j in range(9): a(f"ds_write_b128 v25, {vr(CW(j),4)} offset:{j*64}")
            else:
                a("v_lshlrev_b32 v24, 2, v3")
                a("v_add_u32 v25, s40, v24")
                for j in range(9): a(f"ds_write_b32 v25, v{CW(j)} offset:{j*64}")
            a("v_and_b32 v26, 3, v3")
            a("v_lshrrev_b32 v27, 2, v3")
            a("v_lshl_add_u32 v27, v27, 4, v3")
            a("v_lshlrev_b32 v27, 2, v27")
            for i in range(2):
                a(f"v_cmp_eq_u32 vcc, 1, v26"); a("s_nop 1")
                a(f"v_cndmask_b32 v{28+i}, v{S2(i)}, v{S2(i)+1}, vcc")
                a(f"v_cmp_eq_u32 vcc, 2, v26"); a("s_nop 1")
                a(f"v_cndmask_b32 v{28+i}, v{28+i}, v{S2(i)+2}, vcc")
                a(f"v_cmp_eq_u32 vcc, 3, v26"); a("s_nop 1")
                a(f"v_cndmask_b32 v{28+i}, v{28+i}, v{S2(i)+3}, vcc")
                a(f"ds_bpermute_b32 v{30+i}, v27, v{28+i}")
            a(f"s_mov_b32 s44, {f32hex(1.0/576)}")
            a(f"s_mov_b32 s45, {f32hex(1e-5)}")
            a("s_waitcnt lgkmcnt(0)")
            for i in range(2):
                a(f"v_mul_f32 v{28+i}, s44, v{S1(i)}")
                a(f"v_mul_f32 v{30+i}, s44, v{30+i}")
                a(f"v_fma_f32 v{30+i}, -v{28+i}, v{28+i}, v{30+i}")
                a(f"v_max_f32 v{30+i}, 0, v{30+i}")
                a(f"v_add_f32 v{30+i}, s45, v{30+i}")
                a(f"v_rsq_f32 v{32+i}, v{30+i}")
            a("s_nop 0")
            if mode == "qk":
                a(f"s_mov_b32 s43, {f32hex(QSCALE)}")
                a("s_cmp_eq_u32 s41, 0")
                a("s_cselect_b32 s43, s43, 1.0")
                for i in range(2): a(f"v_mul_f32 v{32+i}, s43, v{32+i}")
            for i in range(2): a(f"v_mul_f32 v{34+i}, v{28+i}, v{32+i}")
            a("s_barrier")
            if 'e1' in FL: stamp_mid(a, 0)
            a("s_and_b32 s44, s25, 3")
            a("s_lshl_b32 s44, s44, 3")
            a("s_lshl_b32 s27, s24, 7")
            a("s_lshl_b32 s30, s26, 5")
            a("s_add_u32 s27, s27, s30")
            a("s_mul_i32 s47, s26, 12288")
            a("s_add_u32 s47, s47, 4096")
            a("s_lshr_b32 s48, s27, 9")
            a(f"s_mul_i32 s48, s48, {CHUNK}")
            a("s_and_b32 s49, s27, 511")
            a(f"s_mul_i32 s50, s44, {HB}")
            a("s_add_u32 s48, s48, s50")
            if mode == "qk":
                for j in range(9):
                    a(f"ds_read_b128 {vr(40+4*j,4)}, v24 offset:{j*64}")
                    a(f"ds_read_b128 {vr(76+4*j,4)}, v24 offset:{576 + j*64}")
                a("s_waitcnt lgkmcnt(0)")
                for k in range(36): a(f"v_add_f32 v{40+k}, v{40+k}, v{76+k}")
                for j in range(9):
                    a(f"ds_read_b128 {vr(76+4*j,4)}, v24 offset:{2*576 + j*64}")
                    a(f"ds_read_b128 {vr(184+4*j,4)}, v24 offset:{3*576 + j*64}")
                a("s_waitcnt lgkmcnt(0)")
                for k in range(36):
                    a(f"v_add_f32 v{76+k}, v{76+k}, v{184+k}")
                    a(f"v_add_f32 v{40+k}, v{40+k}, v{76+k}")
                a(f"v_mul_u32_u24 v36, {P}, v3")
                a("v_lshl_add_u32 v36, v2, 3, v36")
                a("v_add_u32 v36, s47, v36")
                for i in range(2):
                    for j in range(9):
                        c = ACC(i,j)
                        for r in range(4): a(f"v_mul_f32 v{96+r}, v{40+4*j+r}, v{34+i}")
                        for r in range(4): a(f"v_fma_f32 v{96+r}, v{c+r}, v{32+i}, -v{96+r}")
                        a(f"v_cvt_pk_bf16_f32 v{c}, v96, v97")
                        a(f"v_cvt_pk_bf16_f32 v{c+1}, v98, v99")
                        a(f"ds_write_b64 v36, {vr(c,2)} offset:{i*16*P + 32*j}")
                lq = a.newlabel("isq")
                a("s_waitcnt lgkmcnt(0)")
                if 'e2' in FL: stamp_mid(a, 0)
                a("s_cmp_eq_u32 s41, 0")
                a(f"s_cbranch_scc1 {lq}")
                a("v_and_b32 v37, 31, v1")
                a("v_lshrrev_b32 v38, 5, v1")
                a(f"v_mul_u32_u24 v39, {P}, v37")
                a("v_add_u32 v39, s47, v39")
                a("v_lshl_add_u32 v40, v38, 4, v39")
                a("v_lshlrev_b32 v41, 4, v1")
                a("s_lshr_b32 s50, s49, 5")
                a("s_lshl_b32 s50, s50, 10")
                a("s_add_u32 s50, s50, s48")
                for h in range(8):
                    b = 48 + 4*h
                    a(f"ds_read2_b32 {vr(b,2)}, v40 offset0:{9*h} offset1:{9*h+1}")
                    a(f"ds_read2_b32 {vr(b+2,2)}, v40 offset0:{9*h+2} offset1:{9*h+3}")
                a("v_mul_u32_u24 v42, 36, v38")
                a("v_add_u32 v42, v42, v39")
                for p in range(4): a(f"ds_read_b32 v{80+2*p}, v42 offset:{72*p + 32}")
                for p in range(4): a(f"v_mov_b32 v{81+2*p}, 0x00003f80")
                a(f"s_mov_b32 s51, {HB}")
                a("v_mul_lo_u32 v43, v38, s51")
                a("v_lshl_add_u32 v43, v37, 3, v43")
                a("s_lshl_b32 s51, s49, 3")
                a("s_add_u32 s51, s51, s48")
                a("s_add_u32 s51, s51, 16384")
                a("s_waitcnt lgkmcnt(0)")
                for h in range(8):
                    a(f"buffer_store_dwordx4 {vr(48+4*h,4)}, v41, s[20:23], s50 offen")
                    if h < 7: a(f"s_add_u32 s50, s50, {HB}")
                for p in range(4):
                    a(f"buffer_store_dwordx2 {vr(80+2*p,2)}, v43, s[20:23], s51 offen")
                    if p < 3: a(f"s_add_u32 s51, s51, {2*HB}")
                a(f"s_branch {a.name}_done")
                a.lab(lq)
                for n in range(3):
                    a(f"v_add_u32 v37, {64*n}, v1")
                    a("v_cmp_le_u32 vcc, 96, v37"); a("s_nop 1")
                    a("v_cndmask_b32 v38, 0, 1, vcc")
                    a("v_mul_u32_u24 v39, 96, v38")
                    a("v_sub_u32 v37, v37, v39")
                    a("v_mul_u32_u24 v39, 171, v37")
                    a("v_lshrrev_b32 v39, 9, v39")
                    a("v_mul_u32_u24 v40, 3, v39")
                    a("v_sub_u32 v40, v37, v40")
                    a(f"v_mul_u32_u24 v41, {P}, v39")
                    a("v_mul_u32_u24 v42, 36, v38")
                    a("v_add_u32 v41, v41, v42")
                    a("v_lshl_add_u32 v41, v40, 4, v41")
                    a(f"v_add_u32 v{44+n}, s47, v41")
                    a("v_mul_u32_u24 v41, 48, v39")
                    a("v_lshl_add_u32 v41, v40, 4, v41")
                    a("s_mov_b32 s51, 98304")
                    a("v_mul_lo_u32 v42, v38, s51")
                    a(f"v_add_u32 v{100+n}, v41, v42")
                for p in range(4):
                    for n in range(3):
                        b = 48 + (p*3+n)*4
                        a(f"ds_read2_b32 {vr(b,2)}, v{44+n} offset0:{18*p} offset1:{18*p+1}")
                        a(f"ds_read2_b32 {vr(b+2,2)}, v{44+n} offset0:{18*p+2} offset1:{18*p+3}")
                a("s_lshl_b32 s50, s44, 11")
                a("s_add_u32 s50, s50, s27")
                a("s_mul_i32 s50, s50, 48")
                a("s_waitcnt lgkmcnt(0)")
                if 'e3' in FL: stamp_mid(a, 0)
                for p in range(4):
                    for n in range(3):
                        a(f"buffer_store_dwordx4 {vr(48+(p*3+n)*4,4)}, v{100+n}, s[16:19], s50 offen")
                    if p < 3: a(f"s_add_u32 s50, s50, {2*98304}")
                a(f"s_branch {a.name}_done")
            else:
                for j in range(9):
                    for w in range(4): a(f"ds_read_b32 v{184+4*j+w}, v24 offset:{w*576 + j*64}")
                a("s_waitcnt lgkmcnt(0)")
                for j in range(9):
                    b = 184 + 4*j
                    a(f"v_add_f32 v{b}, v{b}, v{b+1}"); a(f"v_add_f32 v{b+2}, v{b+2}, v{b+3}")
                    a(f"v_add_f32 v{40+j}, v{b}, v{b+2}")
                a("s_lshl_b32 s45, s26, 8")
                a("s_add_u32 s45, s45, 2304")
                a("v_lshl_add_u32 v96, v3, 2, s45")
                for i in range(2):
                    a(f"ds_write_b32 v96, v{32+i} offset:{i*64}")
                    a(f"ds_write_b32 v96, v{34+i} offset:{128 + i*64}")
                a("v_lshl_add_u32 v97, v2, 4, s45")
                a("v_lshrrev_b32 v98, 2, v1")
                a("v_mul_u32_u24 v98, 1216, v98")
                a("v_and_b32 v99, 3, v1")
                a("v_mul_u32_u24 v99, 304, v99")
                a("v_add3_u32 v98, v98, v99, s47")
                a("v_cmp_gt_u32 vcc, 32, v1")
                a("s_and_saveexec_b64 s[52:53], vcc")
                a(f"ds_write_b128 v98, {vr(ONE,4)} offset:288")
                a("s_mov_b64 exec, s[52:53]")
                a("s_waitcnt lgkmcnt(0)")
                for i in range(2):
                    a(f"ds_read_b128 {vr(52+8*i,4)}, v97 offset:{i*64}")
                    a(f"ds_read_b128 {vr(56+8*i,4)}, v97 offset:{128+i*64}")
                a("v_and_b32 v98, 1, v2")
                a("v_mul_u32_u24 v98, 304, v98")
                a("v_lshrrev_b32 v99, 1, v2")
                a("v_lshl_add_u32 v98, v99, 3, v98")
                a("v_add_u32 v98, s47, v98")
                a("s_waitcnt lgkmcnt(0)")
                for j in range(9):
                    a(f"v_add_u32 v106, {16*j}, v3")
                    a("v_mul_u32_u24 v107, 3641, v106")
                    a("v_lshrrev_b32 v107, 16, v107")
                    a("v_mul_u32_u24 v108, 18, v107")
                    a("v_sub_u32 v108, v106, v108")
                    a("v_mul_u32_u24 v107, 1216, v107")
                    a("v_lshl_add_u32 v107, v108, 4, v107")
                    a("v_add_u32 v107, v107, v98")
                    for i in range(2):
                        c = ACC(i,j)
                        for r in range(4): a(f"v_mul_f32 v{100+r}, v{40+j}, v{56+8*i+r}")
                        for r in range(4): a(f"v_fma_f32 v{100+r}, v{c+r}, v{52+8*i+r}, -v{100+r}")
                        a(f"v_cvt_pk_bf16_f32 v{c}, v100, v101")
                        a(f"v_cvt_pk_bf16_f32 v{c+1}, v102, v103")
                        a(f"ds_write_b64 v107, {vr(c,2)} offset:{i*608}")
                a("v_lshl_add_u32 v96, v1, 4, s47")
                a("s_waitcnt lgkmcnt(0)")
                for n in range(10): a(f"ds_read_b128 {vr(40+4*n,4)}, v96 offset:{n*1024}")
                a("s_lshr_b32 s50, s49, 4")
                a("s_mul_i32 s50, s50, 608")
                a("s_add_u32 s50, s50, s48")
                a("s_add_u32 s50, s50, 20480")
                a(f"s_mov_b32 s51, {HB-1216}")
                for n in range(10):
                    a(f"v_add_u32 v100, {64*n}, v1")
                    a("v_mul_u32_u24 v101, 863, v100")
                    a("v_lshrrev_b32 v101, 16, v101")
                    a("v_mul_lo_u32 v101, v101, s51")
                    a(f"v_lshl_add_u32 v{84+n}, v100, 4, v101")
                a("s_waitcnt lgkmcnt(0)")
                for n in range(10):
                    if n == 9: a("s_and_saveexec_b64 s[52:53], vcc")
                    a(f"buffer_store_dwordx4 {vr(40+4*n,4)}, v{84+n}, s[20:23], s50 offen")
                a("s_mov_b64 exec, s[52:53]")
        return epilogue
    skeleton2(a, R, STG, NST, 9, loader_setup, dma, cons_setup, [("s_cmp_eq_u32 s41, 2", mkbody("qk"), mkepi("qk")), (None, mkbody("v"), mkepi("v"))], (8, 3), tail=tail)
    return a.text(), descriptor(a.name, 256, 0), f"; @launch kernel={a.name} grid=({256 if 'xpf' in FL else 192},1,1) block=(512,1,1) lds={R*STG}"


def k3():
    a = Asm("oproj_kernel"); header(a)
    R = 6; OB = 8192; STG = 20480; NST = 9
    ACC = lambda i, j: 72 + (i*3 + j)*4
    OF = lambda ks, i: 24 + (ks*2 + i)*4
    WF = lambda ks, j: 40 + (ks*3 + j)*4
    XR = lambda i, j: 96 + (i*3 + j)*2
    common_entry(a, 192, [(4, 0), (6, 16), (28, 80)])
    a("s_and_b32 s24, s2, 7")
    a("s_mul_i32 s24, s24, 24")
    a("s_lshr_b32 s25, s2, 3")
    a("s_add_u32 s24, s24, s25")
    a("s_mul_i32 s25, s24, 10923")
    a("s_lshr_b32 s25, s25, 16")
    a("s_mul_i32 s30, s25, 6")
    a("s_sub_u32 s24, s24, s30")
    a("s_waitcnt lgkmcnt(0)")
    srd_from_arg(a, 8, 0, S*D*2, 4)
    srd_from_arg(a, 12, 16, D*D*2, 6)
    srd_ws(a, 16, 28, WS_O, SZ_SD)
    srd_ws(a, 20, 28, WS_H, SZ_SD)
    srd_ws(a, 44, 28, WS_ST, SZ_ST)
    stamp_begin(a)
    def loader_setup():
        a("s_lshl_b32 s30, s26, 2")
        a("v_add_u32 v10, s30, v2")
        a("v_and_b32 v10, 7, v10")
        a("v_and_b32 v11, 7, v1")
        a("v_xor_b32 v10, v10, v11")
        a("v_lshrrev_b32 v11, 3, v1")
        a("s_lshl_b32 s30, s25, 6")
        a("s_lshl_b32 s31, s26, 3")
        a("s_add_u32 s30, s30, s31")
        a("v_add_u32 v11, s30, v11")
        a("v_mul_u32_u24 v11, 1152, v11")
        a("v_lshl_add_u32 v5, v10, 4, v11")
        a("s_mul_i32 s30, s26, 192")
        a("s_mul_i32 s31, s24, 192")
        for m in range(3):
            a("v_add_u32 v20, s30, v1")
            if m: a(f"v_add_u32 v20, {64*m}, v20")
            a("v_mul_u32_u24 v21, 43691, v20")
            a("v_lshrrev_b32 v21, 19, v21")
            a("v_mul_u32_u24 v22, 12, v21")
            a("v_sub_u32 v22, v20, v22")
            a("v_lshrrev_b32 v23, 2, v21")
            a("v_and_b32 v23, 2, v23")
            a("v_xor_b32 v22, v22, v23")
            a("v_mul_u32_u24 v21, 1152, v21")
            a("v_lshl_add_u32 v21, v22, 4, v21")
            a(f"v_add_u32 v{6+m}, s31, v21")
        a("s_lshl_b32 s46, s26, 10")
        a("s_mul_i32 s45, s26, 3072")
        a(f"s_add_u32 s45, s45, {OB}")
        a("s_mov_b32 s35, 0"); a("s_mov_b32 s36, 0")
    def dma():
        a("s_add_u32 s37, s34, s46")
        for m in range(2):
            a(f"s_add_u32 m0, s37, {m*4096}")
            a(f"s_add_u32 s38, s35, {m*32*1152}")
            a("buffer_load_dwordx4 v5, s[16:19], s38 offen lds")
        a("s_add_u32 s37, s34, s45")
        for m in range(3):
            a(f"s_add_u32 m0, s37, {m*1024}")
            a("s_nop 0")
            a(f"buffer_load_dwordx4 v{6+m}, s[12:15], s36 offen lds")
        a("s_add_u32 s35, s35, 128")
        a(f"s_add_u32 s36, s36, {64*1152}")
    def cons_setup():
        a("s_lshr_b32 s41, s26, 1")
        a("s_and_b32 s42, s26, 1")
        a("v_lshrrev_b32 v110, 1, v3")
        a("v_xor_b32 v111, v2, v110")
        a("s_lshl_b32 s30, s41, 5")
        a("v_add_u32 v112, s30, v3")
        a("v_lshlrev_b32 v112, 7, v112")
        a("v_lshl_add_u32 v6, v111, 4, v112")
        a("v_xor_b32 v111, 4, v111")
        a("v_lshl_add_u32 v7, v111, 4, v112")
        a("v_lshrrev_b32 v110, 2, v3")
        a("v_and_b32 v111, 3, v3")
        a("v_lshl_add_u32 v112, v2, 3, v110")
        a("v_mul_u32_u24 v112, 192, v112")
        a("v_and_b32 v113, 1, v111")
        a("v_lshl_add_u32 v112, v113, 3, v112")
        a(f"v_add_u32 v112, {OB}, v112")
        a("v_lshrrev_b32 v113, 1, v111")
        a("s_mul_i32 s30, s42, 6")
        a("v_add_u32 v113, s30, v113")
        a("v_and_b32 v114, 1, v2")
        a("v_lshlrev_b32 v114, 1, v114")
        for j in range(3):
            a(f"v_add_u32 v115, {2*j}, v113")
            a("v_xor_b32 v115, v115, v114")
            a(f"v_lshl_add_u32 v{8+j}, v115, 4, v112")
        for r in range(72, 96): a(f"v_mov_b32 v{r}, 0")
        a("s_lshl_b32 s27, s25, 6")
        a("s_lshl_b32 s30, s41, 5")
        a("s_add_u32 s27, s27, s30")
        a("v_add_u32 v110, s27, v3")
        a("v_mul_u32_u24 v111, 1152, v110")
        a("v_lshl_add_u32 v111, v2, 3, v111")
        a("s_mul_i32 s30, s24, 192")
        a("s_mul_i32 s31, s42, 96")
        a("s_add_u32 s30, s30, s31")
        a("v_add_u32 v111, s30, v111")
        a("s_mov_b32 s43, 18432")
        for i in range(2):
            for j in range(3):
                a(f"buffer_load_dwordx2 {vr(XR(i,j),2)}, v111, s[8:11], {'s43' if i else '0'} offen offset:{32*j}")
        a("v_mul_u32_u24 v110, 192, v110")
        a("v_lshl_add_u32 v110, v2, 3, v110")
        a(f"s_mul_i32 s30, s24, {2048*192}")
        a("s_add_u32 s30, s30, s31")
        a("v_add_u32 v108, s30, v110")
    def rd(ks, rel):
        b = 16 if rel else 11
        L = []
        for i in range(2):
            L.append(('r', (f"O{ks}{i}", rel), f"ds_read_b128 {vr(OF(ks,i),4)}, v{b+ks} offset:{i*2048}"))
        for j in range(3):
            for hh in range(2):
                L.append(('r', (f"W{ks}{j}{hh}", rel), f"ds_read_b64_tr_b16 {vr(WF(ks,j)+2*hh,2)}, v{b+2+j} offset:{ks*6144 + hh*768}"))
        return L
    def body():
        seq = []
        for ks in range(2):
            if ks == 1: seq.append(('x', '@BAR'))
            r = rd(1-ks, ks)
            ms = []
            for j in range(3):
                for i in range(2):
                    C = vr(ACC(i,j),4)
                    ms.append(('m', [f"O{ks}{i}", f"W{ks}{j}0", f"W{ks}{j}1"], f"v_mfma_f32_16x16x32_bf16 {C}, {vr(WF(ks,j),4)}, {vr(OF(ks,i),4)}, {C}"))
            k = 0
            for idx, m in enumerate(ms):
                seq.append(m)
                n = 2 if idx < 2 else 1
                seq += r[k:k+n]; k += n
        return seq
    def epilogue():
        a("s_waitcnt vmcnt(0)")
        a("s_nop 7")
        for r in range(24, 28): a(f"v_mov_b32 v{r}, 0")
        for i in range(2):
            for j in range(3):
                c = ACC(i,j); x = XR(i,j)
                a(f"v_lshlrev_b32 v40, 16, v{x}")
                a(f"v_and_b32 v41, 0xffff0000, v{x}")
                a(f"v_lshlrev_b32 v42, 16, v{x+1}")
                a(f"v_and_b32 v43, 0xffff0000, v{x+1}")
                for r in range(4): a(f"v_add_f32 v{40+r}, v{40+r}, v{c+r}")
                a(f"v_cvt_pk_bf16_f32 v{x}, v40, v41")
                a(f"v_cvt_pk_bf16_f32 v{x+1}, v42, v43")
                a(f"buffer_store_dwordx2 {vr(x,2)}, v108, s[20:23], 0 offen offset:{i*3072 + 32*j}")
                a(f"v_lshlrev_b32 v40, 16, v{x}")
                a(f"v_and_b32 v41, 0xffff0000, v{x}")
                a(f"v_lshlrev_b32 v42, 16, v{x+1}")
                a(f"v_and_b32 v43, 0xffff0000, v{x+1}")
                for r in range(4):
                    a(f"v_add_f32 v{24+i}, v{24+i}, v{40+r}")
                    a(f"v_fmac_f32 v{26+i}, v{40+r}, v{40+r}")
        a("v_xor_b32 v30, 16, v1"); a("v_lshlrev_b32 v30, 2, v30")
        a("v_xor_b32 v31, 32, v1"); a("v_lshlrev_b32 v31, 2, v31")
        for addr in ("v30", "v31"):
            for r in range(4): a(f"ds_bpermute_b32 v{32+r}, {addr}, v{24+r}")
            a("s_waitcnt lgkmcnt(0)")
            for r in range(4): a(f"v_add_f32 v{24+r}, v{24+r}, v{32+r}")
        X = R*STG
        a("s_lshl_b32 s30, s26, 8")
        a(f"s_add_u32 s30, s30, {X}")
        a("v_lshl_add_u32 v36, v3, 3, s30")
        for i in range(2):
            a(f"v_mov_b32 v{40+2*i}, v{24+i}"); a(f"v_mov_b32 v{41+2*i}, v{26+i}")
            a(f"ds_write_b64 v36, {vr(40+2*i,2)} offset:{i*128}")
        a("s_waitcnt lgkmcnt(0)")
        a("s_barrier")
        a("s_cmp_eq_u32 s42, 0")
        a(f"s_cbranch_scc0 {a.name}_done")
        for i in range(2): a(f"ds_read_b64 {vr(44+2*i,2)}, v36 offset:{256 + i*128}")
        a("s_lshl_b32 s30, s24, 11")
        a("s_add_u32 s30, s30, s27")
        a("v_add_u32 v37, s30, v3")
        a("v_lshlrev_b32 v37, 3, v37")
        a("v_cmp_gt_u32 vcc, 16, v1")
        a("s_waitcnt lgkmcnt(0)")
        for r in range(4): a(f"v_add_f32 v{40+r}, v{40+r}, v{44+r}")
        a("s_and_saveexec_b64 s[52:53], vcc")
        for i in range(2): a(f"buffer_store_dwordx2 {vr(40+2*i,2)}, v37, s[44:47], 0 offen offset:{i*128}")
        a("s_mov_b64 exec, s[52:53]")
    skeleton(a, R, STG, NST, 5, loader_setup, dma, cons_setup, body, (6, 5), epilogue)
    return a.text(), descriptor(a.name, 120, 0), f"; @launch kernel={a.name} grid=(192,1,1) block=(512,1,1) lds={R*STG + 1024}"


def k3b():
    a = Asm("ln_kernel"); header(a)
    a("s_cmp_ge_u32 s2, 576")
    a(f"s_cbranch_scc1 {a.name}_end")
    a("s_load_dwordx2 s[28:29], s[0:1], 80")
    a("s_lshl_b32 s3, s2, 8")
    a("v_add_u32 v1, s3, v0")
    a("v_lshlrev_b32 v2, 4, v1")
    a("s_mul_i32 s4, s2, 683")
    a("s_lshr_b32 s4, s4, 16")
    a("s_mul_i32 s4, s4, 24576")
    a("v_subrev_u32 v3, s4, v1")
    a("v_mul_u32_u24 v3, 43691, v3")
    a("v_lshrrev_b32 v3, 19, v3")
    a("v_lshlrev_b32 v3, 3, v3")
    a("s_waitcnt lgkmcnt(0)")
    srd_ws(a, 8, 28, WS_H, SZ_SD)
    srd_ws(a, 12, 28, WS_G, SZ_SD)
    srd_ws(a, 16, 28, WS_ST, SZ_ST)
    a("buffer_load_dwordx4 v[4:7], v2, s[8:11], 0 offen")
    for p in range(6):
        a(f"s_mov_b32 s20, {p*16384}")
        a(f"buffer_load_dwordx2 {vr(8+2*p,2)}, v3, s[16:19], s20 offen")
    a(f"s_mov_b32 s41, {f32hex(1.0/576)}")
    a(f"s_mov_b32 s42, {f32hex(1e-5)}")
    a("s_waitcnt vmcnt(0)")
    b = 8
    for c in range(2):
        a(f"v_add_f32 v{b+c}, v{b+c}, v{b+2+c}")
        a(f"v_add_f32 v{b+4+c}, v{b+4+c}, v{b+6+c}")
        a(f"v_add_f32 v{b+8+c}, v{b+8+c}, v{b+10+c}")
        a(f"v_add_f32 v{b+c}, v{b+c}, v{b+4+c}")
        a(f"v_add_f32 v{b+c}, v{b+c}, v{b+8+c}")
    a(f"v_mul_f32 v{b}, s41, v{b}")
    a(f"v_mul_f32 v{b+1}, s41, v{b+1}")
    a(f"v_fma_f32 v{b+1}, -v{b}, v{b}, v{b+1}")
    a(f"v_max_f32 v{b+1}, 0, v{b+1}")
    a(f"v_add_f32 v{b+2}, s42, v{b+1}")
    a(f"v_rcp_f32 v{b+3}, v{b+2}")
    a(f"v_rsq_f32 v{b+4}, v{b+2}")
    a("s_nop 0")
    a(f"v_mul_f32 v{b+3}, v{b+3}, v{b+1}")
    a(f"v_add_f32 v{b+3}, s42, v{b+3}")
    a(f"v_rsq_f32 v{b+3}, v{b+3}")
    a("s_nop 0")
    a(f"v_mul_f32 v{b+6}, v{b+3}, v{b+4}")
    a(f"v_mul_f32 v{b+7}, v{b+6}, v{b}")
    for r in range(4):
        a(f"v_lshlrev_b32 v20, 16, v{4+r}")
        a(f"v_and_b32 v21, 0xffff0000, v{4+r}")
        a(f"v_fma_f32 v20, v20, v14, -v15")
        a(f"v_fma_f32 v21, v21, v14, -v15")
        a(f"v_cvt_pk_bf16_f32 v{4+r}, v20, v21")
    a("buffer_store_dwordx4 v[4:7], v2, s[12:15], 0 offen")
    a.lab(f"{a.name}_end")
    a("s_endpgm")
    return a.text(), descriptor(a.name, 24, 0), f"; @launch kernel={a.name} grid=(576,1,1) block=(256,1,1) lds=0"


def build(kernels):
    hdr = "; generated by gen.py\n"
    texts, descs, launches = [], [], []
    for k in kernels:
        t, d, l = k()
        texts.append(t); descs.append(d); launches.append(l)
    if 'dup3' in FL: launches.append(launches[2])
    if 'dup45' in FL: launches = launches[:4] + [launches[3], launches[4], launches[4], launches[5]]
    out = hdr + "\n".join(launches) + "\n"
    out += '.amdgcn_target "amdgcn-amd-amdhsa--gfx950"\n.text\n'
    out += "\n".join(texts)
    out += '.section .rodata,"a"\n' + "\n".join(descs)
    return out

if __name__ == "__main__":
    ks = [k1, k2, k3, k3b, k4, k5, k6]
    out = build(ks)
    open(sys.argv[1] if len(sys.argv) > 1 else "out.s", "w").write(out)
```

```python
import sys, math, os
FL = os.environ.get('FLAGS', '').split(',')

S, D, F, H, DH = 2048, 576, 4608, 32, 18
WS_Q  = 0x0        ; SZ_Q  = 32*2048*48
WS_KV = 0x300000   ; HB = 159744 ; SZ_KV = 32*HB + 8192
WS_O  = 0x800000   ; SZ_SD = 2048*576*2
WS_H  = 0xA80000
WS_G  = 0xD00000
WS_ST = 0xF80000   ; SZ_ST = 6*2048*8
WS_U  = 0x1000000  ; SZ_U = 576*4608*2
WS_P  = 0x1800000  ; SZ_P = 4*2048*576*4
CHUNK = 39936
LOG2E = 1.4426950408889634
QSCALE = (18 ** -0.5) * LOG2E

import struct
def f32hex(x):
    return "0x%08x" % struct.unpack("<I", struct.pack("<f", x))[0]

class Asm:
    def __init__(s, name):
        s.name = name; s.t = []; s.nl = 0
    def __call__(s, line):
        if s.name in ('mlp1_kernel', 'mlp2_kernel'):
            if 'gnomfma' in FL and line.startswith('v_mfma'): return
            if 'gnords' in FL and line.startswith('ds_read'): return
            if 'gnodma' in FL and line.startswith('buffer_load') and line.endswith('lds'): return
            if 'gnobar' in FL and line.startswith('s_barrier'): return
            if 'gnopk' in FL and (line.startswith('v_pk_fma') or line.startswith('v_cvt_pk_bf16_f32 v3') or line.startswith('v_cvt_pk_bf16_f32 v4') or line.startswith('v_cvt_pk_bf16_f32 v5') or line.startswith('v_cvt_pk_bf16_f32 v6') or line.startswith('v_cvt_pk_bf16_f32 v7') or line.startswith('v_lshlrev_b32 v28') or line.startswith('v_and_b32 v29') or line.startswith('v_cvt_pk_bf16_f32 v8') or line.startswith('v_cvt_pk_bf16_f32 v9') or line.startswith('v_cvt_pk_bf16_f32 v10') or line.startswith('v_cvt_pk_bf16_f32 v11')): return
            if 'gnowr' in FL and line.startswith('ds_write_b128'): return
            if 'gnohl' in FL and line.startswith('buffer_load_dwordx4 v['): return
        if s.name == 'qkv_kernel':
            if 'k1nostore' in FL and line.startswith('buffer_store'): return
            if 'k1nomfma' in FL and line.startswith('v_mfma'): return
            if 'k1nodot' in FL and line.startswith('v_dot2c'): return
            if 'k1notr' in FL and line.startswith('ds_read_b64_tr'): return
            if 'k1noa' in FL and line.startswith('buffer_load_dwordx4 v['): return
            if 'k1nodma' in FL and line.startswith('buffer_load') and line.endswith('lds'): return
            if 'k1nobar' in FL and line.startswith('s_barrier'): return
        s.t.append("    " + line)
    def lab(s, l):
        s.t.append(l + ":")
    def newlabel(s, p="L"):
        s.nl += 1
        return f"{s.name}_{p}{s.nl}"
    def text(s):
        return "\n".join(s.t) + "\n"

def vr(b, n):  return f"v[{b}:{b+n-1}]"
def ar(b, n):  return f"a[{b}:{b+n-1}]"
def sr(b, n):  return f"s[{b}:{b+n-1}]"

def srd_from_arg(a, sreg, argoff, size, tmp):
    a(f"s_mov_b32 s{sreg}, s{tmp}")
    a(f"s_mov_b32 s{sreg+1}, s{tmp+1}")
    a(f"s_mov_b32 s{sreg+2}, {size}")
    a(f"s_mov_b32 s{sreg+3}, 0x00020000")

def srd_ws(a, sreg, wsreg, off, size):
    a(f"s_add_u32 s{sreg}, s{wsreg}, {off}")
    a(f"s_addc_u32 s{sreg+1}, s{wsreg+1}, 0")
    a(f"s_mov_b32 s{sreg+2}, {size}")
    a(f"s_mov_b32 s{sreg+3}, 0x00020000")

def stamp_begin(a, wsreg=28):
    if 'stamp_' + a.name[:4] in FL:
        srd_ws(a, 80, wsreg, 0x3000000, 0x100000)
        a("s_memtime s[84:85]"); a("s_memrealtime s[86:87]")
def stamp_mid(a, k):
    if 'stamp_' + a.name[:4] in FL:
        a(f"s_memtime s[{88+2*k}:{89+2*k}]")
def stamp_end(a, nwaves, wavereg=26):
    if 'stamp_' + a.name[:4] in FL:
        a("s_memtime s[92:93]"); a("s_memrealtime s[94:95]"); a("s_waitcnt lgkmcnt(0)")
        a("s_sub_u32 s88, s88, s84"); a("s_sub_u32 s92, s92, s84"); a("s_sub_u32 s94, s94, s86"); a("s_sub_u32 s90, s90, s84")
        a("v_mov_b32 v16, s88"); a("v_mov_b32 v17, s92"); a("v_mov_b32 v18, s94"); a("v_mov_b32 v19, s90")
        a(f"s_mul_i32 s70, s2, {nwaves}"); a(f"s_add_u32 s70, s70, s{wavereg}"); a("s_lshl_b32 s70, s70, 4")
        a("v_mov_b32 v20, s70")
        a("buffer_store_dwordx4 v[16:19], v20, s[80:83], 0 offen")

def prefetch(a, srd, nlines, nshare, share_sgpr, addr_fn, vt=250, wave_sgpr=26, nwaves=4, dst=255):
    if 'pf' not in FL: return
    per = (nlines + nshare - 1)//nshare
    nt = (per + 64*nwaves - 1)//(64*nwaves)
    a(f"s_lshl_b32 s60, s{wave_sgpr}, 6")
    for t in range(nt):
        a(f"v_add_u32 v{vt}, s60, v1")
        if t: a(f"v_add_u32 v{vt}, {t*nwaves*64}, v{vt}")
        if nshare > 1:
            a(f"v_mul_u32_u24 v{vt}, {nshare}, v{vt}")
            a(f"v_add_u32 v{vt}, s{share_sgpr}, v{vt}")
        addr_fn(vt, vt+1)
        a(f"buffer_load_dword v{dst}, v{vt+1}, s[{srd}:{srd+3}], 0 offen")

def header(a):
    a.t.append(f".globl {a.name}\n.p2align 8\n.type {a.name},@function\n{a.name}:")

def descriptor(name, vgpr, agpr, sgpr=96):
    acc = (vgpr + 3) // 4 * 4
    return f""".p2align 6
.amdhsa_kernel {name}
  .amdhsa_next_free_vgpr {acc + agpr if agpr else vgpr}
  .amdhsa_next_free_sgpr {sgpr}
  .amdhsa_accum_offset {acc}
  .amdhsa_group_segment_fixed_size 0
  .amdhsa_kernarg_size 88
  .amdhsa_user_sgpr_count 2
  .amdhsa_user_sgpr_kernarg_segment_ptr 1
  .amdhsa_system_sgpr_workgroup_id_x 1
.end_amdhsa_kernel
"""

def interleave(main, *fill):
    out = []
    n = len(main)
    pos = [0]*len(fill)
    for idx, m in enumerate(main):
        out.append(m)
        for fi, f in enumerate(fill):
            tgt = (idx+1)*len(f)//n
            while pos[fi] < tgt:
                out.append(f[pos[fi]]); pos[fi] += 1
    return out

def k2():
    a = Asm("attn_kernel"); header(a)
    Q1, Q2 = 8, 12
    KF1 = lambda b: 16 + 8*b
    KF2 = lambda b: 20 + 8*b
    VF = lambda b, t: 32 + 8*b + 4*t
    SS = lambda b: 48 + 16*b
    PP = lambda b: 80 + 8*b
    E = 96; O = 112
    a("s_cmp_ge_u32 s2, 256")
    a(f"s_cbranch_scc1 {a.name}_end")
    a("s_load_dwordx2 s[28:29], s[0:1], 80")
    a("s_load_dwordx2 s[4:5], s[0:1], 32")
    a("s_load_dwordx2 s[6:7], s[0:1], 48")
    a("s_load_dwordx2 s[64:65], s[0:1], 16")
    a("s_and_b32 s24, s2, 7")
    a("s_lshl_b32 s24, s24, 2")
    a("s_lshr_b32 s25, s2, 3")
    a("s_and_b32 s25, s25, 3")
    a("s_add_u32 s24, s24, s25")
    a("s_lshr_b32 s25, s2, 5")
    a("v_and_b32 v1, 63, v0")
    a("v_lshrrev_b32 v2, 5, v1")
    a("v_and_b32 v3, 31, v1")
    a("v_lshrrev_b32 v4, 6, v0")
    a("s_nop 1")
    a("v_readfirstlane_b32 s26, v4")
    a("s_waitcnt lgkmcnt(0)")
    srd_ws(a, 8, 28, WS_Q, SZ_Q)
    srd_ws(a, 12, 28, WS_KV, SZ_KV)
    srd_ws(a, 16, 28, WS_O, SZ_SD)
    srd_from_arg(a, 44, 32, S*F*2, 4)
    srd_from_arg(a, 48, 48, S*F*2, 6)
    srd_from_arg(a, 76, 16, D*D*2, 64)
    if 'stamp' in FL:
        srd_ws(a, 20, 28, 0x3000000, 0x100000)
        a("s_memtime s[72:73]"); a("s_memrealtime s[74:75]")
    lpf = f"{a.name}_nopf"
    NPF = 4
    a("s_cmp_ge_u32 s26, 8")
    a(f"s_cbranch_scc0 {lpf}")
    a("s_and_b32 s52, s2, 7")
    a("s_lshr_b32 s53, s2, 3")
    a("s_mul_i32 s53, s53, 576")
    a("s_sub_u32 s54, s26, 8")
    a(f"s_mul_i32 s54, s54, {576//NPF}")
    a("s_add_u32 s53, s53, s54")
    a("s_lshr_b32 s56, s52, 1")
    a(f"s_mul_i32 s56, s56, {1152*4096}")
    a("s_and_b32 s57, s52, 1")
    a("s_lshl_b32 s57, s57, 11")
    a("s_add_u32 s56, s56, s57")
    a("s_mul_i32 s57, s52, 1152")
    a(f"s_mul_i32 s30, s24, {HB}")
    a("s_sub_u32 s31, s26, 8")
    a("s_lshl_b32 s31, s31, 10")
    a("s_add_u32 s31, s31, 40960")
    a("s_add_u32 s30, s30, s31")
    a("v_lshl_add_u32 v4, v1, 4, s30")
    a("s_barrier")
    for n in range(30):
        a(f"s_add_u32 m0, s31, {n*4096}")
        a(f"s_mov_b32 s32, {n*4096}")
        a(f"buffer_load_dwordx4 v4, s[12:15], s32 offen lds")
    if 'pfearly' not in FL:
        a("s_waitcnt vmcnt(0)")
        a("s_barrier")
    LPI = 48
    if 'cpf' in FL:
        lc = a.newlabel("cpf")
        a("s_cmp_lt_u32 s2, 32")
        a(f"s_cbranch_scc0 {lc}")
        a("s_cmp_eq_u32 s26, 8")
        a(f"s_cbranch_scc0 {lc}")
        a("s_getpc_b64 s[62:63]")
        a.lab(f"{a.name}_pc")
        a(f"s_add_u32 s62, s62, oproj_kernel-{a.name}_pc")
        a("s_addc_u32 s63, s63, 0")
        for n in range(4):
            a("v_lshlrev_b32 v12, 7, v1")
            if n: a(f"v_add_u32 v12, {n*8192}, v12")
            a("v_cmp_gt_u32 vcc, code_end-oproj_kernel-4, v12")
            a("v_mov_b32 v13, s63")
            a("v_add_co_u32 v14, s[60:61], s62, v12")
            a("v_addc_co_u32 v15, s[60:61], v13, 0, s[60:61]")
            a("s_and_saveexec_b64 s[60:61], vcc")
            l2 = a.newlabel("cs")
            a(f"s_cbranch_execz {l2}")
            a("global_load_dword v16, v[14:15], off")
            a.lab(l2)
            a("s_mov_b64 exec, s[60:61]")
        a.lab(lc)
    a("s_mov_b32 exec_hi, 0xffff")
    if 'noapf' not in FL:
        a("s_lshr_b32 s58, s2, 3")
        a("s_lshl_b32 s58, s58, 2")
        a("s_add_u32 s58, s58, s26")
        a("s_sub_u32 s58, s58, 8")
        a("s_mul_i32 s58, s58, 41")
        a("v_add_u32 v5, s58, v1")
        a("v_lshlrev_b32 v6, 7, v5")
        a("buffer_load_dword v10, v6, s[76:79], 0 offen")
    a("s_lshr_b32 s58, s2, 3")
    a("s_lshl_b32 s58, s58, 2")
    a("s_add_u32 s58, s58, s26")
    a("s_sub_u32 s58, s58, 8")
    xp = 'xpf' in FL
    a(f"s_mul_i32 s59, s58, {96 if xp else 144}")
    if xp: a("s_add_u32 s59, s59, 6144")
    for n in range((2 if xp else 3) if 'noapf' not in FL else 0):
        a("v_add_u32 v20, s59, v1")
        if n: a(f"v_add_u32 v20, {48*n}, v20")
        a("v_mul_u32_u24 v21, 58255, v20")
        a("v_lshrrev_b32 v21, 19, v21")
        a("v_mul_u32_u24 v22, 9, v21")
        a("v_sub_u32 v22, v20, v22")
        a("v_mul_u32_u24 v21, 9216, v21")
        a("v_lshl_add_u32 v21, v22, 7, v21")
        a("buffer_load_dword v23, v21, s[44:47], s57 offen")
    a(f"s_mul_i32 s59, s58, {108 if xp else 144}")
    for n in range(3 if 'noapf' not in FL else 0):
        a("v_add_u32 v5, s59, v1")
        if n: a(f"v_add_u32 v5, {(36 if xp else 48)*n}, v5")
        a("v_lshrrev_b32 v6, 4, v5")
        a("v_lshlrev_b32 v6, 12, v6")
        a("v_and_b32 v7, 15, v5")
        a("v_lshl_add_u32 v6, v7, 7, v6")
        a("buffer_load_dword v9, v6, s[48:51], s56 offen")
    if 'pfearly' in FL:
        a(f"s_waitcnt vmcnt({7 if 'noapf' not in FL else 0})")
        a("s_barrier")
    a("s_endpgm")
    a.lab(lpf)
    a("s_lshl_b32 s27, s25, 8")
    a("s_lshl_b32 s30, s26, 5")
    a("s_add_u32 s27, s27, s30")
    a("s_lshl_b32 s30, s24, 11")
    a("s_add_u32 s30, s30, s27")
    a("v_add_u32 v128, s30, v3")
    a("v_mul_u32_u24 v128, 48, v128")
    a("v_lshl_add_u32 v129, v2, 4, v128")
    a(f"buffer_load_dwordx4 {vr(Q1,4)}, v129, s[8:11], 0 offen")
    a(f"buffer_load_dword v{Q2}, v128, s[8:11], 0 offen offset:32")
    a(f"s_mul_i32 s30, s24, {HB}")
    a("s_lshl_b32 s31, s26, 10")
    a("s_add_u32 s30, s30, s31")
    a("v_lshl_add_u32 v4, v1, 4, s30")
    for n in range(5):
        a(f"s_add_u32 m0, s31, {n*8192}")
        a(f"s_mov_b32 s32, {n*8192}")
        a(f"buffer_load_dwordx4 v4, s[12:15], s32 offen lds")
    a("v_lshlrev_b32 v5, 4, v1")
    a("v_lshlrev_b32 v6, 3, v3")
    a("v_add_u32 v6, 16384, v6")
    a("v_min_u32 v7, 18, v3")
    a("v_lshlrev_b32 v7, 4, v7")
    a("v_mul_u32_u24 v130, 304, v2")
    a("v_add_u32 v7, v7, v130")
    a("v_add_u32 v7, 20480, v7")
    a("v_mov_b32 v131, v5"); a("v_mov_b32 v132, v6"); a("v_mov_b32 v133, v7")
    for r in list(range(KF2(0)+2, KF2(0)+4)) + list(range(KF2(1)+2, KF2(1)+4)) + list(range(32, 48)) + list(range(80, 96)) + list(range(O, O+16)) + [Q2+1, Q2+2, Q2+3]:
        a(f"v_mov_b32 v{r}, 0")
    a("v_cmp_gt_u32 s[34:35], 32, v1")
    a("s_waitcnt vmcnt(0)")
    a(f"v_cndmask_b32 v{Q2}, 0, v{Q2}, s[34:35]")
    a("s_barrier")
    if 'stamp' in FL: a("s_memtime s[64:65]")
    def kread(t, b):
        off = (t // 16)*CHUNK; tt = t % 16
        return [f"ds_read_b128 {vr(KF1(b),4)}, v5 offset:{off + tt*1024}",
                f"ds_read_b64 {vr(KF2(b),2)}, v6 offset:{off + tt*256}"]
    def vread(t, b):
        return [f"ds_read_b128 {vr(VF(b,0),4)}, v7 offset:{t*1216}",
                f"ds_read_b128 {vr(VF(b,1),4)}, v7 offset:{t*1216 + 608}"]
    def qk(b):
        return [f"v_mfma_f32_32x32x16_bf16 {vr(SS(b),16)}, {vr(KF1(b),4)}, {vr(Q1,4)}, 0",
                f"v_mfma_f32_32x32x16_bf16 {vr(SS(b),16)}, {vr(KF2(b),4)}, {vr(Q2,4)}, {vr(SS(b),16)}"]
    def pv(b):
        return [f"v_mfma_f32_32x32x16_bf16 {vr(O,16)}, {vr(VF(b,0),4)}, {vr(PP(b),4)}, {vr(O,16)}",
                f"v_mfma_f32_32x32x16_bf16 {vr(O,16)}, {vr(VF(b,1),4)}, {vr(PP(b)+4,4)}, {vr(O,16)}"]
    for x in kread(0, 0) + kread(1, 1): a(x)
    a("s_waitcnt lgkmcnt(0)")
    for x in qk(0): a(x)
    a("s_nop 7"); a("s_nop 7")
    a(f"v_max_f32 v134, v{SS(0)}, v{SS(0)+1}")
    for r in range(2, 16): a(f"v_max_f32 v134, v134, v{SS(0)+r}")
    a("v_mov_b32 v135, v134")
    a("s_nop 1")
    a("v_permlane32_swap_b32 v134, v135")
    a("s_nop 1")
    a("v_max_f32 v134, v134, v135")
    a("v_sub_f32 v134, 0, v134")
    a("v_cvt_pk_bf16_f32 v134, v134, 0")
    a("s_nop 0")
    a(f"v_cndmask_b32 v{Q2+1}, 0, v134, s[34:35]")
    a("s_nop 1")
    for x in qk(0): a(x)
    a("s_mov_b32 s33, 0")
    if 'aprio' in FL:
        l = a.newlabel("pr")
        a("s_cmp_ge_u32 s26, 4")
        a(f"s_cbranch_scc0 {l}")
        a("s_setprio 1")
        a.lab(l)
    a("s_nop 7"); a("s_nop 3")
    a.lab(f"{a.name}_loop")
    for t in range(16):
        b = t % 2; nb = 1 - b
        if t == 14:
            l = a.newlabel("nb")
            a("s_cmp_eq_u32 s33, 0")
            a(f"s_cbranch_scc0 {l}")
            a("s_waitcnt vmcnt(0)")
            a("s_barrier")
            a.lab(l)
        a("s_waitcnt lgkmcnt(0)")
        e = [f"v_exp_f32 v{E+r}, v{SS(b)+r}" for r in range(16)]
        c = [f"v_cvt_pk_bf16_f32 v{PP(b)+r}, v{E+2*r}, v{E+2*r+1}" for r in range(8)]
        m1 = qk(nb); m2 = pv(nb)
        kr = kread(t+2, b); vrd = vread(t, b)
        if 'aord2' in FL:
            seq = [m1[0], kr[0]] + e[0:3] + [kr[1]] + e[3:5] + [m1[1], vrd[0]] + e[5:8] + [c[0], vrd[1], c[1]] + e[8:9] + [m2[0]] + e[9:12] + [c[2], c[3]] + e[12:13] + [m2[1]] + e[13:16] + [c[4], c[5], c[6], c[7]]
        elif 'aord3' in FL:
            seq = [kr[0], kr[1], vrd[0], vrd[1], m1[0]] + e[0:5] + [m1[1]] + e[5:8] + [c[0], c[1], c[2], m2[0]] + e[8:13] + [m2[1]] + e[13:16] + [c[3], c[4], c[5], c[6], c[7]]
        else:
            seq = [m1[0], kr[0], kr[1]] + e[0:4] + [vrd[0], m1[1], vrd[1]] + e[4:8] + [c[0], c[1], m2[0]] + e[8:12] + [c[2], c[3], m2[1]] + e[12:16] + [c[4], c[5], c[6], c[7]]
        for x in seq: a(x)
    a(f"v_add_u32 v5, {CHUNK}, v5"); a(f"v_add_u32 v6, {CHUNK}, v6"); a(f"v_add_u32 v7, {CHUNK}, v7")
    a("s_add_u32 s33, s33, 1")
    a("s_cmp_lt_u32 s33, 4")
    a(f"s_cbranch_scc1 {a.name}_loop")
    a("s_waitcnt lgkmcnt(0)")
    for x in pv(1): a(x)
    if 'stamp' in FL:
        a("s_memtime s[66:67]"); a("s_memrealtime s[68:69]"); a("s_waitcnt lgkmcnt(0)")
        a("s_sub_u32 s64, s64, s72"); a("s_sub_u32 s66, s66, s72"); a("s_sub_u32 s68, s68, s74")
        a("v_mov_b32 v140, s64"); a("v_mov_b32 v141, s66"); a("v_mov_b32 v142, s68"); a("v_mov_b32 v143, s72")
        a("s_lshl_b32 s70, s2, 3"); a("s_add_u32 s70, s70, s26"); a("s_lshl_b32 s70, s70, 4")
        a("v_mov_b32 v139, s70")
        a("buffer_store_dwordx4 v[140:143], v139, s[20:23], 0 offen")
    a.lab(f"{a.name}_fin")
    a("s_nop 7"); a("s_nop 7")
    a(f"v_mov_b32 v134, v{O+10}")
    a(f"v_mov_b32 v135, v{O+10}")
    a("s_nop 1")
    a("v_permlane32_swap_b32 v134, v135")
    a(f"s_mov_b32 s36, {f32hex(2.0**40)}")
    a("s_nop 0")
    a("v_cmp_nlt_f32 vcc, v134, s36") if False else a("v_cmp_ngt_f32 vcc, s36, v134")
    a("s_cmp_eq_u32 s33, 99")
    a(f"s_cbranch_scc1 {a.name}_store")
    a(f"s_cbranch_vccnz {a.name}_slow")
    a.lab(f"{a.name}_store")
    a("v_rcp_f32 v134, v134")
    a("s_nop 0")
    for r in range(10): a(f"v_mul_f32 v{O+r}, v{O+r}, v134")
    for r in range(5): a(f"v_cvt_pk_bf16_f32 v{E+r}, v{O+2*r}, v{O+2*r+1}")
    a("v_add_u32 v128, s27, v3")
    a("v_mul_u32_u24 v128, 1152, v128")
    a("v_lshl_add_u32 v128, v2, 3, v128")
    a("s_mul_i32 s30, s24, 36")
    a(f"buffer_store_dwordx2 {vr(E,2)}, v128, s[16:19], s30 offen")
    a(f"buffer_store_dwordx2 {vr(E+2,2)}, v128, s[16:19], s30 offen offset:16")
    a("s_and_saveexec_b64 s[38:39], s[34:35]")
    a(f"buffer_store_dword v{E+4}, v128, s[16:19], s30 offen offset:32")
    a("s_endpgm")
    a.lab(f"{a.name}_slow")
    a("v_mov_b32 v5, v131"); a("v_mov_b32 v6, v132"); a("v_mov_b32 v7, v133")
    a(f"v_mov_b32 v{Q2+1}, 0")
    for r in range(16): a(f"v_mov_b32 v{O+r}, 0")
    a("v_mov_b32 v136, 0xff800000")
    a("s_mov_b32 s33, 0")
    a.lab(f"{a.name}_sl1")
    a("s_mov_b32 s37, 0")
    a.lab(f"{a.name}_sl2")
    for x in kread(0, 0) + vread(0, 0): a(x)
    a("s_waitcnt lgkmcnt(0)")
    for x in qk(0): a(x)
    a("s_nop 7"); a("s_nop 7")
    a(f"v_max_f32 v134, v{SS(0)}, v{SS(0)+1}")
    for r in range(2, 16): a(f"v_max_f32 v134, v134, v{SS(0)+r}")
    a("v_mov_b32 v135, v134")
    a("s_nop 1")
    a("v_permlane32_swap_b32 v134, v135")
    a("s_nop 1")
    a("v_max_f32 v134, v134, v135")
    a("v_max_f32 v134, v134, v136")
    a("v_sub_f32 v135, v136, v134")
    a("v_exp_f32 v135, v135")
    a("v_mov_b32 v136, v134")
    for r in range(16): a(f"v_sub_f32 v{E+r}, v{SS(0)+r}, v134")
    for r in range(16): a(f"v_exp_f32 v{E+r}, v{E+r}")
    for r in range(16): a(f"v_mul_f32 v{O+r}, v{O+r}, v135")
    for r in range(8): a(f"v_cvt_pk_bf16_f32 v{PP(0)+r}, v{E+2*r}, v{E+2*r+1}")
    a("s_nop 1")
    for x in pv(0): a(x)
    a("s_nop 7"); a("s_nop 7")
    a("v_add_u32 v5, 1024, v5"); a("v_add_u32 v6, 256, v6"); a("v_add_u32 v7, 1216, v7")
    a("s_add_u32 s37, s37, 1")
    a("s_cmp_lt_u32 s37, 16")
    a(f"s_cbranch_scc1 {a.name}_sl2")
    a(f"v_add_u32 v5, {CHUNK-16*1024}, v5"); a(f"v_add_u32 v6, {CHUNK-16*256}, v6"); a(f"v_add_u32 v7, {CHUNK-16*1216}, v7")
    a("s_add_u32 s33, s33, 1")
    a("s_cmp_lt_u32 s33, 4")
    a(f"s_cbranch_scc1 {a.name}_sl1")
    a("s_mov_b32 s33, 99")
    a(f"s_branch {a.name}_fin")
    a.lab(f"{a.name}_end")
    a("s_endpgm")
    return a.text(), descriptor(a.name, 144, 0), f"; @launch kernel={a.name} grid=(256,1,1) block=(768,1,1) lds=163840"

def swap23(a, p, t1, t2):
    a(f"v_and_b32 v{t1}, 0x33, v{p}")
    a(f"v_and_b32 v{t2}, 4, v{p}")
    a(f"v_lshlrev_b32 v{t2}, 1, v{t2}")
    a(f"v_or_b32 v{t1}, v{t1}, v{t2}")
    a(f"v_and_b32 v{t2}, 8, v{p}")
    a(f"v_lshrrev_b32 v{t2}, 1, v{t2}")
    a(f"v_or_b32 v{t1}, v{t1}, v{t2}")

def sched_waits(seq):
    issued = []
    out = []
    known = 0
    for it in range(2):
        for item in seq:
            if item[0] == 'r':
                name, rel = item[1]
                issued.append((name, it + rel))
                if it == 1: out.append(item[2])
            elif item[0] == 'm':
                if it == 1:
                    idx = max(i for i, (n, t) in enumerate(issued) if t == it and n in item[1])
                    assert len([1 for (n, t) in issued if t == it and n in item[1]]) == len(item[1]), item
                    if idx + 1 > known:
                        cnt = min(len(issued) - (idx + 1), 15)
                        out.append(f"s_waitcnt lgkmcnt({cnt})")
                        known = idx + 1
                    out.append(item[2])
            else:
                if it == 1: out.append(item[1])
    return out

def skeleton(a, R, STG, NST, NLD, loader_setup, dma, cons_setup, body, nbase, epilogue, custom_loader=None):
    skeleton2(a, R, STG, NST, NLD, loader_setup, dma, cons_setup, [(None, body, epilogue)], nbase, custom_loader)

def skeleton2(a, R, STG, NST, NLD, loader_setup, dma, cons_setup, variants, nbase, custom_loader=None, tail=None):
    a("s_cmp_ge_u32 s26, 4")
    a(f"s_cbranch_scc0 {a.name}_cons")
    a("s_sub_u32 s26, s26, 4")
    if custom_loader:
        a("s_cmp_ge_u32 s26, 4")
        a(f"s_cbranch_scc0 {a.name}_std")
        a("s_sub_u32 s26, s26, 4")
        custom_loader()
        a("s_endpgm")
        a.lab(f"{a.name}_std")
    if 'lprio' in FL: a("s_setprio 2")
    std_loader(a, R, STG, NST, NLD, loader_setup, dma, tail)
    cons_part(a, R, STG, NST, cons_setup, variants, nbase)

def std_loader(a, R, STG, NST, NLD, loader_setup, dma, tail=None):
    loader_setup()
    a("s_mov_b32 s34, 0")
    def dma_adv():
        dma()
        a(f"s_add_u32 s34, s34, {STG}")
        a(f"s_cmp_eq_u32 s34, {R*STG}")
        a("s_cselect_b32 s34, 0, s34")
    for st in range(R-1): dma_adv()
    a(f"s_waitcnt vmcnt({(R-2)*NLD})")
    a("s_barrier")
    a("s_mov_b32 s40, 0")
    a.lab(f"{a.name}_lloop")
    a(f"s_waitcnt vmcnt({(R-3)*NLD})")
    a("s_barrier")
    dma_adv()
    a("s_add_u32 s40, s40, 1")
    a(f"s_cmp_lt_u32 s40, {NST-R+1}")
    a(f"s_cbranch_scc1 {a.name}_lloop")
    extra = tail() if tail else 0
    for k in range(R-1):
        a(f"s_waitcnt vmcnt({max(R-3-k,0)*NLD + extra})")
        a("s_barrier")
    a("s_endpgm")

def cons_part(a, R, STG, NST, cons_setup, variants, nbase):
    a.lab(f"{a.name}_cons")
    if 'cprio' in FL: a("s_setprio 2")
    cons_setup()
    nb0, n = nbase
    for r in range(n):
        a(f"v_mov_b32 v{nb0+n+r}, v{nb0+r}")
        a(f"v_mov_b32 v{nb0+2*n+r}, v{nb0+r}")
    a("s_mov_b32 s39, 0")
    a("s_mov_b32 s40, 0")
    a("s_barrier")
    stamp_mid(a, 0)
    for vi, (cmp, body, epilogue) in enumerate(variants):
        if vi: a.lab(f"{a.name}_var{vi}")
        if cmp:
            a(cmp); a(f"s_cbranch_scc1 {a.name}_var{vi+1}")
        seq = body()
        for item in seq:
            if item[0] == 'r' and item[1][1] == 1: a(item[2])
        a.lab(f"{a.name}_loop{vi}")
        a(f"s_add_u32 s39, s39, {STG}")
        a(f"s_cmp_eq_u32 s39, {R*STG}")
        a("s_cselect_b32 s39, 0, s39")
        for r in range(n):
            a(f"v_mov_b32 v{nb0+n+r}, v{nb0+2*n+r}")
            a(f"v_add_u32 v{nb0+2*n+r}, s39, v{nb0+r}")
        for x in sched_waits(seq):
            if x == '@BAR': a("s_barrier")
            elif x.startswith('@LAB '): a.lab(x[5:])
            else: a(x)
        a("s_add_u32 s40, s40, 1")
        a(f"s_cmp_lt_u32 s40, {NST}")
        a(f"s_cbranch_scc1 {a.name}_loop{vi}")
        a("s_waitcnt lgkmcnt(0)")
        stamp_mid(a, 1)
        epilogue()
    a.lab(f"{a.name}_done")
    stamp_end(a, 8)
    a.lab(f"{a.name}_end")
    a("s_endpgm")

def common_entry(a, nwg, args):
    a(f"s_cmp_ge_u32 s2, {nwg}")
    a(f"s_cbranch_scc1 {a.name}_end")
    for reg, off in args: a(f"s_load_dwordx2 s[{reg}:{reg+1}], s[0:1], {off}")
    a("v_and_b32 v1, 63, v0")
    a("v_lshrrev_b32 v2, 4, v1")
    a("v_and_b32 v3, 15, v1")
    a("v_lshrrev_b32 v4, 6, v0")
    a("s_nop 1")
    a("v_readfirstlane_b32 s26, v4")

def k4():
    a = Asm("mlp1_kernel"); header(a)
    R = 5; STG = 28672; NST = 32
    ACC = lambda b: 96 + 16*b
    WF = lambda ks: 24 + ks*4
    GF = lambda ks, b: 40 + (ks*3 + b)*4
    common_entry(a, 256 if 'xpf' in FL else 216, [(4, 32), (6, 40), (28, 80), (64, 48)])
    a("s_and_b32 s24, s2, 7")
    a("s_mul_i32 s24, s24, 27")
    a("s_lshr_b32 s25, s2, 3")
    a("s_add_u32 s24, s24, s25")
    a("s_mul_i32 s25, s24, 10923")
    a("s_lshr_b32 s25, s25, 16")
    a("s_mul_i32 s30, s25, 6")
    a("s_sub_u32 s24, s24, s30")
    a("s_waitcnt lgkmcnt(0)")
    srd_from_arg(a, 8, 32, S*F*2, 4)
    srd_from_arg(a, 12, 40, F*2, 6)
    srd_ws(a, 16, 28, WS_G, SZ_SD)
    srd_ws(a, 20, 28, WS_U, SZ_U)
    srd_from_arg(a, 68, 48, S*F*2, 64)
    lx = f"{a.name}_work"
    a("s_cmp_ge_u32 s2, 216")
    a(f"s_cbranch_scc0 {lx}")
    a("s_and_b32 s52, s2, 7")
    a("s_lshr_b32 s53, s2, 3")
    a("s_sub_u32 s54, s53, 27")
    a("s_lshl_b32 s54, s54, 3")
    a("s_add_u32 s54, s54, s26")
    a("s_mul_i32 s54, s54, 116")
    a("s_add_u32 s54, s54, 13824")
    a("s_lshr_b32 s56, s52, 1")
    a(f"s_mul_i32 s56, s56, {1152*4096}")
    a("s_and_b32 s57, s52, 1")
    a("s_lshl_b32 s57, s57, 11")
    a("s_add_u32 s56, s56, s57")
    a("s_mov_b32 exec_hi, 0xffff")
    for n in range(3 if 'xpf' in FL else 0):
        a("v_add_u32 v5, s54, v1")
        if n: a(f"v_add_u32 v5, {40*n}, v5")
        a("v_min_u32 v5, 18431, v5")
        a("v_lshrrev_b32 v6, 4, v5")
        a("v_lshlrev_b32 v6, 12, v6")
        a("v_and_b32 v7, 15, v5")
        a("v_lshl_add_u32 v6, v7, 7, v6")
        a("buffer_load_dword v9, v6, s[68:71], s56 offen")
    a("s_endpgm")
    a.lab(lx)
    stamp_begin(a)
    def loader_setup():
        a("s_lshl_b32 s30, s26, 4")
        a("v_add_u32 v10, s30, v2")
        a("v_mul_u32_u24 v10, 9216, v10")
        a("v_lshlrev_b32 v11, 2, v2")
        a("v_xor_b32 v11, v11, v3")
        a("v_lshl_add_u32 v10, v11, 4, v10")
        a("s_lshl_b32 s30, s25, 8")
        a("v_add_u32 v5, s30, v10")
        a("s_mul_i32 s30, s26, 3072")
        a(f"s_mul_i32 s31, s24, {2048*192}")
        a("s_add_u32 s30, s30, s31")
        a("v_lshl_add_u32 v6, v1, 4, s30")
        a("s_lshl_b32 s32, s26, 12")
        a("s_mul_i32 s33, s26, 3072")
        a("s_add_u32 s33, s33, 16384")
        a("s_mov_b32 s35, 0"); a("s_mov_b32 s36, 0")
    def dma():
        a("s_add_u32 s37, s34, s32")
        for m in range(4):
            a(f"s_add_u32 m0, s37, {m*1024}")
            a(f"s_add_u32 s38, s35, {m*36864}")
            a("buffer_load_dwordx4 v5, s[8:11], s38 offen lds")
        a("s_add_u32 m0, s34, s33")
        a("s_nop 0")
        for m in range(3):
            a(f"buffer_load_dwordx4 v6, s[16:19], s36 offen offset:{m*1024} lds")
        a(f"s_add_u32 s35, s35, {64*9216}")
        a(f"s_add_u32 s36, s36, {64*192}")
    def cons_setup():
        a("v_lshrrev_b32 v150, 2, v3")
        a("v_and_b32 v151, 3, v3")
        a("v_lshrrev_b32 v152, 1, v2")
        a("v_and_b32 v153, 1, v2")
        a("v_lshl_add_u32 v154, v152, 3, v150")
        a("v_lshrrev_b32 v155, 1, v151")
        a("v_lshl_add_u32 v155, v153, 1, v155")
        a("s_lshl_b32 s30, s26, 2")
        a("v_add_u32 v155, s30, v155")
        a("v_lshlrev_b32 v156, 2, v150")
        a("v_xor_b32 v155, v155, v156")
        a("v_lshlrev_b32 v155, 4, v155")
        a("v_lshl_add_u32 v155, v154, 8, v155")
        a("v_and_b32 v156, 1, v151")
        a("v_lshl_add_u32 v10, v156, 3, v155")
        a("v_mul_u32_u24 v155, 192, v154")
        a("v_lshl_add_u32 v155, v153, 5, v155")
        a("v_lshl_add_u32 v155, v151, 3, v155")
        a("v_add_u32 v11, 16384, v155")
        a("v_lshrrev_b32 v4, 5, v1")
        a("s_lshl_b32 s30, s25, 8")
        a("s_lshl_b32 s31, s26, 6")
        a("s_add_u32 s30, s30, s31")
        a("v_lshl_add_u32 v150, v4, 3, s30")
        for qd in range(4): a(f"buffer_load_dwordx2 {vr(160+2*qd,2)}, v150, s[12:15], 0 offen offset:{16*qd}")
        for r in range(96, 144): a(f"v_mov_b32 v{r}, 0")
    def rd(ks, rel):
        wb, gb = ("v14", "v15") if rel else ("v12", "v13")
        L = []
        for hh in range(2):
            L.append(('r', (f"W{ks}{hh}", rel), f"ds_read_b64_tr_b16 {vr(WF(ks)+2*hh,2)}, {wb} offset:{ks*4096 + hh*1024}"))
        for b in range(3):
            for hh in range(2):
                L.append(('r', (f"G{ks}{b}{hh}", rel), f"ds_read_b64_tr_b16 {vr(GF(ks,b)+2*hh,2)}, {gb} offset:{ks*3072 + hh*768 + 64*b}"))
        return L
    def body():
        seq = []
        for ks in range(4):
            if ks == 2: seq.append(('x', '@BAR'))
            r = rd((ks+2) % 4, 1 if ks >= 2 else 0)
            for b in range(3):
                seq.append(('m', [f"W{ks}0", f"W{ks}1", f"G{ks}{b}0", f"G{ks}{b}1"],
                            f"v_mfma_f32_32x32x16_bf16 {vr(ACC(b),16)}, {vr(WF(ks),4)}, {vr(GF(ks,b),4)}, {vr(ACC(b),16)}"))
                seq += r[3*b:3*b+3]
        return seq
    def epilogue():
        P = 80
        a("s_barrier")
        a(f"s_mul_i32 s47, s26, {96*P}")
        a("v_and_b32 v151, 31, v1")
        a(f"v_mul_u32_u24 v151, {P}, v151")
        a("v_lshl_add_u32 v151, v4, 3, v151")
        a("v_add_u32 v16, s47, v151")
        a("v_lshrrev_b32 v151, 2, v1")
        a("v_and_b32 v152, 3, v1")
        a(f"v_mul_u32_u24 v153, {P}, v151")
        a("v_lshl_add_u32 v153, v152, 4, v153")
        a("v_add_u32 v18, s47, v153")
        a("v_lshlrev_b32 v153, 7, v151")
        a("v_lshl_add_u32 v19, v152, 4, v153")
        a("s_lshr_b32 s31, s26, 1")
        a("s_lshl_b32 s30, s25, 1")
        a("s_add_u32 s31, s31, s30")
        a("s_mul_i32 s31, s31, 73728")
        a("s_and_b32 s30, s26, 1")
        a("s_lshl_b32 s30, s30, 6")
        a("s_add_u32 s31, s31, s30")
        a(f"s_mul_i32 s30, s24, {96*128}")
        a("s_add_u32 s42, s31, s30")
        a("s_add_u32 s43, s42, 4096")
        a("s_add_u32 s44, s42, 8192")
        a("s_waitcnt vmcnt(0)")
        for qd in range(4):
            for p in range(2):
                a(f"v_lshlrev_b32 v{32+4*qd+2*p}, 16, v{160+2*qd+p}")
                a(f"v_and_b32 v{33+4*qd+2*p}, 0xffff0000, v{160+2*qd+p}")
        c0 = -2.0*math.sqrt(2.0/math.pi)*LOG2E
        a(f"s_mov_b32 s41, {f32hex(c0*0.044715)}")
        a(f"v_mov_b32 v17, {f32hex(c0)}")
        for b in range(3):
            for qp in range(2):
                cs = [ACC(b) + 4*(2*qp) + r for r in range(8)]
                bs = [32 + 4*(2*qp) + r for r in range(8)]
                for r in range(8): a(f"v_add_f32 v{cs[r]}, v{cs[r]}, v{bs[r]}")
                for r in range(8): a(f"v_mul_f32 v{150+r}, v{cs[r]}, v{cs[r]}")
                for r in range(8): a(f"v_fma_f32 v{150+r}, v{150+r}, s41, v17")
                for r in range(8): a(f"v_mul_f32 v{150+r}, v{150+r}, v{cs[r]}")
                for r in range(8): a(f"v_exp_f32 v{150+r}, v{150+r}")
                for r in range(8): a(f"v_add_f32 v{150+r}, 1.0, v{150+r}")
                for r in range(8): a(f"v_rcp_f32 v{150+r}, v{150+r}")
                for r in range(8): a(f"v_mul_f32 v{cs[r]}, v{cs[r]}, v{150+r}")
                for q2 in range(2):
                    c = cs[4*q2]
                    a(f"v_cvt_pk_bf16_f32 v{c}, v{c}, v{c+1}")
                    a(f"v_cvt_pk_bf16_f32 v{c+1}, v{c+2}, v{c+3}")
                    a(f"ds_write_b64 v16, {vr(c,2)} offset:{b*32*P + 16*(2*qp+q2)}")
        a("s_waitcnt lgkmcnt(0)")
        for n in range(6): a(f"ds_read_b128 {vr(48+4*n,4)}, v18 offset:{n*16*P}")
        for n in range(6):
            a(f"s_waitcnt lgkmcnt({5-n})")
            a(f"buffer_store_dwordx4 {vr(48+4*n,4)}, v19, s[20:23], s{42 + n//2} offen offset:{(n%2)*2048}")
    skeleton(a, R, STG, NST, 7, loader_setup, dma, cons_setup, body, (10, 2), epilogue)
    return a.text(), descriptor(a.name, 168, 0), f"; @launch kernel={a.name} grid=({256 if 'xpf' in FL else 216},1,1) block=(512,1,1) lds={R*STG}"

def k5():
    a = Asm("mlp2_kernel"); header(a)
    R = 4; STG = 34816; NST = 18; UB = 18432
    ACC = lambda j, t: 112 + (j*2 + t)*4
    UF = lambda buf, j: 24 + (buf*9 + j)*4
    WF = lambda buf, t: 96 + (buf*2 + t)*4
    common_entry(a, 256, [(4, 48), (28, 80)])
    a("s_and_b32 s24, s2, 7")
    a("s_lshl_b32 s24, s24, 5")
    a("s_lshr_b32 s25, s2, 3")
    a("s_add_u32 s27, s24, s25")
    a("s_and_b32 s24, s27, 3")
    a("s_lshr_b32 s25, s27, 2")
    a("s_and_b32 s25, s25, 15")
    a("s_lshr_b32 s27, s27, 6")
    a("s_waitcnt lgkmcnt(0)")
    srd_from_arg(a, 8, 48, F*S*2, 4)
    srd_ws(a, 16, 28, WS_U, SZ_U)
    srd_ws(a, 20, 28, WS_P, SZ_P)
    stamp_begin(a)
    def loader_setup():
        a("s_lshl_b32 s30, s26, 2")
        a("v_add_u32 v10, s30, v2")
        a("v_and_b32 v10, 7, v10")
        a("v_and_b32 v11, 7, v1")
        a("v_xor_b32 v10, v10, v11")
        a("v_lshrrev_b32 v11, 3, v1")
        a("v_lshlrev_b32 v11, 7, v11")
        a("v_lshl_add_u32 v5, v10, 4, v11")
        a("s_and_b32 s30, s26, 1")
        a("s_add_u32 s45, s30, 16")
        a("s_lshl_b32 s45, s45, 10")
        a("s_lshl_b32 s46, s26, 10")
        a("s_lshl_b32 s30, s26, 4")
        a("v_add_u32 v10, s30, v2")
        a("v_lshlrev_b32 v10, 12, v10")
        a("s_lshl_b32 s30, s25, 8")
        a("v_add_u32 v10, s30, v10")
        a("v_lshlrev_b32 v11, 1, v2")
        a("v_xor_b32 v11, v11, v3")
        a("v_lshl_add_u32 v6, v11, 4, v10")
        a("v_xor_b32 v11, 8, v11")
        a("v_lshl_add_u32 v7, v11, 4, v10")
        a("s_lshl_b32 s32, s26, 12")
        a(f"s_add_u32 s32, s32, {UB}")
        a(f"s_mul_i32 s35, s27, {18*73728}")
        a(f"s_mul_i32 s30, s24, {UB}")
        a("s_add_u32 s35, s35, s30")
        a(f"s_mul_i32 s36, s27, {1152*4096}")
    def dma():
        a("s_add_u32 s37, s34, s46")
        a("s_add_u32 s47, s35, s46")
        for m in range(4):
            a(f"s_add_u32 m0, s37, {m*4096}")
            a(f"s_add_u32 s38, s47, {m*4096}")
            a("buffer_load_dwordx4 v5, s[16:19], s38 offen lds")
        a("s_add_u32 m0, s34, s45")
        a("s_add_u32 s38, s35, s45")
        a("buffer_load_dwordx4 v5, s[16:19], s38 offen lds")
        a("s_add_u32 s37, s34, s32")
        for m in range(4):
            a(f"s_add_u32 m0, s37, {m*1024}")
            a(f"s_add_u32 s38, s36, {m*4*4096}")
            a(f"buffer_load_dwordx4 v{6 + (m>>1)}, s[8:11], s38 offen lds")
        a("s_add_u32 s35, s35, 73728")
        a(f"s_add_u32 s36, s36, {64*4096}")
    def cons_setup():
        a("v_lshrrev_b32 v200, 1, v3")
        a("v_xor_b32 v201, v2, v200")
        a("v_lshlrev_b32 v202, 7, v3")
        a("v_lshl_add_u32 v8, v201, 4, v202")
        a("v_xor_b32 v201, 4, v201")
        a("v_lshl_add_u32 v9, v201, 4, v202")
        a("v_lshrrev_b32 v200, 2, v3")
        a("v_and_b32 v201, 3, v3")
        a("v_lshl_add_u32 v202, v2, 3, v200")
        a("v_and_b32 v203, 1, v2")
        a("v_lshl_add_u32 v203, v203, 2, v200")
        a("v_lshlrev_b32 v203, 1, v203")
        a("v_lshrrev_b32 v204, 1, v201")
        a("s_lshl_b32 s30, s26, 2")
        a("v_add_u32 v204, s30, v204")
        a("v_xor_b32 v205, v204, v203")
        a("v_lshlrev_b32 v205, 4, v205")
        a("v_lshl_add_u32 v205, v202, 8, v205")
        a("v_and_b32 v206, 1, v201")
        a("v_lshl_add_u32 v205, v206, 3, v205")
        a(f"v_add_u32 v10, {UB}, v205")
        a("v_xor_b32 v11, 32, v10")
        for r in range(112, 184): a(f"v_mov_b32 v{r}, 0")
    def rd(ks, rel):
        b = 16 if rel else 12
        L = []
        for t in range(2):
            for hh in range(2):
                L.append(('r', (f"W{ks}{t}{hh}", rel), f"ds_read_b64_tr_b16 {vr(WF(ks,t)+2*hh,2)}, v{b+2+t} offset:{ks*8192 + hh*1024}"))
        for j in range(9):
            L.append(('r', (f"U{ks}{j}", rel), f"ds_read_b128 {vr(UF(ks,j),4)}, v{b+ks} offset:{j*2048}"))
        return L
    def body():
        seq = []
        for ks in range(2):
            if ks == 1: seq.append(('x', '@BAR'))
            r = rd(1-ks, ks)
            k = 0
            for j in range(9):
                for t in range(2):
                    C = vr(ACC(j,t),4)
                    G = 3 if 'nogrp' not in FL else 1
                    needs = [f"U{ks}{jj}" for jj in range(j, min(9, (j//G + 1)*G))] + [f"W{ks}00", f"W{ks}01", f"W{ks}10", f"W{ks}11"]
                    seq.append(('m', needs, f"v_mfma_f32_16x16x32_bf16 {C}, {vr(UF(ks,j),4)}, {vr(WF(ks,t),4)}, {C}"))
                    if k < len(r): seq.append(r[k]); k += 1
        return seq
    def epilogue():
        P = 304
        a("s_barrier")
        a(f"s_mul_i32 s47, s26, {32*P}")
        a(f"v_mul_u32_u24 v200, {P}, v3")
        a("v_lshl_add_u32 v200, v2, 3, v200")
        a("v_add_u32 v200, s47, v200")
        for j in range(9):
            for t in range(2):
                c = ACC(j,t)
                a(f"v_cvt_pk_bf16_f32 v{c}, v{c}, v{c+1}")
                a(f"v_cvt_pk_bf16_f32 v{c+1}, v{c+2}, v{c+3}")
                a(f"ds_write_b64 v200, {vr(c,2)} offset:{t*16*P + 32*j}")
        a("s_lshl_b32 s30, s27, 11")
        a("s_lshl_b32 s31, s25, 7")
        a("s_add_u32 s30, s30, s31")
        a("s_lshl_b32 s31, s26, 5")
        a("s_add_u32 s30, s30, s31")
        a("s_mul_i32 s30, s30, 1152")
        a("s_mul_i32 s31, s24, 288")
        a("s_add_u32 s30, s30, s31")
        for n in range(9):
            a(f"v_add_u32 v201, {64*n}, v1")
            a("v_mul_u32_u24 v202, 3641, v201")
            a("v_lshrrev_b32 v202, 16, v202")
            a("v_mul_u32_u24 v203, 18, v202")
            a("v_sub_u32 v203, v201, v203")
            a("v_lshlrev_b32 v203, 4, v203")
            a(f"v_mad_u32_u24 v{24+n}, v202, s48, v203") if False else None
            a(f"v_mul_u32_u24 v204, {P}, v202")
            a(f"v_add3_u32 v{24+n}, v204, v203, s47")
            a("v_mul_u32_u24 v204, 1152, v202")
            a(f"v_add_u32 v{40+n}, v204, v203")
        a("s_waitcnt lgkmcnt(0)")
        for n in range(9): a(f"ds_read_b128 {vr(56+4*n,4)}, v{24+n}")
        for n in range(9):
            a(f"s_waitcnt lgkmcnt({8-n})")
            a(f"buffer_store_dwordx4 {vr(56+4*n,4)}, v{40+n}, s[20:23], s30 offen")
    skeleton(a, R, STG, NST, 9, loader_setup, dma, cons_setup, body, (8, 4), epilogue)
    return a.text(), descriptor(a.name, 208, 0), f"; @launch kernel={a.name} grid=(256,1,1) block=(512,1,1) lds={R*STG}"

def k6():
    a = Asm("final_kernel"); header(a)
    a("s_cmp_ge_u32 s2, 576")
    a(f"s_cbranch_scc1 {a.name}_end")
    a("s_load_dwordx2 s[4:5], s[0:1], 56")
    a("s_load_dwordx2 s[6:7], s[0:1], 64")
    a("s_load_dwordx2 s[28:29], s[0:1], 80")
    a("s_lshl_b32 s3, s2, 8")
    a("v_add_u32 v1, s3, v0")
    a("v_lshlrev_b32 v2, 4, v1")
    a("s_mov_b32 s30, 0x38e38e4")
    a("v_mul_hi_u32 v4, v1, s30")
    a("v_mul_u32_u24 v12, 72, v4")
    a("v_sub_u32 v12, v1, v12")
    a("v_mul_u32_u24 v13, 43691, v12")
    a("v_lshrrev_b32 v13, 19, v13")
    a("v_mul_u32_u24 v14, 12, v13")
    a("v_sub_u32 v12, v12, v14")
    a("s_mov_b32 s31, 393216")
    a("v_mul_lo_u32 v13, v13, s31")
    a("v_mul_u32_u24 v14, 192, v4")
    a("v_add_u32 v13, v13, v14")
    a("v_lshl_add_u32 v12, v12, 4, v13")
    a("v_lshlrev_b32 v4, 1, v4")
    a("s_waitcnt lgkmcnt(0)")
    srd_from_arg(a, 8, 56, S*2, 4)
    srd_from_arg(a, 12, 64, S*D*2, 6)
    srd_ws(a, 16, 28, WS_H, SZ_SD)
    srd_ws(a, 20, 28, WS_P, SZ_P)
    for p in range(4):
        a(f"s_mov_b32 s{32+p}, {p*S*D*2}")
        a(f"buffer_load_dwordx4 {vr(16+4*p,4)}, v2, s[20:23], s{32+p} offen")
    a("buffer_load_dwordx4 v[32:35], v12, s[16:19], 0 offen")
    a("buffer_load_ushort v5, v4, s[8:11], 0 offen")
    a("v_mov_b32 v10, 0x00003f80"); a("v_mov_b32 v11, 0x3f800000")
    a("s_waitcnt vmcnt(0)")
    for r in range(8): a(f"v_lshlrev_b32 v{40+r}, 16, v5")
    for sreg in (16, 20, 24, 28, 32):
        for r in range(8): a(f"v_dot2c_f32_bf16 v{40+r}, v{sreg + r//2}, v{10 + r%2}")
    a("s_nop 2")
    for r in range(4): a(f"v_cvt_pk_bf16_f32 v{8+r if False else 16+r}, v{40+2*r}, v{41+2*r}")
    a("buffer_store_dwordx4 v[16:19], v2, s[12:15], 0 offen")
    a.lab(f"{a.name}_end")
    a("s_endpgm")
    return a.text(), descriptor(a.name, 48, 0), f"; @launch kernel={a.name} grid=(576,1,1) block=(256,1,1) lds=0"

def k1():
    a = Asm("qkv_kernel"); header(a)
    R = 4; XB = 16384; STG = 34816; NST = 9
    ACC = lambda i, j: 112 + (i*9 + j)*4
    XF = lambda ks, i: 24 + (ks*2 + i)*4
    WF = lambda ks, j: 40 + (ks*9 + j)*4
    CW = lambda j: 184 + 4*j
    S1 = lambda i: 220 + 4*i
    S2 = lambda i: 228 + 4*i
    ONE = 236
    T = 240
    common_entry(a, 256 if 'xpf' in FL else 192, [(4, 0), (6, 8), (28, 80), (64, 32)])
    a("s_and_b32 s52, s2, 7")
    a("s_lshr_b32 s53, s2, 3")
    a("s_mul_i32 s30, s52, 24")
    a("s_add_u32 s30, s30, s53")
    a("s_mul_i32 s24, s30, 5462")
    a("s_lshr_b32 s24, s24, 16")
    a("s_mul_i32 s25, s24, 12")
    a("s_sub_u32 s25, s30, s25")
    a("s_lshr_b32 s41, s25, 2")
    a("s_waitcnt lgkmcnt(0)")
    srd_from_arg(a, 8, 0, S*D*2, 4)
    srd_from_arg(a, 12, 8, D*3*D*2, 6)
    srd_ws(a, 16, 28, WS_Q, SZ_Q)
    srd_ws(a, 20, 28, WS_KV, SZ_KV)
    srd_from_arg(a, 68, 32, S*F*2, 64)
    lx = f"{a.name}_work"
    a("s_cmp_ge_u32 s2, 192")
    a(f"s_cbranch_scc0 {lx}")
    a("s_sub_u32 s54, s53, 24")
    a("s_lshl_b32 s54, s54, 3")
    a("s_add_u32 s54, s54, s26")
    a("s_mul_i32 s54, s54, 96")
    a("s_mul_i32 s57, s52, 1152")
    a("s_mov_b32 exec_hi, 0xffff")
    for n in range(2 if 'xpf' in FL else 0):
        a("v_add_u32 v20, s54, v1")
        if n: a("v_add_u32 v20, 48, v20")
        a("v_mul_u32_u24 v21, 58255, v20")
        a("v_lshrrev_b32 v21, 19, v21")
        a("v_mul_u32_u24 v22, 9, v21")
        a("v_sub_u32 v22, v20, v22")
        a("v_mul_u32_u24 v21, 9216, v21")
        a("v_lshl_add_u32 v21, v22, 7, v21")
        a("buffer_load_dword v23, v21, s[68:71], s57 offen")
    a("s_endpgm")
    a.lab(lx)
    stamp_begin(a)
    def tail():
        if 'k1tail' not in FL: return 0
        a("s_lshl_b32 s54, s53, 2")
        a("s_add_u32 s54, s54, s26")
        a("s_mul_i32 s54, s54, 96")
        a("s_mul_i32 s57, s52, 1152")
        a("s_mov_b32 exec_hi, 0xffff")
        for n in range(2):
            a("v_add_u32 v20, s54, v1")
            if n: a("v_add_u32 v20, 48, v20")
            a("v_mul_u32_u24 v21, 58255, v20")
            a("v_lshrrev_b32 v21, 19, v21")
            a("v_mul_u32_u24 v22, 9, v21")
            a("v_sub_u32 v22, v20, v22")
            a("v_mul_u32_u24 v21, 9216, v21")
            a("v_lshl_add_u32 v21, v22, 7, v21")
            a("buffer_load_dword v23, v21, s[68:71], s57 offen")
        return 2
    def loader_setup():
        a("s_lshl_b32 s30, s26, 2")
        a("v_add_u32 v10, s30, v2")
        a("v_and_b32 v10, 7, v10")
        a("v_and_b32 v11, 7, v1")
        a("v_xor_b32 v10, v10, v11")
        a("v_lshrrev_b32 v11, 3, v1")
        a("s_lshl_b32 s30, s24, 7")
        a("s_lshl_b32 s31, s26, 3")
        a("s_add_u32 s30, s30, s31")
        a("v_add_u32 v11, s30, v11")
        a("v_mul_u32_u24 v11, 1152, v11")
        a("v_lshl_add_u32 v5, v10, 4, v11")
        a("s_lshl_b32 s32, s26, 6")
        a("s_and_b32 s33, s26, 1")
        a("s_add_u32 s33, s33, 16")
        a("s_lshl_b32 s30, s33, 6")
        a("s_mul_i32 s31, s25, 288")
        for n in range(5):
            if n < 4:
                a(f"v_add_u32 v20, s32, v1")
                if n: a(f"v_add_u32 v20, {n*256}, v20")
            else:
                a(f"v_add_u32 v20, s30, v1")
            a("v_mul_u32_u24 v21, 3641, v20")
            a("v_lshrrev_b32 v21, 16, v21")
            a("v_mul_u32_u24 v22, 18, v21")
            a("v_sub_u32 v22, v20, v22")
            swap23(a, 21, 23, 24)
            a("v_mul_u32_u24 v23, 3456, v23")
            a("v_lshl_add_u32 v23, v22, 4, v23")
            a(f"v_add_u32 v{6+n}, s31, v23")
        a("s_lshl_b32 s46, s26, 10")
        a("s_lshl_b32 s45, s33, 10")
        a(f"s_add_u32 s45, s45, {XB}")
        a("s_mov_b32 s35, 0"); a("s_mov_b32 s36, 0")
    def dma():
        a("s_add_u32 s37, s34, s46")
        for m in range(4):
            a(f"s_add_u32 m0, s37, {m*4096}")
            a(f"s_add_u32 s38, s35, {m*32*1152}")
            a("buffer_load_dwordx4 v5, s[8:11], s38 offen lds")
        for n in range(5):
            if n < 4: a(f"s_add_u32 m0, s37, {XB + n*4096}")
            else:     a("s_add_u32 m0, s34, s45")
            a("s_nop 0")
            a(f"buffer_load_dwordx4 v{6+n}, s[12:15], s36 offen lds")
        a("s_add_u32 s35, s35, 128")
        a(f"s_add_u32 s36, s36, {64*3456}")
    def cons_setup():
        a("v_lshrrev_b32 v240, 1, v3")
        a("v_xor_b32 v241, v2, v240")
        a("s_lshl_b32 s30, s26, 5")
        a("v_add_u32 v242, s30, v3")
        a("v_lshlrev_b32 v242, 7, v242")
        a("v_lshl_add_u32 v8, v241, 4, v242")
        a("v_xor_b32 v241, 4, v241")
        a("v_lshl_add_u32 v9, v241, 4, v242")
        a("v_lshrrev_b32 v240, 1, v2")
        a("v_and_b32 v241, 1, v2")
        a("v_lshlrev_b32 v240, 4, v240")
        a("v_lshl_add_u32 v240, v241, 2, v240")
        a("v_lshrrev_b32 v241, 2, v3")
        a("v_add_u32 v240, v240, v241")
        a("v_mul_u32_u24 v240, 288, v240")
        a("v_and_b32 v241, 3, v3")
        a("v_lshl_add_u32 v10, v241, 3, v240")
        a(f"v_add_u32 v10, {XB}, v10")
        if 'k1pf' in FL:
            a("s_lshl_b32 s54, s53, 2")
            a("s_add_u32 s54, s54, s26")
            a("v_mul_u32_u24 v240, 96, v1")
            a("v_add_u32 v240, s54, v240")
            for n in range(3):
                if n: a("v_add_u32 v240, 6144, v240")
                a("v_lshlrev_b32 v241, 7, v240")
                a("buffer_load_dword v242, v241, s[12:15], 0 offen")
            a("v_cmp_gt_u32 vcc, 24, v1")
            a("v_mul_u32_u24 v240, 96, v1")
            a("v_add_u32 v240, s54, v240")
            a("v_lshlrev_b32 v241, 7, v240")
            a(f"s_mul_i32 s55, s52, {256*1152}")
            a("s_and_saveexec_b64 s[56:57], vcc")
            a("buffer_load_dword v242, v241, s[8:11], s55 offen")
            a("s_mov_b64 exec, s[56:57]")
        for r in range(112, 236): a(f"v_mov_b32 v{r}, 0")
        for r in range(236, 240): a(f"v_mov_b32 v{r}, 0x3f803f80")
        a("s_mov_b32 s42, 0")
    def mkbody(mode):
        def rd(ks, rel):
            b = 14 if rel else 11
            L = []
            for i in range(2):
                L.append(('r', (f"X{ks}{i}", rel), f"ds_read_b128 {vr(XF(ks,i),4)}, v{b+ks} offset:{i*2048}"))
            for j in range(9):
                for hh in range(2):
                    L.append(('r', (f"W{ks}{j}{hh}", rel), f"ds_read_b64_tr_b16 {vr(WF(ks,j)+2*hh,2)}, v{b+2} offset:{ks*32*288 + hh*8*288 + 32*j}"))
            return L
        def body():
            seq = []
            for ks in range(2):
                if ks == 1: seq.append(('x', '@BAR'))
                r = rd(1-ks, ks)
                ms = []
                for i in range(2):
                    X = vr(XF(ks,i),4)
                    ms.append(('m', [f"X{ks}{i}"], f"v_mfma_f32_16x16x32_bf16 {vr(S1(i),4)}, {vr(ONE,4)}, {X}, {vr(S1(i),4)}"))
                    ms.append(('m', [f"X{ks}{i}"], f"v_mfma_f32_16x16x32_bf16 {vr(S2(i),4)}, {X}, {X}, {vr(S2(i),4)}"))
                for j in range(9):
                    for i in range(2):
                        W = vr(WF(ks,j),4); X = vr(XF(ks,i),4); C = vr(ACC(i,j),4)
                        ops = f"{W}, {X}" if mode == "qk" else f"{X}, {W}"
                        G = 3 if 'nogrp' not in FL else 1
                        needs = [f"X{ks}{i}"] + [f"W{ks}{jj}{hh}" for jj in range(j, min(9, (j//G + 1)*G)) for hh in range(2)]
                        ms.append(('m', needs, f"v_mfma_f32_16x16x32_bf16 {C}, {ops}, {C}"))
                k = 0
                for m in ms:
                    seq.append(m)
                    if k < len(r): seq.append(r[k]); k += 1
                l = a.newlabel("cw")
                seq.append(('x', "s_and_b32 s43, s42, 3"))
                seq.append(('x', "s_add_u32 s42, s42, 1"))
                seq.append(('x', "s_cmp_eq_u32 s43, s26"))
                seq.append(('x', f"s_cbranch_scc0 {l}"))
                for j in range(9):
                    W = vr(WF(ks,j),4); C = vr(CW(j),4)
                    ops = f"{W}, {vr(ONE,4)}" if mode == "qk" else f"{vr(ONE,4)}, {W}"
                    seq.append(('x', f"v_mfma_f32_16x16x32_bf16 {C}, {ops}, {C}"))
                seq.append(('x', f"@LAB {l}"))
            return seq
        return body
    P = 296
    def mkepi(mode):
        def epilogue():
            a("s_nop 7")
            a("s_barrier")
            a("s_mul_i32 s40, s26, 576")
            if mode == "qk":
                a("v_lshlrev_b32 v24, 4, v2")
                a("v_add_u32 v25, s40, v24")
                for j in range(9): a(f"ds_write_b128 v25, {vr(CW(j),4)} offset:{j*64}")
            else:
                a("v_lshlrev_b32 v24, 2, v3")
                a("v_add_u32 v25, s40, v24")
                for j in range(9): a(f"ds_write_b32 v25, v{CW(j)} offset:{j*64}")
            a("v_and_b32 v26, 3, v3")
            a("v_lshrrev_b32 v27, 2, v3")
            a("v_lshl_add_u32 v27, v27, 4, v3")
            a("v_lshlrev_b32 v27, 2, v27")
            for i in range(2):
                a(f"v_cmp_eq_u32 vcc, 1, v26"); a("s_nop 1")
                a(f"v_cndmask_b32 v{28+i}, v{S2(i)}, v{S2(i)+1}, vcc")
                a(f"v_cmp_eq_u32 vcc, 2, v26"); a("s_nop 1")
                a(f"v_cndmask_b32 v{28+i}, v{28+i}, v{S2(i)+2}, vcc")
                a(f"v_cmp_eq_u32 vcc, 3, v26"); a("s_nop 1")
                a(f"v_cndmask_b32 v{28+i}, v{28+i}, v{S2(i)+3}, vcc")
                a(f"ds_bpermute_b32 v{30+i}, v27, v{28+i}")
            a(f"s_mov_b32 s44, {f32hex(1.0/576)}")
            a(f"s_mov_b32 s45, {f32hex(1e-5)}")
            a("s_waitcnt lgkmcnt(0)")
            for i in range(2):
                a(f"v_mul_f32 v{28+i}, s44, v{S1(i)}")
                a(f"v_mul_f32 v{30+i}, s44, v{30+i}")
                a(f"v_fma_f32 v{30+i}, -v{28+i}, v{28+i}, v{30+i}")
                a(f"v_max_f32 v{30+i}, 0, v{30+i}")
                a(f"v_add_f32 v{30+i}, s45, v{30+i}")
                a(f"v_rsq_f32 v{32+i}, v{30+i}")
            a("s_nop 0")
            if mode == "qk":
                a(f"s_mov_b32 s43, {f32hex(QSCALE)}")
                a("s_cmp_eq_u32 s41, 0")
                a("s_cselect_b32 s43, s43, 1.0")
                for i in range(2): a(f"v_mul_f32 v{32+i}, s43, v{32+i}")
            for i in range(2): a(f"v_mul_f32 v{34+i}, v{28+i}, v{32+i}")
            a("s_barrier")
            if 'e1' in FL: stamp_mid(a, 0)
            a("s_and_b32 s44, s25, 3")
            a("s_lshl_b32 s44, s44, 3")
            a("s_lshl_b32 s27, s24, 7")
            a("s_lshl_b32 s30, s26, 5")
            a("s_add_u32 s27, s27, s30")
            a("s_mul_i32 s47, s26, 12288")
            a("s_add_u32 s47, s47, 4096")
            a("s_lshr_b32 s48, s27, 9")
            a(f"s_mul_i32 s48, s48, {CHUNK}")
            a("s_and_b32 s49, s27, 511")
            a(f"s_mul_i32 s50, s44, {HB}")
            a("s_add_u32 s48, s48, s50")
            if mode == "qk":
                for j in range(9):
                    a(f"ds_read_b128 {vr(40+4*j,4)}, v24 offset:{j*64}")
                    a(f"ds_read_b128 {vr(76+4*j,4)}, v24 offset:{576 + j*64}")
                a("s_waitcnt lgkmcnt(0)")
                for k in range(36): a(f"v_add_f32 v{40+k}, v{40+k}, v{76+k}")
                for j in range(9):
                    a(f"ds_read_b128 {vr(76+4*j,4)}, v24 offset:{2*576 + j*64}")
                    a(f"ds_read_b128 {vr(184+4*j,4)}, v24 offset:{3*576 + j*64}")
                a("s_waitcnt lgkmcnt(0)")
                for k in range(36):
                    a(f"v_add_f32 v{76+k}, v{76+k}, v{184+k}")
                    a(f"v_add_f32 v{40+k}, v{40+k}, v{76+k}")
                a(f"v_mul_u32_u24 v36, {P}, v3")
                a("v_lshl_add_u32 v36, v2, 3, v36")
                a("v_add_u32 v36, s47, v36")
                for i in range(2):
                    for j in range(9):
                        c = ACC(i,j)
                        for r in range(4): a(f"v_mul_f32 v{96+r}, v{40+4*j+r}, v{34+i}")
                        for r in range(4): a(f"v_fma_f32 v{96+r}, v{c+r}, v{32+i}, -v{96+r}")
                        a(f"v_cvt_pk_bf16_f32 v{c}, v96, v97")
                        a(f"v_cvt_pk_bf16_f32 v{c+1}, v98, v99")
                        a(f"ds_write_b64 v36, {vr(c,2)} offset:{i*16*P + 32*j}")
                lq = a.newlabel("isq")
                a("s_waitcnt lgkmcnt(0)")
                if 'e2' in FL: stamp_mid(a, 0)
                a("s_cmp_eq_u32 s41, 0")
                a(f"s_cbranch_scc1 {lq}")
                a("v_and_b32 v37, 31, v1")
                a("v_lshrrev_b32 v38, 5, v1")
                a(f"v_mul_u32_u24 v39, {P}, v37")
                a("v_add_u32 v39, s47, v39")
                a("v_lshl_add_u32 v40, v38, 4, v39")
                a("v_lshlrev_b32 v41, 4, v1")
                a("s_lshr_b32 s50, s49, 5")
                a("s_lshl_b32 s50, s50, 10")
                a("s_add_u32 s50, s50, s48")
                for h in range(8):
                    b = 48 + 4*h
                    a(f"ds_read2_b32 {vr(b,2)}, v40 offset0:{9*h} offset1:{9*h+1}")
                    a(f"ds_read2_b32 {vr(b+2,2)}, v40 offset0:{9*h+2} offset1:{9*h+3}")
                a("v_mul_u32_u24 v42, 36, v38")
                a("v_add_u32 v42, v42, v39")
                for p in range(4): a(f"ds_read_b32 v{80+2*p}, v42 offset:{72*p + 32}")
                for p in range(4): a(f"v_mov_b32 v{81+2*p}, 0x00003f80")
                a(f"s_mov_b32 s51, {HB}")
                a("v_mul_lo_u32 v43, v38, s51")
                a("v_lshl_add_u32 v43, v37, 3, v43")
                a("s_lshl_b32 s51, s49, 3")
                a("s_add_u32 s51, s51, s48")
                a("s_add_u32 s51, s51, 16384")
                a("s_waitcnt lgkmcnt(0)")
                for h in range(8):
                    a(f"buffer_store_dwordx4 {vr(48+4*h,4)}, v41, s[20:23], s50 offen")
                    if h < 7: a(f"s_add_u32 s50, s50, {HB}")
                for p in range(4):
                    a(f"buffer_store_dwordx2 {vr(80+2*p,2)}, v43, s[20:23], s51 offen")
                    if p < 3: a(f"s_add_u32 s51, s51, {2*HB}")
                a(f"s_branch {a.name}_done")
                a.lab(lq)
                for n in range(3):
                    a(f"v_add_u32 v37, {64*n}, v1")
                    a("v_cmp_le_u32 vcc, 96, v37"); a("s_nop 1")
                    a("v_cndmask_b32 v38, 0, 1, vcc")
                    a("v_mul_u32_u24 v39, 96, v38")
                    a("v_sub_u32 v37, v37, v39")
                    a("v_mul_u32_u24 v39, 171, v37")
                    a("v_lshrrev_b32 v39, 9, v39")
                    a("v_mul_u32_u24 v40, 3, v39")
                    a("v_sub_u32 v40, v37, v40")
                    a(f"v_mul_u32_u24 v41, {P}, v39")
                    a("v_mul_u32_u24 v42, 36, v38")
                    a("v_add_u32 v41, v41, v42")
                    a("v_lshl_add_u32 v41, v40, 4, v41")
                    a(f"v_add_u32 v{44+n}, s47, v41")
                    a("v_mul_u32_u24 v41, 48, v39")
                    a("v_lshl_add_u32 v41, v40, 4, v41")
                    a("s_mov_b32 s51, 98304")
                    a("v_mul_lo_u32 v42, v38, s51")
                    a(f"v_add_u32 v{100+n}, v41, v42")
                for p in range(4):
                    for n in range(3):
                        b = 48 + (p*3+n)*4
                        a(f"ds_read2_b32 {vr(b,2)}, v{44+n} offset0:{18*p} offset1:{18*p+1}")
                        a(f"ds_read2_b32 {vr(b+2,2)}, v{44+n} offset0:{18*p+2} offset1:{18*p+3}")
                a("s_lshl_b32 s50, s44, 11")
                a("s_add_u32 s50, s50, s27")
                a("s_mul_i32 s50, s50, 48")
                a("s_waitcnt lgkmcnt(0)")
                if 'e3' in FL: stamp_mid(a, 0)
                for p in range(4):
                    for n in range(3):
                        a(f"buffer_store_dwordx4 {vr(48+(p*3+n)*4,4)}, v{100+n}, s[16:19], s50 offen")
                    if p < 3: a(f"s_add_u32 s50, s50, {2*98304}")
                a(f"s_branch {a.name}_done")
            else:
                for j in range(9):
                    for w in range(4): a(f"ds_read_b32 v{184+4*j+w}, v24 offset:{w*576 + j*64}")
                a("s_waitcnt lgkmcnt(0)")
                for j in range(9):
                    b = 184 + 4*j
                    a(f"v_add_f32 v{b}, v{b}, v{b+1}"); a(f"v_add_f32 v{b+2}, v{b+2}, v{b+3}")
                    a(f"v_add_f32 v{40+j}, v{b}, v{b+2}")
                a("s_lshl_b32 s45, s26, 8")
                a("s_add_u32 s45, s45, 2304")
                a("v_lshl_add_u32 v96, v3, 2, s45")
                for i in range(2):
                    a(f"ds_write_b32 v96, v{32+i} offset:{i*64}")
                    a(f"ds_write_b32 v96, v{34+i} offset:{128 + i*64}")
                a("v_lshl_add_u32 v97, v2, 4, s45")
                a("v_lshrrev_b32 v98, 2, v1")
                a("v_mul_u32_u24 v98, 1216, v98")
                a("v_and_b32 v99, 3, v1")
                a("v_mul_u32_u24 v99, 304, v99")
                a("v_add3_u32 v98, v98, v99, s47")
                a("v_cmp_gt_u32 vcc, 32, v1")
                a("s_and_saveexec_b64 s[52:53], vcc")
                a(f"ds_write_b128 v98, {vr(ONE,4)} offset:288")
                a("s_mov_b64 exec, s[52:53]")
                a("s_waitcnt lgkmcnt(0)")
                for i in range(2):
                    a(f"ds_read_b128 {vr(52+8*i,4)}, v97 offset:{i*64}")
                    a(f"ds_read_b128 {vr(56+8*i,4)}, v97 offset:{128+i*64}")
                a("v_and_b32 v98, 1, v2")
                a("v_mul_u32_u24 v98, 304, v98")
                a("v_lshrrev_b32 v99, 1, v2")
                a("v_lshl_add_u32 v98, v99, 3, v98")
                a("v_add_u32 v98, s47, v98")
                a("s_waitcnt lgkmcnt(0)")
                for j in range(9):
                    a(f"v_add_u32 v106, {16*j}, v3")
                    a("v_mul_u32_u24 v107, 3641, v106")
                    a("v_lshrrev_b32 v107, 16, v107")
                    a("v_mul_u32_u24 v108, 18, v107")
                    a("v_sub_u32 v108, v106, v108")
                    a("v_mul_u32_u24 v107, 1216, v107")
                    a("v_lshl_add_u32 v107, v108, 4, v107")
                    a("v_add_u32 v107, v107, v98")
                    for i in range(2):
                        c = ACC(i,j)
                        for r in range(4): a(f"v_mul_f32 v{100+r}, v{40+j}, v{56+8*i+r}")
                        for r in range(4): a(f"v_fma_f32 v{100+r}, v{c+r}, v{52+8*i+r}, -v{100+r}")
                        a(f"v_cvt_pk_bf16_f32 v{c}, v100, v101")
                        a(f"v_cvt_pk_bf16_f32 v{c+1}, v102, v103")
                        a(f"ds_write_b64 v107, {vr(c,2)} offset:{i*608}")
                a("v_lshl_add_u32 v96, v1, 4, s47")
                a("s_waitcnt lgkmcnt(0)")
                for n in range(10): a(f"ds_read_b128 {vr(40+4*n,4)}, v96 offset:{n*1024}")
                a("s_lshr_b32 s50, s49, 4")
                a("s_mul_i32 s50, s50, 608")
                a("s_add_u32 s50, s50, s48")
                a("s_add_u32 s50, s50, 20480")
                a(f"s_mov_b32 s51, {HB-1216}")
                for n in range(10):
                    a(f"v_add_u32 v100, {64*n}, v1")
                    a("v_mul_u32_u24 v101, 863, v100")
                    a("v_lshrrev_b32 v101, 16, v101")
                    a("v_mul_lo_u32 v101, v101, s51")
                    a(f"v_lshl_add_u32 v{84+n}, v100, 4, v101")
                a("s_waitcnt lgkmcnt(0)")
                for n in range(10):
                    if n == 9: a("s_and_saveexec_b64 s[52:53], vcc")
                    a(f"buffer_store_dwordx4 {vr(40+4*n,4)}, v{84+n}, s[20:23], s50 offen")
                a("s_mov_b64 exec, s[52:53]")
        return epilogue
    skeleton2(a, R, STG, NST, 9, loader_setup, dma, cons_setup, [("s_cmp_eq_u32 s41, 2", mkbody("qk"), mkepi("qk")), (None, mkbody("v"), mkepi("v"))], (8, 3), tail=tail)
    return a.text(), descriptor(a.name, 256, 0), f"; @launch kernel={a.name} grid=({256 if 'xpf' in FL else 192},1,1) block=(512,1,1) lds={R*STG}"


def k3():
    a = Asm("oproj_kernel"); header(a)
    R = 6; OB = 8192; STG = 20480; NST = 9
    ACC = lambda i, j: 72 + (i*3 + j)*4
    OF = lambda ks, i: 24 + (ks*2 + i)*4
    WF = lambda ks, j: 40 + (ks*3 + j)*4
    XR = lambda i, j: 96 + (i*3 + j)*2
    common_entry(a, 192, [(4, 0), (6, 16), (28, 80)])
    a("s_and_b32 s24, s2, 7")
    a("s_mul_i32 s24, s24, 24")
    a("s_lshr_b32 s25, s2, 3")
    a("s_add_u32 s24, s24, s25")
    a("s_mul_i32 s25, s24, 10923")
    a("s_lshr_b32 s25, s25, 16")
    a("s_mul_i32 s30, s25, 6")
    a("s_sub_u32 s24, s24, s30")
    a("s_waitcnt lgkmcnt(0)")
    srd_from_arg(a, 8, 0, S*D*2, 4)
    srd_from_arg(a, 12, 16, D*D*2, 6)
    srd_ws(a, 16, 28, WS_O, SZ_SD)
    srd_ws(a, 20, 28, WS_H, SZ_SD)
    srd_ws(a, 44, 28, WS_ST, SZ_ST)
    stamp_begin(a)
    def loader_setup():
        a("s_lshl_b32 s30, s26, 2")
        a("v_add_u32 v10, s30, v2")
        a("v_and_b32 v10, 7, v10")
        a("v_and_b32 v11, 7, v1")
        a("v_xor_b32 v10, v10, v11")
        a("v_lshrrev_b32 v11, 3, v1")
        a("s_lshl_b32 s30, s25, 6")
        a("s_lshl_b32 s31, s26, 3")
        a("s_add_u32 s30, s30, s31")
        a("v_add_u32 v11, s30, v11")
        a("v_mul_u32_u24 v11, 1152, v11")
        a("v_lshl_add_u32 v5, v10, 4, v11")
        a("s_mul_i32 s30, s26, 192")
        a("s_mul_i32 s31, s24, 192")
        for m in range(3):
            a("v_add_u32 v20, s30, v1")
            if m: a(f"v_add_u32 v20, {64*m}, v20")
            a("v_mul_u32_u24 v21, 43691, v20")
            a("v_lshrrev_b32 v21, 19, v21")
            a("v_mul_u32_u24 v22, 12, v21")
            a("v_sub_u32 v22, v20, v22")
            a("v_lshrrev_b32 v23, 2, v21")
            a("v_and_b32 v23, 2, v23")
            a("v_xor_b32 v22, v22, v23")
            a("v_mul_u32_u24 v21, 1152, v21")
            a("v_lshl_add_u32 v21, v22, 4, v21")
            a(f"v_add_u32 v{6+m}, s31, v21")
        a("s_lshl_b32 s46, s26, 10")
        a("s_mul_i32 s45, s26, 3072")
        a(f"s_add_u32 s45, s45, {OB}")
        a("s_mov_b32 s35, 0"); a("s_mov_b32 s36, 0")
    def dma():
        a("s_add_u32 s37, s34, s46")
        for m in range(2):
            a(f"s_add_u32 m0, s37, {m*4096}")
            a(f"s_add_u32 s38, s35, {m*32*1152}")
            a("buffer_load_dwordx4 v5, s[16:19], s38 offen lds")
        a("s_add_u32 s37, s34, s45")
        for m in range(3):
            a(f"s_add_u32 m0, s37, {m*1024}")
            a("s_nop 0")
            a(f"buffer_load_dwordx4 v{6+m}, s[12:15], s36 offen lds")
        a("s_add_u32 s35, s35, 128")
        a(f"s_add_u32 s36, s36, {64*1152}")
    def cons_setup():
        a("s_lshr_b32 s41, s26, 1")
        a("s_and_b32 s42, s26, 1")
        a("v_lshrrev_b32 v110, 1, v3")
        a("v_xor_b32 v111, v2, v110")
        a("s_lshl_b32 s30, s41, 5")
        a("v_add_u32 v112, s30, v3")
        a("v_lshlrev_b32 v112, 7, v112")
        a("v_lshl_add_u32 v6, v111, 4, v112")
        a("v_xor_b32 v111, 4, v111")
        a("v_lshl_add_u32 v7, v111, 4, v112")
        a("v_lshrrev_b32 v110, 2, v3")
        a("v_and_b32 v111, 3, v3")
        a("v_lshl_add_u32 v112, v2, 3, v110")
        a("v_mul_u32_u24 v112, 192, v112")
        a("v_and_b32 v113, 1, v111")
        a("v_lshl_add_u32 v112, v113, 3, v112")
        a(f"v_add_u32 v112, {OB}, v112")
        a("v_lshrrev_b32 v113, 1, v111")
        a("s_mul_i32 s30, s42, 6")
        a("v_add_u32 v113, s30, v113")
        a("v_and_b32 v114, 1, v2")
        a("v_lshlrev_b32 v114, 1, v114")
        for j in range(3):
            a(f"v_add_u32 v115, {2*j}, v113")
            a("v_xor_b32 v115, v115, v114")
            a(f"v_lshl_add_u32 v{8+j}, v115, 4, v112")
        for r in range(72, 96): a(f"v_mov_b32 v{r}, 0")
        a("s_lshl_b32 s27, s25, 6")
        a("s_lshl_b32 s30, s41, 5")
        a("s_add_u32 s27, s27, s30")
        a("v_add_u32 v110, s27, v3")
        a("v_mul_u32_u24 v111, 1152, v110")
        a("v_lshl_add_u32 v111, v2, 3, v111")
        a("s_mul_i32 s30, s24, 192")
        a("s_mul_i32 s31, s42, 96")
        a("s_add_u32 s30, s30, s31")
        a("v_add_u32 v111, s30, v111")
        a("s_mov_b32 s43, 18432")
        for i in range(2):
            for j in range(3):
                a(f"buffer_load_dwordx2 {vr(XR(i,j),2)}, v111, s[8:11], {'s43' if i else '0'} offen offset:{32*j}")
        a("v_mul_u32_u24 v110, 192, v110")
        a("v_lshl_add_u32 v110, v2, 3, v110")
        a(f"s_mul_i32 s30, s24, {2048*192}")
        a("s_add_u32 s30, s30, s31")
        a("v_add_u32 v108, s30, v110")
    def rd(ks, rel):
        b = 16 if rel else 11
        L = []
        for i in range(2):
            L.append(('r', (f"O{ks}{i}", rel), f"ds_read_b128 {vr(OF(ks,i),4)}, v{b+ks} offset:{i*2048}"))
        for j in range(3):
            for hh in range(2):
                L.append(('r', (f"W{ks}{j}{hh}", rel), f"ds_read_b64_tr_b16 {vr(WF(ks,j)+2*hh,2)}, v{b+2+j} offset:{ks*6144 + hh*768}"))
        return L
    def body():
        seq = []
        for ks in range(2):
            if ks == 1: seq.append(('x', '@BAR'))
            r = rd(1-ks, ks)
            ms = []
            for j in range(3):
                for i in range(2):
                    C = vr(ACC(i,j),4)
                    ms.append(('m', [f"O{ks}{i}", f"W{ks}{j}0", f"W{ks}{j}1"], f"v_mfma_f32_16x16x32_bf16 {C}, {vr(WF(ks,j),4)}, {vr(OF(ks,i),4)}, {C}"))
            k = 0
            for idx, m in enumerate(ms):
                seq.append(m)
                n = 2 if idx < 2 else 1
                seq += r[k:k+n]; k += n
        return seq
    def epilogue():
        a("s_waitcnt vmcnt(0)")
        a("s_nop 7")
        for r in range(24, 28): a(f"v_mov_b32 v{r}, 0")
        for i in range(2):
            for j in range(3):
                c = ACC(i,j); x = XR(i,j)
                a(f"v_lshlrev_b32 v40, 16, v{x}")
                a(f"v_and_b32 v41, 0xffff0000, v{x}")
                a(f"v_lshlrev_b32 v42, 16, v{x+1}")
                a(f"v_and_b32 v43, 0xffff0000, v{x+1}")
                for r in range(4): a(f"v_add_f32 v{40+r}, v{40+r}, v{c+r}")
                a(f"v_cvt_pk_bf16_f32 v{x}, v40, v41")
                a(f"v_cvt_pk_bf16_f32 v{x+1}, v42, v43")
                a(f"buffer_store_dwordx2 {vr(x,2)}, v108, s[20:23], 0 offen offset:{i*3072 + 32*j}")
                a(f"v_lshlrev_b32 v40, 16, v{x}")
                a(f"v_and_b32 v41, 0xffff0000, v{x}")
                a(f"v_lshlrev_b32 v42, 16, v{x+1}")
                a(f"v_and_b32 v43, 0xffff0000, v{x+1}")
                for r in range(4):
                    a(f"v_add_f32 v{24+i}, v{24+i}, v{40+r}")
                    a(f"v_fmac_f32 v{26+i}, v{40+r}, v{40+r}")
        a("v_xor_b32 v30, 16, v1"); a("v_lshlrev_b32 v30, 2, v30")
        a("v_xor_b32 v31, 32, v1"); a("v_lshlrev_b32 v31, 2, v31")
        for addr in ("v30", "v31"):
            for r in range(4): a(f"ds_bpermute_b32 v{32+r}, {addr}, v{24+r}")
            a("s_waitcnt lgkmcnt(0)")
            for r in range(4): a(f"v_add_f32 v{24+r}, v{24+r}, v{32+r}")
        X = R*STG
        a("s_lshl_b32 s30, s26, 8")
        a(f"s_add_u32 s30, s30, {X}")
        a("v_lshl_add_u32 v36, v3, 3, s30")
        for i in range(2):
            a(f"v_mov_b32 v{40+2*i}, v{24+i}"); a(f"v_mov_b32 v{41+2*i}, v{26+i}")
            a(f"ds_write_b64 v36, {vr(40+2*i,2)} offset:{i*128}")
        a("s_waitcnt lgkmcnt(0)")
        a("s_barrier")
        a("s_cmp_eq_u32 s42, 0")
        a(f"s_cbranch_scc0 {a.name}_done")
        for i in range(2): a(f"ds_read_b64 {vr(44+2*i,2)}, v36 offset:{256 + i*128}")
        a("s_lshl_b32 s30, s24, 11")
        a("s_add_u32 s30, s30, s27")
        a("v_add_u32 v37, s30, v3")
        a("v_lshlrev_b32 v37, 3, v37")
        a("v_cmp_gt_u32 vcc, 16, v1")
        a("s_waitcnt lgkmcnt(0)")
        for r in range(4): a(f"v_add_f32 v{40+r}, v{40+r}, v{44+r}")
        a("s_and_saveexec_b64 s[52:53], vcc")
        for i in range(2): a(f"buffer_store_dwordx2 {vr(40+2*i,2)}, v37, s[44:47], 0 offen offset:{i*128}")
        a("s_mov_b64 exec, s[52:53]")
    skeleton(a, R, STG, NST, 5, loader_setup, dma, cons_setup, body, (6, 5), epilogue)
    return a.text(), descriptor(a.name, 120, 0), f"; @launch kernel={a.name} grid=(192,1,1) block=(512,1,1) lds={R*STG + 1024}"


def k3b():
    a = Asm("ln_kernel"); header(a)
    a("s_cmp_ge_u32 s2, 576")
    a(f"s_cbranch_scc1 {a.name}_end")
    a("s_load_dwordx2 s[28:29], s[0:1], 80")
    a("s_lshl_b32 s3, s2, 8")
    a("v_add_u32 v1, s3, v0")
    a("v_lshlrev_b32 v2, 4, v1")
    a("s_mul_i32 s4, s2, 683")
    a("s_lshr_b32 s4, s4, 16")
    a("s_mul_i32 s4, s4, 24576")
    a("v_subrev_u32 v3, s4, v1")
    a("v_mul_u32_u24 v3, 43691, v3")
    a("v_lshrrev_b32 v3, 19, v3")
    a("v_lshlrev_b32 v3, 3, v3")
    a("s_waitcnt lgkmcnt(0)")
    srd_ws(a, 8, 28, WS_H, SZ_SD)
    srd_ws(a, 12, 28, WS_G, SZ_SD)
    srd_ws(a, 16, 28, WS_ST, SZ_ST)
    a("buffer_load_dwordx4 v[4:7], v2, s[8:11], 0 offen")
    for p in range(6):
        a(f"s_mov_b32 s20, {p*16384}")
        a(f"buffer_load_dwordx2 {vr(8+2*p,2)}, v3, s[16:19], s20 offen")
    a(f"s_mov_b32 s41, {f32hex(1.0/576)}")
    a(f"s_mov_b32 s42, {f32hex(1e-5)}")
    a("s_waitcnt vmcnt(0)")
    b = 8
    for c in range(2):
        a(f"v_add_f32 v{b+c}, v{b+c}, v{b+2+c}")
        a(f"v_add_f32 v{b+4+c}, v{b+4+c}, v{b+6+c}")
        a(f"v_add_f32 v{b+8+c}, v{b+8+c}, v{b+10+c}")
        a(f"v_add_f32 v{b+c}, v{b+c}, v{b+4+c}")
        a(f"v_add_f32 v{b+c}, v{b+c}, v{b+8+c}")
    a(f"v_mul_f32 v{b}, s41, v{b}")
    a(f"v_mul_f32 v{b+1}, s41, v{b+1}")
    a(f"v_fma_f32 v{b+1}, -v{b}, v{b}, v{b+1}")
    a(f"v_max_f32 v{b+1}, 0, v{b+1}")
    a(f"v_add_f32 v{b+2}, s42, v{b+1}")
    a(f"v_rcp_f32 v{b+3}, v{b+2}")
    a(f"v_rsq_f32 v{b+4}, v{b+2}")
    a("s_nop 0")
    a(f"v_mul_f32 v{b+3}, v{b+3}, v{b+1}")
    a(f"v_add_f32 v{b+3}, s42, v{b+3}")
    a(f"v_rsq_f32 v{b+3}, v{b+3}")
    a("s_nop 0")
    a(f"v_mul_f32 v{b+6}, v{b+3}, v{b+4}")
    a(f"v_mul_f32 v{b+7}, v{b+6}, v{b}")
    for r in range(4):
        a(f"v_lshlrev_b32 v20, 16, v{4+r}")
        a(f"v_and_b32 v21, 0xffff0000, v{4+r}")
        a(f"v_fma_f32 v20, v20, v14, -v15")
        a(f"v_fma_f32 v21, v21, v14, -v15")
        a(f"v_cvt_pk_bf16_f32 v{4+r}, v20, v21")
    a("buffer_store_dwordx4 v[4:7], v2, s[12:15], 0 offen")
    a.lab(f"{a.name}_end")
    a("s_endpgm")
    return a.text(), descriptor(a.name, 24, 0), f"; @launch kernel={a.name} grid=(576,1,1) block=(256,1,1) lds=0"


def build(kernels):
    hdr = "; generated by gen.py\n"
    texts, descs, launches = [], [], []
    for k in kernels:
        t, d, l = k()
        texts.append(t); descs.append(d); launches.append(l)
    if 'dup3' in FL: launches.append(launches[2])
    if 'dup45' in FL: launches = launches[:4] + [launches[3], launches[4], launches[4], launches[5]]
    out = hdr + "\n".join(launches) + "\n"
    out += '.amdgcn_target "amdgcn-amd-amdhsa--gfx950"\n.text\n'
    out += "\n".join(texts)
    out += "code_end:\n"
    out += '.section .rodata,"a"\n' + "\n".join(descs)
    return out

if __name__ == "__main__":
    ks = [k1, k2, k3, k3b, k4, k5, k6]
    out = build(ks)
    open(sys.argv[1] if len(sys.argv) > 1 else "out.s", "w").write(out)
```
